```python
import torch

def _softmax(x, axis=-1):
    return torch.softmax(x, dim=axis)
def _gelu(x):
    return torch.nn.functional.gelu(x, approximate="tanh")
def _silu(x):
    return torch.nn.functional.silu(x)
def _sigmoid(x):
    return torch.sigmoid(x)
def _layernorm(x, axis=-1, eps=1e-5):
    m = x.mean(dim=axis, keepdim=True)
    v = x.var(dim=axis, keepdim=True, unbiased=False)
    return (x - m) / torch.sqrt(v + eps)
def _scatter_add(tgt, idx, src, axis=0):
    return tgt.clone().index_add_(axis, idx, src)
def _segment_sum(src, seg, n):
    out = torch.zeros((n,) + src.shape[1:], dtype=src.dtype)
    return out.index_add_(0, seg, src)
def _pad(x, pw):
    flat = tuple(v for pair in reversed(pw) for v in pair)
    return torch.nn.functional.pad(x, flat)

kernel_name = 'parallel_sum__grouped_kv_mqa__dense_activation_squared_relu__prompt'

def setup_inputs():

    _w = (lambda a: (lambda t: t.to(torch.bfloat16) if t.is_floating_point() else t)(torch.as_tensor(a)))
    def _A_setup():
        B, S, D, H = 1, 2048, 576, 32
        Dh = D // H
        return {
            "x": _w((lambda *s: torch.randn(*s, dtype=torch.bfloat16) * 0.05)(B, S, D)),
            "wq": _w((lambda *s: torch.randn(*s, dtype=torch.bfloat16) * 0.2)(D, H * Dh)),
            "wk": _w((lambda *s: torch.randn(*s, dtype=torch.bfloat16) * 0.2)(D, Dh)),
            "wv": _w((lambda *s: torch.randn(*s, dtype=torch.bfloat16) * 0.1)(D, Dh)),
            "wo": _w((lambda *s: torch.randn(*s, dtype=torch.bfloat16) * 0.1)(H * Dh, D)),
        }
    _A_in = _A_setup()

    def _B_setup():
        B, S, D, F = 1, 2048, 576, 4608
        return {
            "x": _w((lambda *s: torch.randn(*s, dtype=torch.bfloat16) * 0.05)(B, S, D)),
            "w1": _w((lambda *s: torch.randn(*s, dtype=torch.bfloat16) * 0.05)(D, F)),
            "b1": _w((lambda *s: torch.randn(*s, dtype=torch.bfloat16) * 0.8)(F)),
            "w2": _w((lambda *s: torch.randn(*s, dtype=torch.bfloat16) * 0.05)(F, D)),
            "b2": _w((lambda *s: torch.randn(*s, dtype=torch.bfloat16) * 12.8)(D)),
        }
    _B_in = _B_setup()

    return {
        "A_x": _A_in["x"],
        "A_wq": _A_in["wq"],
        "A_wk": _A_in["wk"],
        "A_wv": _A_in["wv"],
        "A_wo": _A_in["wo"],
        "B_x": _B_in["x"],
        "B_w1": _B_in["w1"],
        "B_b1": _B_in["b1"],
        "B_w2": _B_in["w2"],
        "B_b2": _B_in["b2"],
    }

def reference(A_x, A_wq, A_wk, A_wv, A_wo, B_x, B_w1, B_b1, B_w2, B_b2):
    def _A_ref(x, wq, wk, wv, wo):
        B, S, D = x.shape
        H = 32
        Dh = D // H
        q = (lambda x, *d: x.permute(*d))((x @ wq).reshape(B, S, H, Dh), 0, 2, 1, 3)
        k = x @ wk
        v = x @ wv
        scores = torch.einsum("bhqd,bkd->bhqk", q, k) * (Dh ** -0.5)
        p = _softmax(scores, axis=-1)
        o = torch.einsum("bhqk,bkd->bhqd", p, v)
        return (lambda x, *d: x.permute(*d))(o, 0, 2, 1, 3).reshape(B, S, H * Dh) @ wo

    def _B_ref(x, w1, b1, w2, b2):
        h = torch.einsum("bsd,df->bsf", x, w1) + b1
        zero = torch.zeros_like(h)
        r = torch.where(h > zero, h, zero)
        h = r * r
        out = torch.einsum("bsf,fd->bsd", h, w2) + b2
        return out

    x = A_x
    xn = _layernorm(x, axis=-1)
    return x + _A_ref(xn, A_wq, A_wk, A_wv, A_wo) + _B_ref(xn, B_w1, B_b1, B_w2, B_b2)
```

```python
def attention(g, opts, M):
    if opts.get("noattn"):
        return
    vr, sr = M.vr, M.sr
    S_RB, S_FS, S_WV, S_W4, S_LO = M.S_RB, M.S_FS, M.S_WV, M.S_W4, M.S_LO
    Q1, Q2, S, P, O, KV = M.A_Q1, M.A_Q2, M.A_S, M.A_P, M.A_O, M.A_KV
    AM, AK1, AK2, AV = M.A_M, M.A_AK1, M.A_AK2, M.A_AV
    AFL, FLD, FLW, DV, T, FV = M.A_AFL, M.A_FLD, M.A_FLW, M.A_DV0, M.A_T, M.A_FV
    S_C, S_THR, S_DOFF, S_M0B, S_LT = 84, 85, 86, 87, 88
    S_CK = [90, 92]
    LO = f"s[{S_LO}:{S_LO+1}]"
    CH, TB = M.CHUNK_B, M.TILE_B
    ldaux = " sc1" if opts.get("inkernel") else ""

    g("v_and_b32 v2, 31, v1")
    g("v_lshrrev_b32 v3, 5, v1")
    g(f"v_lshlrev_b32 v4, 4, v1")
    g(f"v_add_u32 v{AK1}, {M.KVR}, v4")
    g(f"v_lshlrev_b32 v4, 2, v2")
    g(f"v_add_u32 v{AK2}, {M.KVR + 1024}, v4")
    g("v_min_u32 v4, 18, v2")
    g("v_lshlrev_b32 v4, 4, v4")
    g("v_mul_u32_u24 v5, 304, v3")
    g("v_add_u32 v4, v4, v5")
    g(f"v_add_u32 v{AV}, {M.KVR + 1152}, v4")
    g("v_and_b32 v4, 3, v1")
    g("v_lshlrev_b32 v4, 2, v4")
    g(f"v_add_u32 v{AFL}, {M.F_KV}, v4")
    g(f"s_lshl_b32 s9, s{S_W4}, 2")
    g(f"s_add_u32 s9, s9, {M.F_KV}")
    g(f"v_mov_b32 v{FLW}, s9")
    g(f"s_mul_i32 s9, s{S_W4}, {74*16}")
    g(f"v_lshlrev_b32 v4, 4, v1")
    g(f"v_add_u32 v{DV}, s9, v4")
    g(f"s_add_u32 s{S_M0B}, s9, {M.KVR}")
    g(f"s_mov_b32 s{S_LT}, {M.f32bits(M.LTHR)}")
    for st in range(2):
        for u in range(2):
            b = KV(st, u)
            g(f"v_mov_b32 v{b+5}, 0x3f803f80")
            g(f"v_mov_b32 v{b+6}, 0x3f80")
            g(f"v_mov_b32 v{b+7}, 0")
    for r in range(4):
        g(f"v_mov_b32 v{KV(1,1)+12+r}, 0")
    for rt in range(2):
        for r in range(16):
            g(f"v_mov_b32 v{O[rt]+r}, 0")
        for r in range(8):
            g(f"v_mov_b32 v{P[rt]+r}, 0")

    def dma(slot):
        return [[f"s_add_u32 m0, s{S_M0B}, {slot*CH}", "s_nop 0",
                 f"buffer_load_dwordx4 v{DV}, {sr(M.SRD_WS)}, s{S_DOFF} offen{ldaux} lds"],
                ["s_mov_b64 exec, 0x3ff",
                 f"buffer_load_dwordx4 v{DV}, {sr(M.SRD_WS)}, s{S_DOFF} offen offset:1024{ldaux} lds",
                 "s_mov_b64 exec, -1",
                 f"s_add_u32 s{S_DOFF}, s{S_DOFF}, {CH}"]]
    def frag_reads(slot, st):
        ops = []
        for u in range(2):
            b = KV(st, u)
            off = slot * CH + u * TB
            ops.append([f"ds_read_b128 {vr(b,4)}, v{AK1} offset:{off}"])
            ops.append([f"ds_read_b32 v{b+4}, v{AK2} offset:{off}"])
            ops.append([f"ds_read_b128 {vr(b+8,4)}, v{AV} offset:{off}"])
            ops.append([f"ds_read_b128 {vr(b+12,4)}, v{AV} offset:{off+608}"])
        return ops
    def emit(ops):
        for o in ops:
            for l in o:
                g(l)
    def set_mref(rt):
        g(f"v_sub_f32 v{T}, 0, v{AM[rt]}")
        g(f"v_and_b32 v{T+1}, 0xffff0000, v{T}")
        g(f"v_sub_f32 v{T}, v{T}, v{T+1}")
        g(f"v_and_b32 v{T+2}, 0xffff0000, v{T}")
        g(f"v_sub_f32 v{T}, v{T}, v{T+2}")
        g(f"v_lshrrev_b32 v{T+1}, 16, v{T+1}")
        g(f"v_or_b32 v{T+1}, v{T+1}, v{T+2}")
        g(f"v_lshrrev_b32 v{T}, 16, v{T}")
        g(f"v_cndmask_b32 v{Q2[rt]+1}, 0, v{T+1}, {LO}")
        g(f"v_cndmask_b32 v{Q2[rt]+2}, 0, v{T}, {LO}")
    def qk1(rt, kb):
        return f"v_mfma_f32_32x32x16_bf16 {vr(S[rt],16)}, {vr(kb,4)}, {vr(Q1[rt],4)}, 0"
    def qk2(rt, kb):
        return f"v_mfma_f32_32x32x16_bf16 {vr(S[rt],16)}, {vr(kb+4,4)}, {vr(Q2[rt],4)}, {vr(S[rt],16)}"
    def pva(rt, kb):
        return f"v_mfma_f32_32x32x16_bf16 {vr(O[rt],16)}, {vr(kb+8,4)}, {vr(P[rt],4)}, {vr(O[rt],16)}"
    def pvb(rt, kb):
        return f"v_mfma_f32_32x32x16_bf16 {vr(O[rt],16)}, {vr(kb+12,4)}, {vr(P[rt]+4,4)}, {vr(O[rt],16)}"

    g(f"v_mov_b32 v{FV}, 1")
    g(f"ds_write_b32 v{FLW}, v{FV}")
    if opts.get("inkernel"):
        M.global_kv_sync(g, opts)
    M.flag_wait(g, AFL, FLD, 1, "ka")
    g("s_setprio 2")
    g(f"s_mov_b32 s{S_DOFF}, {M.WS_KV}")
    for c in range(3):
        emit(dma(c))
    g("s_waitcnt vmcnt(4)")
    g(f"v_mov_b32 v{FV}, 2")
    g(f"ds_write_b32 v{FLW}, v{FV}")
    M.flag_wait(g, AFL, FLD, 2, "kb")
    emit(frag_reads(0, 0))
    g("s_waitcnt lgkmcnt(0)")
    for rt in range(2):
        g(qk1(rt, KV(0, 0)))
        g(qk2(rt, KV(0, 0)))
    g("s_nop 15")
    g("s_nop 3")
    for rt in range(2):
        s = S[rt]
        g(f"v_max3_f32 v{T}, v{s}, v{s+1}, v{s+2}")
        for r in range(3, 15, 2):
            g(f"v_max3_f32 v{T}, v{T}, v{s+r}, v{s+r+1}")
        g(f"v_max_f32 v{T}, v{T}, v{s+15}")
        g(f"v_mov_b32 v{T+1}, v{T}")
        g("s_nop 1")
        g(f"v_permlane32_swap_b32 v{T}, v{T+1}")
        g("s_nop 1")
        g(f"v_max_f32 v{T}, v{T}, v{T+1}")
        g(f"v_ceil_f32 v{T}, v{T}")
        g(f"v_add_f32 v{AM[rt]}, {M.f32bits(float(M.HEAD))}, v{T}")
        set_mref(rt)
    g("s_nop 1")
    g(qk1(0, KV(0, 0)))
    g(qk2(0, KV(0, 0)))
    g("s_nop 15")
    g(f"s_mov_b32 s{S_C}, 0")
    g(f"s_mov_b32 s{S_THR}, 3")

    rare = []

    def half_iter(pos6, q, extra):
        st = pos6 & 1
        rt = q & 1
        u = q >> 1
        if q < 3:
            nst, nu, nrt = st, (q + 1) >> 1, (q + 1) & 1
        else:
            nst, nu, nrt = st ^ 1, 0, 0
        if q > 0:
            pst, pu, prt = st, (q - 1) >> 1, (q - 1) & 1
        else:
            pst, pu, prt = st ^ 1, 1, 1
        s, p = S[rt], P[rt]
        valu = []
        for grp in range(4):
            for r in range(4):
                valu.append(f"v_exp_f32 v{s+4*grp+r}, v{s+4*grp+r}")
            valu.append(f"v_cvt_pk_bf16_f32 v{p+2*grp}, v{s+4*grp}, v{s+4*grp+1}")
            valu.append(f"v_cvt_pk_bf16_f32 v{p+2*grp+1}, v{s+4*grp+2}, v{s+4*grp+3}")
        mf = {0: qk1(nrt, KV(nst, nu)), 6: qk2(nrt, KV(nst, nu)), 12: pvb(prt, KV(pst, pu)), 18: pva(rt, KV(st, u))}
        for i in range(24):
            for l in extra.get(i, []):
                g(l)
            if i in mf:
                g(mf[i])
            g(valu[i])

    def rare_block(rt, kb, Lr, Lback):
        b = []
        b.append(f"{Lr}:")
        L = M.G()
        L(pvb(rt, kb))
        L("s_nop 15")
        L("s_nop 3")
        L(f"v_frexp_exp_i32_f32 v{T+3}, v{O[rt]+12}")
        L(f"v_add_u32 v{T+3}, {M.HEAD}, v{T+3}")
        L(f"v_max_i32 v{T+3}, 0, v{T+3}")
        L(f"v_cvt_f32_i32 v{T+4}, v{T+3}")
        L(f"v_sub_u32 v{T+3}, 0, v{T+3}")
        L(f"v_add_f32 v{AM[rt]}, v{AM[rt]}, v{T+4}")
        for r in range(16):
            L(f"v_ldexp_f32 v{O[rt]+r}, v{O[rt]+r}, v{T+3}")
        for r in range(4):
            L(f"v_mov_b32 v{P[rt]+4+r}, 0")
        old = g.lines
        g.lines = L.lines
        set_mref(rt)
        if opts.get("dbgrare"):
            g(f"s_add_u32 s95, s95, 1")
        g("s_nop 1")
        g(f"s_branch {Lback}")
        g.lines = old
        rare.append("\n".join(b + L.lines))

    Lloop, Lexit = g.new("aloop"), g.new("aexit")
    if opts.get("dbgrare"):
        g("s_mov_b32 s95, 0")
    g.label(Lloop)
    for pos6 in range(6):
        st = pos6 & 1
        g.c(f"==== chunk pos {pos6}")
        Lspin, Lback = g.new("aspin"), g.new("aback")
        ex = {2: ["s_waitcnt vmcnt(2)", f"v_mov_b32 v{FV}, s{S_THR}", f"ds_write_b32 v{FLW}, v{FV}"],
              20: [f"ds_read_b32 v{FLD}, v{AFL}"]}
        half_iter(pos6, 0, ex)
        fr = frag_reads((pos6 + 1) % 3, st ^ 1)
        dm = dma(pos6 % 3)
        ex = {8: ["s_waitcnt lgkmcnt(0)", f"v_cmp_gt_u32 vcc, s{S_THR}, v{FLD}"],
              11: [f"s_cbranch_vccnz {Lspin}", f"{Lback}:"] + fr[0] + fr[1],
              13: fr[4] + fr[5], 15: fr[2] + fr[3], 17: fr[6] + fr[7], 20: dm[0], 22: dm[1]}
        if st == 0:
            ex[17] = ex[17] + [f"v_cmp_lt_f32 s[{S_CK[1]}:{S_CK[1]+1}], s{S_LT}, v{O[1]+12}"]
        half_iter(pos6, 1, ex)
        rare.append("\n".join([f"{Lspin}:", f"    ds_read_b32 v{FLD}, v{AFL}", "    s_waitcnt lgkmcnt(0)",
                               f"    v_cmp_gt_u32 vcc, s{S_THR}, v{FLD}", "    s_nop 4",
                               f"    s_cbranch_vccz {Lback}", "    s_sleep 1", f"    s_branch {Lspin}"]))
        ex = {}
        if st == 0:
            Lr, Lb = g.new("rare1"), g.new("rback1")
            ex[0] = [f"s_cmp_lg_u64 s[{S_CK[1]}:{S_CK[1]+1}], 0", f"s_cbranch_scc1 {Lr}", f"{Lb}:"]
            rare_block(1, KV(0, 0), Lr, Lb)
            ex[17] = [f"v_cmp_lt_f32 s[{S_CK[0]}:{S_CK[0]+1}], s{S_LT}, v{O[0]+12}"]
        half_iter(pos6, 2, ex)
        ex = {0: ["s_waitcnt lgkmcnt(0)"]}
        if st == 0:
            Lr, Lb = g.new("rare0"), g.new("rback0")
            ex[0] = ex[0] + [f"s_cmp_lg_u64 s[{S_CK[0]}:{S_CK[0]+1}], 0", f"s_cbranch_scc1 {Lr}", f"{Lb}:"]
            rare_block(0, KV(0, 1), Lr, Lb)
        ex[14] = [f"s_add_u32 s{S_THR}, s{S_THR}, 1"]
        if pos6 == 1:
            ex[16] = [f"s_cmp_eq_u32 s{S_THR}, 35"]
        half_iter(pos6, 3, ex)
        if pos6 == 1:
            g(f"s_cbranch_scc1 {Lexit}")
    g(f"s_branch {Lloop}")
    for r in rare:
        g.lines.append(r)
    g.label(Lexit)
    g("s_nop 1")
    g(pvb(1, KV(1, 1)))
    g("s_setprio 0")
    g("s_waitcnt vmcnt(0) lgkmcnt(0)")
    g(f"v_mov_b32 v{FV}, 100")
    g(f"ds_write_b32 v{FLW}, v{FV}")
    g("s_nop 7")
    g("s_nop 7")
    if opts.get("dbgrare"):
        g("s_lshl_b32 s9, s2, 2")
        g(f"s_add_u32 s9, s9, s{S_W4}")
        g("s_lshl_b32 s9, s9, 2")
        g(f"s_add_u32 s9, s9, {M.WS_DBG}")
        g("v_mov_b32 v2, 0")
        g("v_mov_b32 v3, s95")
        g(f"buffer_store_dword v3, v2, {sr(M.SRD_WS)}, s9 offen")
    g("s_movk_i32 s9, 0x207")
    g("s_mov_b64 s[90:91], 0")
    the_slow = opts.get("slow", True)
    for rt in range(2):
        Lok = g.new("fin_ok")
        g("s_mov_b64 s[90:91], 0")
        for r in list(range(10)) + [12]:
            g(f"v_cmp_class_f32 vcc, v{O[rt]+r}, s9")
            g("s_or_b64 s[90:91], s[90:91], vcc")
        if opts.get("forceslow"):
            g("s_mov_b64 s[90:91], -1")
        g("s_cmp_eq_u64 s[90:91], 0")
        g(f"s_cbranch_scc1 {Lok}")
        slow_path(g, opts, M, rt, set_mref, qk1, qk2, pva, pvb)
        g.label(Lok)
    g("v_and_b32 v2, 31, v1")
    g("v_lshrrev_b32 v3, 5, v1")
    g(f"v_mul_u32_u24 v4, {M.OSTR}, v2")
    g(f"v_add_u32 v4, {M.OREG}, v4")
    g(f"s_mul_i32 s9, s{S_W4}, 18")
    g("v_lshlrev_b32 v5, 2, v3")
    g("v_add_u32 v5, s9, v5")
    AD = 8
    for p, dd in enumerate((0, 2, 8, 10, 16)):
        g(f"v_add_u32 v6, {dd}, v5")
        g("v_lshrrev_b32 v7, 5, v6")
        g(f"v_lshl_add_u32 v{AD+p}, v7, 6, v4")
        g("v_bfe_u32 v7, v6, 2, 2")
        g(f"v_lshl_add_u32 v{AD+p}, v7, 4, v{AD+p}")
        g("v_bfe_u32 v7, v6, 4, 1")
        g(f"v_lshl_add_u32 v{AD+p}, v7, 3, v{AD+p}")
        g("v_and_b32 v7, 3, v6")
        g(f"v_lshl_add_u32 v{AD+p}, v7, 1, v{AD+p}")
    g("v_and_b32 v6, 15, v1")
    g(f"s_lshl_b32 s9, s{S_W4}, 4")
    g("v_add_u32 v6, s9, v6")
    g(f"v_mul_u32_u24 v6, {M.OSTR}, v6")
    g(f"v_add_u32 v6, {M.OREG + 128}, v6")
    g("v_lshrrev_b32 v7, 4, v1")
    g("v_lshl_add_u32 v13, v7, 4, 16")
    g("v_add_u32 v14, 8, v13")
    g("v_cmp_eq_u32 vcc, 0, v7")
    g("v_cmp_eq_u32 s[92:93], 3, v7")
    g("s_nop 1")
    g("s_or_b64 vcc, vcc, s[92:93]")
    g("s_nop 1")
    g("v_cndmask_b32 v13, v13, 8, vcc")
    g("v_cndmask_b32 v14, v14, 24, vcc")
    g("v_add_u32 v13, v13, v6")
    g("v_add_u32 v14, v14, v6")
    g("v_mov_b32 v6, 0")
    g("v_mov_b32 v7, 0")
    for rt in range(2):
        o = O[rt]
        g(f"v_rcp_f32 v{T}, v{o+12}")
        g("s_nop 0")
        for r in range(10):
            g(f"v_mul_f32 v{o+r}, v{o+r}, v{T}")
        for p in range(5):
            g(f"v_cvt_pk_bf16_f32 v{o+p}, v{o+2*p}, v{o+2*p+1}")
    M.flag_wait(g, AFL, FLD, 100, "kend")
    g("ds_write_b64 v13, v[6:7]")
    g("ds_write_b64 v14, v[6:7]")
    for rt in range(2):
        o = O[rt]
        for p in range(4):
            g(f"ds_write_b32 v{AD+p}, v{o+p} offset:{rt*32*M.OSTR}")
        g(f"s_mov_b64 exec, {LO}")
        g(f"ds_write_b32 v{AD+4}, v{o+4} offset:{rt*32*M.OSTR}")
        g("s_mov_b64 exec, -1")
    g("s_waitcnt lgkmcnt(0)")
    g(f"v_add_u32 v{FLW}, {M.F_O - M.F_KV}, v{FLW}")
    g(f"v_mov_b32 v{FV}, 1")
    g(f"ds_write_b32 v{FLW}, v{FV}")
    g("s_waitcnt lgkmcnt(0)")


def slow_path(g, opts, M, rt, set_mref, qk1, qk2, pva, pvb):
    vr, sr = M.vr, M.sr
    Q1, Q2, S, P, O, KV = M.A_Q1, M.A_Q2, M.A_S, M.A_P, M.A_O, M.A_KV
    AM, AK1, AK2, AV, T = M.A_M, M.A_AK1, M.A_AK2, M.A_AV, M.A_T
    ldaux = " sc1" if opts.get("inkernel") else ""
    kb = KV(0, 0)
    s, p, o = S[rt], P[rt], O[rt]
    G1, G2, G3 = T + 6, T + 7, T + 8
    g(f"v_subrev_u32 v{G1}, {M.KVR}, v{AK1}")
    g(f"v_subrev_u32 v{G2}, {M.KVR}, v{AK2}")
    g(f"v_subrev_u32 v{G3}, {M.KVR}, v{AV}")
    for r in range(16):
        g(f"v_mov_b32 v{o+r}, 0")
    g(f"v_mov_b32 v{AM[rt]}, {M.f32bits(-8388608.0)}")
    g(f"s_mov_b32 s10, {M.WS_KV}")
    g("s_mov_b32 s11, 0")
    L, Lno = g.new("slow"), g.new("slownors")
    g.label(L)
    g(f"buffer_load_dwordx4 {vr(kb,4)}, v{G1}, {sr(M.SRD_WS)}, s10 offen{ldaux}")
    g(f"buffer_load_dword v{kb+4}, v{G2}, {sr(M.SRD_WS)}, s10 offen{ldaux}")
    g(f"buffer_load_dwordx4 {vr(kb+8,4)}, v{G3}, {sr(M.SRD_WS)}, s10 offen{ldaux}")
    g(f"buffer_load_dwordx4 {vr(kb+12,4)}, v{G3}, {sr(M.SRD_WS)}, s10 offen offset:608{ldaux}")
    g(f"v_mov_b32 v{Q2[rt]+1}, 0")
    g(f"v_mov_b32 v{Q2[rt]+2}, 0")
    g("s_waitcnt vmcnt(0)")
    g("s_nop 1")
    g(qk1(rt, kb))
    g(qk2(rt, kb))
    g("s_nop 15")
    g("s_nop 3")
    g(f"v_max3_f32 v{T}, v{s}, v{s+1}, v{s+2}")
    for r in range(3, 15, 2):
        g(f"v_max3_f32 v{T}, v{T}, v{s+r}, v{s+r+1}")
    g(f"v_max_f32 v{T}, v{T}, v{s+15}")
    g(f"v_mov_b32 v{T+1}, v{T}")
    g("s_nop 1")
    g(f"v_permlane32_swap_b32 v{T}, v{T+1}")
    g("s_nop 1")
    g(f"v_max_f32 v{T}, v{T}, v{T+1}")
    g(f"v_ceil_f32 v{T}, v{T}")
    g(f"v_max_f32 v{T}, v{T}, v{AM[rt]}")
    g(f"v_sub_f32 v{T+1}, v{AM[rt]}, v{T}")
    g(f"v_max_f32 v{T+1}, {M.f32bits(-1000.0)}, v{T+1}")
    g(f"v_cvt_i32_f32 v{T+1}, v{T+1}")
    g(f"v_mov_b32 v{AM[rt]}, v{T}")
    for r in range(16):
        g(f"v_ldexp_f32 v{o+r}, v{o+r}, v{T+1}")
    for r in range(16):
        g(f"v_sub_f32 v{s+r}, v{s+r}, v{AM[rt]}")
        g(f"v_exp_f32 v{s+r}, v{s+r}")
    g("s_nop 0")
    for r in range(8):
        g(f"v_cvt_pk_bf16_f32 v{p+r}, v{s+2*r}, v{s+2*r+1}")
    g("s_nop 1")
    g(pva(rt, kb))
    g(pvb(rt, kb))
    g("s_nop 15")
    g("s_nop 3")
    g(f"s_add_u32 s10, s10, {M.TILE_B}")
    g("s_add_u32 s11, s11, 1")
    g("s_cmp_lt_u32 s11, 64")
    g(f"s_cbranch_scc1 {L}")
```

```python
def ffn(g, opts, M):
    vr, sr = M.vr, M.sr
    S_RB, S_FS, S_WV, S_W4 = M.S_RB, M.S_FS, M.S_WV, M.S_W4
    ACC = lambda ct, rt: 16 + (ct * 4 + rt) * 4
    AB = [160, 172]
    BB = [184, 200]
    VO1, VO2 = 216, 225
    VBE = [234, 235]
    VTA, VBO, VFL, VFW = 236, 237, 238, 239
    VH = 240
    VT = 244
    S_WR, S_O1, S_O2, S_O3 = 84, 85, 86, 87
    noattn = opts.get("noattn")
    for j in range(9):
        g(f"v_add_u32 v5, {64*j}, v1")
        g("v_mul_u32_u24 v6, 3641, v5")
        g("v_lshrrev_b32 v6, 16, v6")
        g("v_mul_u32_u24 v7, 18, v6")
        g("v_sub_u32 v7, v5, v7")
        g("v_lshlrev_b32 v7, 4, v7")
        if j % 4:
            g(f"v_subrev_u32 v7, {(j%4)*1024}, v7")
        g("v_mul_u32_u24 v5, 9216, v6")
        g(f"v_add_u32 v{VO1+j}, v5, v7")
        g("v_mul_u32_u24 v5, 1152, v6")
        g(f"v_add_u32 v{VO2+j}, v5, v7")
    g(f"s_mul_i32 s{S_WR}, s{S_W4}, 18432")
    g(f"s_add_u32 s{S_WR}, s{S_WR}, {M.WR}")
    g(f"s_mul_i32 s9, s{S_W4}, 288")
    g(f"s_mul_i32 s{S_O1}, s{S_FS}, 1152")
    g(f"s_add_u32 s{S_O1}, s{S_O1}, s9")
    g(f"s_mul_i32 s{S_O2}, s{S_FS}, {576*1152}")
    g(f"s_add_u32 s{S_O2}, s{S_O2}, s9")
    g(f"s_mul_i32 s{S_O3}, s{S_FS}, {72*1152}")
    g(f"s_add_u32 s{S_O3}, s{S_O3}, s9")
    g("v_and_b32 v2, 15, v1")
    g("v_lshrrev_b32 v3, 4, v1")
    g("v_bfe_u32 v4, v2, 1, 3")
    g("v_xor_b32 v5, v4, v3")
    g("v_mul_u32_u24 v6, 1152, v2")
    g(f"v_lshl_add_u32 v{VBE[0]}, v5, 4, v6")
    g("v_xor_b32 v5, 4, v5")
    g(f"v_lshl_add_u32 v{VBE[1]}, v5, 4, v6")
    g(f"v_mul_u32_u24 v5, {M.OSTR}, v2")
    g("v_lshl_add_u32 v5, v3, 4, v5")
    g(f"v_add_u32 v{VBO}, {M.OREG}, v5")
    g("v_lshrrev_b32 v5, 2, v1")
    g("v_mul_u32_u24 v5, 288, v5")
    g("v_and_b32 v7, 3, v1")
    g("v_lshl_add_u32 v5, v7, 3, v5")
    g(f"v_add_u32 v{VTA}, s{S_WR}, v5")
    g("v_lshlrev_b32 v5, 2, v7")
    g(f"v_add_u32 v{VFL}, {M.F_X}, v5")
    g(f"s_lshl_b32 s9, s{S_W4}, 2")
    g(f"s_add_u32 s9, s9, {M.F_X}")
    g(f"v_mov_b32 v{VFW}, s9")
    for c in range(4):
        g(f"s_mul_i32 s9, s{S_W4}, 9")
        g(f"s_add_u32 s9, s9, {c}")
        g("s_lshr_b32 s10, s9, 2")
        g("s_lshl_b32 s10, s10, 7")
        g("s_and_b32 s11, s9, 1")
        g("s_lshl_b32 s11, s11, 3")
        g("s_add_u32 s10, s10, s11")
        g("s_and_b32 s11, s9, 2")
        g("s_lshl_b32 s11, s11, 1")
        g("v_xor_b32 v5, v4, v3")
        g("v_xor_b32 v5, s11, v5")
        g("v_lshl_add_u32 v5, v5, 4, v6")
        g(f"v_add_u32 v{VH+c}, s10, v5")
    g("v_lshlrev_b32 v5, 3, v3")
    for ct in range(9):
        g(f"buffer_load_dwordx2 {vr(ACC(ct,1),2)}, v5, {sr(M.SRD_B1)}, s{S_O1} offen offset:{ct*32}")
    g("s_waitcnt vmcnt(0)")
    for ct in range(9):
        a, b = ACC(ct, 0), ACC(ct, 1)
        g(f"v_lshlrev_b32 v{a}, 16, v{b}")
        g(f"v_and_b32 v{a+1}, 0xffff0000, v{b}")
        g(f"v_lshlrev_b32 v{a+2}, 16, v{b+1}")
        g(f"v_and_b32 v{a+3}, 0xffff0000, v{b+1}")
    g("s_barrier")

    steps = [("w1", k) for k in range(18)] + [("w2", k) for k in range(18)]
    if not noattn:
        steps += [("wo", k) for k in range(3)]
    NS = len(steps)

    def dma_ops(gs):
        kind, kk = steps[gs]
        st = gs & 1
        if kind == "w1":
            srd, vo, sb, inc = M.SRD_W1, VO1, S_O1, kk * 32 * 9216
        elif kind == "w2":
            srd, vo, sb, inc = M.SRD_W2, VO2, S_O2, kk * 32 * 1152
        else:
            srd, vo, sb, inc = M.SRD_WO, VO2, S_O3, kk * 32 * 1152
        ops = []
        for j in range(9):
            pre = []
            if j == 0:
                pre.append(f"s_add_u32 s88, s{sb}, {inc}")
            if j % 4 == 0:
                pre.append(f"s_add_u32 m0, s{S_WR}, {st*9216 + (j//4)*4096}")
                pre.append("s_nop 0")
            ops.append(pre + [f"buffer_load_dwordx4 v{vo+j}, {sr(srd)}, s88 offen offset:{(j%4)*1024} lds"])
        return ops
    def tr_ops(gs, c):
        st = gs & 1
        ab = AB[(3 * gs + c) & 1]
        ops = []
        for i in range(3):
            ct = 3 * c + i
            for jh in range(2):
                ops.append([f"ds_read_b64_tr_b16 {vr(ab+i*4+jh*2,2)}, v{VTA} offset:{st*9216 + ct*32 + jh*4608}"])
        return ops
    def b_ops(gs):
        kind, kk = steps[gs]
        bb = BB[gs & 1]
        ops = []
        for rt in range(4):
            if kind == "wo":
                ops.append([f"ds_read_b128 {vr(bb+rt*4,4)}, v{VBO} offset:{rt*16*M.OSTR + kk*64}"])
            else:
                ops.append([f"ds_read_b128 {vr(bb+rt*4,4)}, v{VBE[kk&1]} offset:{M.XH + rt*18432 + (kk>>1)*128}"])
        return ops
    def emit(ops):
        for o in ops:
            for l in o:
                g(l)

    emit(dma_ops(0))
    emit(dma_ops(1))
    emit(b_ops(0))
    g("s_waitcnt vmcnt(9)")
    emit(tr_ops(0, 0))
    for gs in range(NS):
        kind, kk = steps[gs]
        g.c(f"---- step {gs} {kind} {kk}")
        first = (kk == 0 and kind in ("w1", "w2"))
        bpre = gs + 1 < NS and not (steps[gs + 1][1] == 0 and steps[gs + 1][0] in ("w2", "wo"))
        for c in range(3):
            fill = []
            if c == 2 and bpre:
                g("s_waitcnt lgkmcnt(4)")
            else:
                g("s_waitcnt lgkmcnt(0)")
            if c < 2:
                fill += tr_ops(gs, c + 1)
                if c == 1 and bpre:
                    fill += b_ops(gs + 1)
                if c == 0 and kind == "w1" and kk == 17:
                    fill += [[f"v_mov_b32 v{VT}, 1", f"ds_write_b32 v{VFW}, v{VT}"]]
            else:
                if gs + 1 < NS:
                    g("s_waitcnt vmcnt(0)")
                    fill += tr_ops(gs + 1, 0)
                if gs + 2 < NS:
                    fill += dma_ops(gs + 2)
            ab = AB[(3 * gs + c) & 1]
            bb = BB[gs & 1]
            mf = []
            for i in range(3):
                ct = 3 * c + i
                order = (1, 2, 3, 0) if (first and kind == "w1") else (0, 1, 2, 3)
                for rt in order:
                    if first and kind == "w1":
                        cc = vr(ACC(ct, 0), 4)
                    elif first:
                        cc = "0"
                    else:
                        cc = vr(ACC(ct, rt), 4)
                    mf.append(f"v_mfma_f32_16x16x32_bf16 {vr(ACC(ct,rt),4)}, {vr(ab+i*4,4)}, {vr(bb+rt*4,4)}, {cc}")
            nf = len(fill)
            fi = 0
            for mi, m in enumerate(mf):
                g(m)
                want = ((mi + 1) * nf + 11) // 12
                while fi < want:
                    for l in fill[fi]:
                        g(l)
                    fi += 1
        if kind == "w1" and kk == 17:
            g.c("---- GEMM1 epilogue")
            M.flag_wait(g, VFL, VT, 1, "fx1")
            for ct in range(9):
                for rt in range(4):
                    a = ACC(ct, rt)
                    for r in range(4):
                        g(f"v_max_f32 v{a+r}, 0, v{a+r}")
                    g(f"v_pk_mul_f32 {vr(a,2)}, {vr(a,2)}, {vr(a,2)}")
                    g(f"v_pk_mul_f32 {vr(a+2,2)}, {vr(a+2,2)}, {vr(a+2,2)}")
                    g(f"v_cvt_pk_bf16_f32 v{a}, v{a}, v{a+1}")
                    g(f"v_cvt_pk_bf16_f32 v{a+1}, v{a+2}, v{a+3}")
                    g(f"ds_write_b64 v{VH + (ct & 3)}, {vr(a,2)} offset:{M.XH + rt*18432 + (ct>>2)*128}")
            g("s_waitcnt lgkmcnt(0)")
            g(f"v_mov_b32 v{VT}, 2")
            g(f"ds_write_b32 v{VFW}, v{VT}")
            M.flag_wait(g, VFL, VT, 2, "fx2")
            emit(b_ops(gs + 1))
        if kind == "w2" and kk == 17 and not noattn:
            g.c("---- wait for O")
            g(f"v_add_u32 v{VFL}, {M.F_O - M.F_X}, v{VFL}")
            M.flag_wait(g, VFL, VT, 1, "fo")
            emit(b_ops(gs + 1))
    g.c("---- GEMM2 epilogue: partial store")
    g("s_mul_i32 s9, s2, 73728")
    g(f"s_mul_i32 s10, s{S_W4}, 18432")
    g("s_add_u32 s9, s9, s10")
    g(f"s_add_u32 s9, s9, {M.WS_PART}")
    g("v_lshlrev_b32 v2, 4, v1")
    g("s_nop 7")
    for ct in range(9):
        for u in range(2):
            b = ACC(ct, 2 * u)
            tp = ct * 2 + u
            for d in range(4):
                g(f"v_cvt_pk_bf16_f32 v{b+d}, v{b+2*d}, v{b+2*d+1}")
            if tp % 4 == 0 and tp:
                g("s_add_u32 s9, s9, 4096")
            g(f"buffer_store_dwordx4 {vr(b,4)}, v2, {sr(M.SRD_WS)}, s9 offen offset:{(tp%4)*1024}")
    g("s_waitcnt vmcnt(0)")
```

```python
import sys, struct, math

KN = "parallel_sum__grouped_kv_mqa__dense_activation_squared_relu__prompt"

XH = 0
WR = 73728
KVR = 147456
OREG = 147456
OSTR = 224
FLAGS = 163712
LDS_SIZE = 163840
def QBLK(kk):
    if kk == 17: return 150528
    if kk < 2: return 150528 + kk * 5120
    return 73728 + (kk - 2) * 5120
F_KV = FLAGS
F_X = FLAGS + 16
F_O = FLAGS + 32
TILE_B = 2368
CHUNK_B = 2 * TILE_B
WS_KV = 0
WS_PART = 1 << 20
WS_DBG = 24 << 20
WS_SIZE = 32 << 20

def f32bits(x):
    return struct.unpack("<I", struct.pack("<f", x))[0]

CSCALE = math.log2(math.e) / math.sqrt(18.0)
HEAD = 40
LTHR = 2.0 ** 20


class G:
    def __init__(s):
        s.lines = []
        s.uid = 0
    def __call__(s, t):
        s.lines.append("    " + t)
    def label(s, l):
        s.lines.append(l + ":")
    def c(s, t):
        s.lines.append("    ; " + t)
    def new(s, p):
        s.uid += 1
        return f"L_{p}_{s.uid}"
    def text(s):
        return "\n".join(s.lines)


def vr(a, n):
    return f"v[{a}:{a+n-1}]"

S_RB, S_FS, S_WV, S_W4 = 4, 5, 6, 7
P_X, P_WQ, P_WK, P_WV, P_WO, P_BX, P_W1, P_B1, P_W2, P_B2, P_OUT, P_DBG, P_WS = [16 + 2 * i for i in range(13)]
SRD_X, SRD_WQ, SRD_W1, SRD_W2, SRD_WO, SRD_B1, SRD_WS, SRD_WK, SRD_WVV = 44, 48, 52, 56, 60, 64, 68, 72, 76
S_LO = 80
S_HI = 82


def srd(g, d, p, nbytes):
    g(f"s_mov_b32 s{d}, s{p}")
    g(f"s_and_b32 s{d+1}, s{p+1}, 0xffff")
    g(f"s_mov_b32 s{d+2}, {nbytes}")
    g(f"s_mov_b32 s{d+3}, 0x00020000")

def sr(d):
    return f"s[{d}:{d+3}]"


def flag_wait(g, vaddr, vtmp, thr, name):
    L = g.new(name)
    Ld = g.new(name + "d")
    g.label(L)
    g(f"ds_read_b32 v{vtmp}, v{vaddr}")
    g("s_waitcnt lgkmcnt(0)")
    g(f"v_cmp_gt_u32 vcc, {thr}, v{vtmp}")
    g("s_nop 4")
    g(f"s_cbranch_vccz {Ld}")
    g("s_sleep 1")
    g(f"s_branch {L}")
    g.label(Ld)


def prologue(g, opts):
    g("s_cmp_ge_u32 s2, 256")
    g("s_cbranch_scc1 L_end")
    g("s_load_dwordx16 s[16:31], s[0:1], 0")
    g("s_load_dwordx8 s[32:39], s[0:1], 64")
    g("s_load_dwordx2 s[40:41], s[0:1], 96")
    g("v_and_b32 v1, 63, v0")
    g("v_lshrrev_b32 v2, 6, v0")
    g(f"s_lshr_b32 s{S_RB}, s2, 3")
    g(f"s_and_b32 s{S_FS}, s2, 7")
    g(f"v_readfirstlane_b32 s{S_WV}, v2")
    g(f"s_mov_b32 s{S_LO}, -1")
    g(f"s_mov_b32 s{S_LO+1}, 0")
    g(f"s_mov_b32 s{S_HI}, 0")
    g(f"s_mov_b32 s{S_HI+1}, -1")
    g(f"s_and_b32 s{S_W4}, s{S_WV}, 3")
    g("v_lshrrev_b32 v2, 3, v1")
    g("v_and_b32 v3, 7, v1")
    g("v_mul_u32_u24 v4, 1152, v2")
    g("v_lshl_add_u32 v4, v3, 4, v4")
    g(f"s_lshl_b32 s8, s{S_RB}, 3")
    g(f"s_add_u32 s8, s8, s{S_WV}")
    g("s_mul_i32 s8, s8, 9216")
    g("s_waitcnt lgkmcnt(0)")
    srd(g, SRD_X, P_X, 2359296)
    for i in range(9):
        g(f"buffer_load_dwordx4 {vr(8+4*i,4)}, v4, {sr(SRD_X)}, s8 offen offset:{i*128}")
    srd(g, SRD_WQ, P_WQ, 663552)
    srd(g, SRD_WK, P_WK, 20736)
    srd(g, SRD_WVV, P_WV, 20736)
    srd(g, SRD_W1, P_W1, 5308416)
    srd(g, SRD_W2, P_W2, 5308416)
    srd(g, SRD_WO, P_WO, 663552)
    srd(g, SRD_B1, P_B1, 9216)
    srd(g, SRD_WS, P_WS, WS_SIZE)
    for j in range(5):
        g(f"v_add_u32 v5, {64*j}, v1")
        g("v_mul_u32_u24 v6, 7282, v5")
        g("v_lshrrev_b32 v6, 16, v6")
        g("v_mul_u32_u24 v7, 9, v6")
        g("v_sub_u32 v7, v5, v7")
        g("v_mul_u32_u24 v6, 1152, v6")
        g(f"v_lshl_add_u32 v{44+j}, v7, 4, v6")
        if j % 4:
            g(f"v_subrev_u32 v{44+j}, {(j%4)*1024}, v{44+j}")
    g("v_lshrrev_b32 v5, 2, v1")
    g("v_mul_u32_u24 v5, 36, v5")
    g(f"s_lshl_b32 s9, s{S_FS}, 2")
    g("v_mov_b32 v6, s9")
    g("v_and_b32 v7, 2, v1")
    g("v_cmp_eq_u32 vcc, 0, v7")
    g("s_nop 1")
    g("v_cndmask_b32 v6, 32, v6, vcc")
    g("v_add_u32 v49, v5, v6")
    g(f"s_mul_i32 s10, s{S_FS}, 144")
    for n in range(3):
        Ls = g.new("skipblk")
        if n == 2:
            g(f"s_cmp_lg_u32 s{S_WV}, 0")
            g(f"s_cbranch_scc1 {Ls}")
        g(f"s_add_u32 s11, s{S_WV}, {8*n}")
        g("s_mul_i32 s12, s11, 5120")
        g(f"s_add_u32 s13, s12, {150528}")
        g(f"s_add_u32 s12, s12, {73728 - 2*5120}")
        g("s_cmp_lt_u32 s11, 2")
        g("s_cselect_b32 s12, s13, s12")
        qkv_block_dma(g)
        g.label(Ls)
    Lf = g.new("noflag")
    g(f"s_cmp_lg_u32 s{S_WV}, 0")
    g(f"s_cbranch_scc1 {Lf}")
    g("v_lshlrev_b32 v5, 2, v1")
    g("v_and_b32 v5, 127, v5")
    g(f"v_add_u32 v5, {FLAGS}, v5")
    g("v_mov_b32 v6, 0")
    g("ds_write_b32 v5, v6")
    g.label(Lf)
    g(f"s_lshl_b32 s9, s{S_WV}, 3")
    g("v_add_u32 v5, s9, v2")
    g("v_lshrrev_b32 v6, 1, v5")
    g("v_and_b32 v6, 7, v6")
    g("v_lshrrev_b32 v7, 2, v3")
    g("v_lshlrev_b32 v7, 2, v7")
    g("v_and_b32 v50, 1, v3")
    g("v_lshl_add_u32 v7, v50, 1, v7")
    g("v_xor_b32 v7, v7, v6")
    g("v_mul_u32_u24 v50, 1152, v5")
    g("v_lshl_add_u32 v50, v7, 4, v50")
    g("v_bfe_u32 v7, v3, 1, 1")
    g("v_lshl_add_u32 v50, v7, 3, v50")
    g("v_xor_b32 v51, 16, v50")
    g("v_mov_b32 v52, 0")
    g("v_mov_b32 v53, 0")
    g("v_mov_b32 v54, 0")
    g("v_mov_b32 v55, 0")
    g("s_mov_b32 s9, 0x3f803f80")
    g("s_waitcnt vmcnt(0)")
    for n in range(36):
        g(f"v_dot2c_f32_bf16 v{52 + (n&1)}, s9, v{8+n}")
        g(f"v_dot2c_f32_bf16 v{54 + (n&1)}, v{8+n}, v{8+n}")
    g("s_nop 3")
    g("v_add_f32 v52, v52, v53")
    g("v_add_f32 v54, v54, v55")
    for pat in ("quad_perm:[1,0,3,2]", "quad_perm:[2,3,0,1]", "row_half_mirror"):
        g("s_nop 1")
        g(f"v_add_f32_dpp v52, v52, v52 {pat} row_mask:0xf bank_mask:0xf")
        g(f"v_add_f32_dpp v54, v54, v54 {pat} row_mask:0xf bank_mask:0xf")
    g(f"s_mov_b32 s9, {f32bits(1.0/576.0)}")
    g("v_mul_f32 v52, s9, v52")
    g("v_mul_f32 v54, s9, v54")
    g("v_fma_f32 v54, -v52, v52, v54")
    g("v_max_f32 v54, 0, v54")
    g(f"v_add_f32 v54, {f32bits(1e-5)}, v54")
    g("v_rsq_f32 v56, v54")
    g("s_nop 0")
    g("v_mov_b32 v57, v56")
    g("v_mul_f32 v58, v52, v56")
    g("v_sub_f32 v58, 0, v58")
    g("v_mov_b32 v59, v58")
    for n in range(36):
        t = 60 + 2 * (n % 4)
        g(f"v_lshlrev_b32 v{t}, 16, v{8+n}")
        g(f"v_and_b32 v{t+1}, 0xffff0000, v{8+n}")
        g(f"v_pk_fma_f32 {vr(t,2)}, {vr(t,2)}, v[56:57], v[58:59]")
        g(f"v_cvt_pk_bf16_f32 v{8+n}, v{t}, v{t+1}")
        if n % 4 == 3:
            i = n // 4
            g(f"ds_write_b64 v50, {vr(8+4*i,2)} offset:{i*128}")
            g(f"ds_write_b64 v51, {vr(10+4*i,2)} offset:{i*128}")
    g("s_waitcnt vmcnt(0) lgkmcnt(0)")
    g("s_barrier")


def qkv_block_dma(g):
    g("s_mul_i32 s13, s11, 36864")
    g("s_add_u32 s13, s13, s10")
    g("s_mov_b32 m0, s12")
    g("s_nop 0")
    for j in range(4):
        g(f"buffer_load_dwordx4 v{44+j}, {sr(SRD_WQ)}, s13 offen offset:{j*1024} lds")
    g("s_add_u32 m0, s12, 4096")
    g(f"s_mov_b64 exec, s[{S_LO}:{S_LO+1}]")
    g(f"buffer_load_dwordx4 v48, {sr(SRD_WQ)}, s13 offen lds")
    g("s_add_u32 m0, s12, 4608")
    g("s_mul_i32 s13, s11, 1152")
    g("s_add_u32 s14, s13, 320")
    g("s_mov_b32 exec_lo, 0x55555555")
    g("s_mov_b32 exec_hi, 0x55555555")
    g(f"buffer_load_dword v49, {sr(SRD_WK)}, s13 offen lds")
    g(f"buffer_load_dword v49, {sr(SRD_WK)}, s14 offen offset:256 lds")
    g("s_mov_b32 exec_lo, 0xaaaaaaaa")
    g("s_mov_b32 exec_hi, 0xaaaaaaaa")
    g(f"buffer_load_dword v49, {sr(SRD_WVV)}, s13 offen lds")
    g(f"buffer_load_dword v49, {sr(SRD_WVV)}, s14 offen offset:256 lds")
    g("s_mov_b64 exec, -1")


A_Q1 = [16, 20]
A_Q2 = [24, 28]
A_S = [32, 48]
A_P = [64, 72]
A_O = [80, 96]
def A_KV(st, u):
    return 112 + (st * 2 + u) * 16
A_M = [176, 177]
A_AK1, A_AK2, A_AV = 178, 179, 180
A_AFL, A_FLD, A_FLW = 181, 182, 183
A_DV0, A_DV1 = 184, 185
A_T = 186
A_FV = 200


def qkv_phase(g, opts):
    QA = [32, 48]
    AB = [112, 120]
    BB = [128, 144]
    VBA = 160
    VTA = 164
    g("v_and_b32 v2, 31, v1")
    g("v_lshrrev_b32 v3, 5, v1")
    g("v_bfe_u32 v4, v2, 1, 3")
    g("v_xor_b32 v4, v4, v3")
    g("v_mul_u32_u24 v5, 1152, v2")
    for e in range(2):
        for m in range(2):
            g(f"v_xor_b32 v6, {4*e+2*m}, v4")
            g(f"v_lshl_add_u32 v{VBA+e*2+m}, v6, 4, v5")
    g("v_bfe_u32 v4, v1, 2, 2")
    g("v_lshl_add_u32 v4, v3, 2, v4")
    g("v_bfe_u32 v5, v1, 4, 1")
    g("v_and_b32 v6, 3, v1")
    g("v_lshl_add_u32 v5, v5, 2, v6")
    g(f"s_mul_i32 s9, s{S_W4}, 36")
    g(f"s_and_b32 s10, s{S_W4}, 1")
    g("s_lshl_b32 s10, s10, 2")
    g("s_sub_u32 s9, s9, s10")
    g("v_lshlrev_b32 v6, 3, v5")
    g("v_add_u32 v6, s9, v6")
    g("v_mov_b32 v7, 4616")
    g("v_cmp_eq_u32 vcc, 5, v5")
    g("s_nop 1")
    g("v_mov_b32 v2, 4608")
    g("v_cndmask_b32 v7, v7, v2, vcc")
    g("v_cmp_gt_u32 vcc, 5, v5")
    g("s_nop 1")
    g("v_cndmask_b32 v6, v7, v6, vcc")
    g("v_mov_b32 v7, 16")
    g("v_mov_b32 v2, 144")
    g("v_cndmask_b32 v7, v7, v2, vcc")
    for idx, kb in enumerate((0, 16, 8, 24)):
        g(f"v_add_u32 v2, {kb}, v4")
        g(f"v_mad_u32_u24 v2, v2, v7, v6")
        g(f"v_add_u32 v{VTA+idx}, {73728}, v2")
        g(f"v_add_u32 v{VTA+4+idx}, {73728+65536}, v2")

    def reads(kk):
        b = kk & 1
        off = QBLK(kk) - 73728
        st = 0
        if off >= 65536:
            off -= 65536; st = 1
        for m in range(2):
            for jh in range(2):
                g(f"ds_read_b64_tr_b16 {vr(AB[b]+m*4+jh*2,2)}, v{VTA+st*4+m*2+jh} offset:{off}")
        for rt in range(2):
            for m in range(2):
                g(f"ds_read_b128 {vr(BB[b]+(rt*2+m)*4,4)}, v{VBA+(kk&1)*2+m} offset:{XH + rt*36864 + (kk>>1)*128}")
    def mfmas(kk):
        b = kk & 1
        for m in range(2):
            for rt in range(2):
                c = "0" if (kk == 0 and m == 0) else vr(QA[rt], 16)
                g(f"v_mfma_f32_32x32x16_bf16 {vr(QA[rt],16)}, {vr(AB[b]+m*4,4)}, {vr(BB[b]+(rt*2+m)*4,4)}, {c}")
    reads(0)
    for kk in range(18):
        if kk == 16:
            g("s_waitcnt lgkmcnt(0)")
            g("s_barrier")
        if kk < 17:
            reads(kk + 1)
            g("s_waitcnt lgkmcnt(8)")
        else:
            g("s_waitcnt lgkmcnt(0)")
        mfmas(kk)
        if kk == 0:
            g("s_barrier")
    g("s_nop 15")
    g("s_nop 3")
    T = A_T
    g("v_and_b32 v2, 31, v1")
    g("v_lshrrev_b32 v3, 4, v2")
    g("v_mul_u32_u24 v3, 608, v3")
    g("v_bfe_u32 v4, v2, 2, 1")
    g("v_mul_u32_u24 v4, 304, v4")
    g("v_add3_u32 v3, v3, v4, 0")
    g("v_and_b32 v4, 3, v2")
    g("v_lshl_add_u32 v3, v4, 1, v3")
    g("v_bfe_u32 v4, v2, 3, 1")
    g("v_lshl_add_u32 v3, v4, 3, v3")
    g("v_add_u32 v3, 1152, v3")
    g("v_lshlrev_b32 v4, 4, v2")
    g("v_lshlrev_b32 v5, 2, v2")
    g(f"s_mul_i32 s9, s{S_RB}, {CHUNK_B}")
    aux = " sc0 sc1" if opts.get("inkernel") else ""
    Lw1, Lw2, Lw3, Lpd = g.new("pub1"), g.new("pub2"), g.new("pub3"), g.new("pubdone")
    if opts.get("publish", True):
        g(f"s_cmp_lg_u32 s{S_W4}, 0")
        g(f"s_cbranch_scc1 {Lw1}")
        g(f"s_bfe_u32 s10, s{S_FS}, 0x10001")
        g("s_lshl_b32 s10, s10, 9")
        g(f"s_and_b32 s11, s{S_FS}, 1")
        g("s_lshl_b32 s11, s11, 2")
        g("s_add_u32 s10, s10, s11")
        g(f"s_lshr_b32 s11, s{S_FS}, 2")
        g("s_lshl_b32 s11, s11, 3")
        g("s_add_u32 s10, s10, s11")
        g("s_add_u32 s10, s10, s9")
        g(f"s_mov_b64 exec, s[{S_HI}:{S_HI+1}]")
        for rt in range(2):
            g(f"v_cvt_pk_bf16_f32 v{T+rt}, v{QA[rt]+8}, v{QA[rt]+9}")
            g(f"buffer_store_dword v{T+rt}, v4, {sr(SRD_WS)}, s10 offen offset:{rt*TILE_B}{aux}")
        g("s_mov_b64 exec, -1")
        g(f"s_branch {Lpd}")
        g.label(Lw1)
        g(f"s_cmp_lg_u32 s{S_W4}, 1")
        g(f"s_cbranch_scc1 {Lw2}")
        g(f"s_lshl_b32 s10, s{S_FS}, 5")
        g("s_add_u32 s10, s10, s9")
        g(f"s_mov_b64 exec, s[{S_HI}:{S_HI+1}]")
        for rt in range(2):
            g(f"v_cvt_pk_bf16_f32 v{T+rt}, v{QA[rt]+10}, v{QA[rt]+11}")
            g(f"buffer_store_short v{T+rt}, v3, {sr(SRD_WS)}, s10 offen offset:{rt*TILE_B}{aux}")
            g(f"buffer_store_short_d16_hi v{T+rt}, v3, {sr(SRD_WS)}, s10 offen offset:{rt*TILE_B+16}{aux}")
        g("s_mov_b64 exec, -1")
        g(f"s_branch {Lpd}")
        g.label(Lw2)
        g(f"s_cmp_lg_u32 s{S_W4}, 2")
        g(f"s_cbranch_scc1 {Lw3}")
        g(f"s_cmp_lg_u32 s{S_FS}, 0")
        g(f"s_cbranch_scc1 {Lpd}")
        g(f"s_mov_b64 exec, s[{S_LO}:{S_LO+1}]")
        for rt in range(2):
            g(f"v_cvt_pk_bf16_f32 v{T+rt}, v{QA[rt]+12}, v{QA[rt]+13}")
            g(f"buffer_store_dword v{T+rt}, v5, {sr(SRD_WS)}, s9 offen offset:{rt*TILE_B+1024}{aux}")
        g("s_mov_b64 exec, -1")
        g(f"s_branch {Lpd}")
        g.label(Lw3)
        g(f"s_cmp_lg_u32 s{S_FS}, 1")
        g(f"s_cbranch_scc1 {Lpd}")
        g(f"s_mov_b64 exec, s[{S_LO}:{S_LO+1}]")
        g(f"v_mov_b32 v{T+2}, 0x3f80")
        for rt in range(2):
            g(f"v_cvt_pk_bf16_f32 v{T+rt}, v{QA[rt]+14}, v{QA[rt]+15}")
            g(f"buffer_store_short v{T+rt}, v3, {sr(SRD_WS)}, s9 offen offset:{rt*TILE_B+256}{aux}")
            g(f"buffer_store_short_d16_hi v{T+rt}, v3, {sr(SRD_WS)}, s9 offen offset:{rt*TILE_B+272}{aux}")
            g(f"buffer_store_short v{T+2}, v3, {sr(SRD_WS)}, s9 offen offset:{rt*TILE_B+288}{aux}")
        g("s_mov_b64 exec, -1")
    g.label(Lpd)
    g(f"s_mov_b32 s9, {f32bits(CSCALE)}")
    for rt in range(2):
        for r in range(12):
            g(f"v_mul_f32 v{QA[rt]+r}, s9, v{QA[rt]+r}")
    Lodd, Lqd = g.new("odd"), g.new("qdone")
    g(f"s_bitcmp1_b32 s{S_W4}, 0")
    g(f"s_cbranch_scc1 {Lodd}")
    for rt in range(2):
        for p in range(4):
            g(f"v_cvt_pk_bf16_f32 v{A_Q1[rt]+p}, v{QA[rt]+2*p}, v{QA[rt]+2*p+1}")
        g(f"v_cvt_pk_bf16_f32 v{T}, v{QA[rt]+8}, v{QA[rt]+9}")
        g(f"v_cndmask_b32 v{A_Q2[rt]}, 0, v{T}, s[{S_LO}:{S_LO+1}]")
    g(f"s_branch {Lqd}")
    g.label(Lodd)
    for rt in range(2):
        q = QA[rt]
        g(f"v_cvt_pk_bf16_f32 v{T}, v{q+0}, v{q+1}")
        g(f"v_cvt_pk_bf16_f32 v{A_Q1[rt]}, v{q+2}, v{q+3}")
        g(f"v_cvt_pk_bf16_f32 v{T+1}, v{q+4}, v{q+5}")
        g(f"v_cvt_pk_bf16_f32 v{A_Q1[rt]+2}, v{q+6}, v{q+7}")
        g(f"v_cvt_pk_bf16_f32 v{T+3}, v{q+8}, v{q+9}")
        g(f"v_cvt_pk_bf16_f32 v{T+4}, v{q+10}, v{q+11}")
        g(f"v_mov_b32 v{T+2}, v{T+1}")
        g("s_nop 1")
        g(f"v_permlane32_swap_b32 v{T}, v{T+1}")
        g(f"v_permlane32_swap_b32 v{T+2}, v{T+3}")
        g("s_nop 1")
        g(f"v_cndmask_b32 v{A_Q1[rt]+1}, v{T}, v{T+1}, s[{S_LO}:{S_LO+1}]")
        g(f"v_cndmask_b32 v{A_Q1[rt]+3}, v{T+2}, v{T+3}, s[{S_LO}:{S_LO+1}]")
        g(f"v_cndmask_b32 v{A_Q2[rt]}, 0, v{T+4}, s[{S_LO}:{S_LO+1}]")
    g.label(Lqd)
    for rt in range(2):
        for p in range(1, 4):
            g(f"v_mov_b32 v{A_Q2[rt]+p}, 0")


from gen_attn import attention
from gen_ffn import ffn


def main_kernel(name, opts):
    g = G()
    prologue(g, opts)
    Lf = g.new("fwaves")
    g(f"s_cmp_ge_u32 s{S_WV}, 4")
    g(f"s_cbranch_scc1 {Lf}")
    qkv_phase(g, opts)
    if opts.get("dumpq"):
        g("s_lshl_b32 s9, s2, 2")
        g(f"s_add_u32 s9, s9, s{S_W4}")
        g("s_mul_i32 s9, s9, 4096")
        g(f"s_add_u32 s9, s9, {WS_DBG}")
        g("v_lshlrev_b32 v2, 2, v1")
        for rt in range(2):
            for p in range(4):
                g(f"buffer_store_dword v{A_Q1[rt]+p}, v2, {sr(SRD_WS)}, s9 offen offset:{(rt*8+p)*256}")
                g(f"buffer_store_dword v{A_Q2[rt]+p}, v2, {sr(SRD_WS)}, s9 offen offset:{(rt*8+4+p)*256}")
    if opts.get("kvonly"):
        g("s_waitcnt vmcnt(0)")
        g("s_branch L_end")
    else:
        attention(g, opts, sys.modules[__name__])
        g("s_branch L_end")
    g.label(Lf)
    g("s_barrier")
    Ls = g.new("nob17")
    g(f"s_cmp_lg_u32 s{S_WV}, 4")
    g(f"s_cbranch_scc1 {Ls}")
    g(f"s_mul_i32 s10, s{S_FS}, 144")
    g("s_mov_b32 s11, 17")
    g(f"s_mov_b32 s12, {QBLK(17)}")
    qkv_block_dma(g)
    g("s_waitcnt vmcnt(0)")
    g.label(Ls)
    if opts.get("kvonly"):
        g("s_barrier")
    else:
        ffn(g, opts, sys.modules[__name__])
    g.label("L_end")
    g("s_endpgm")
    txt = g.text().replace("L_", f"L{opts['tag']}_")
    return f"""
.globl {name}
.p2align 8
.type {name},@function
{name}:
{txt}
"""


def reduce_kernel(name):
    g = G()
    g("s_cmp_ge_u32 s2, 576")
    g("s_cbranch_scc1 LR_end")
    g("s_load_dwordx2 s[16:17], s[0:1], 0")
    g("s_load_dwordx2 s[18:19], s[0:1], 72")
    g("s_load_dwordx2 s[20:21], s[0:1], 80")
    g("s_load_dwordx2 s[22:23], s[0:1], 96")
    g("v_and_b32 v1, 63, v0")
    g("v_lshrrev_b32 v2, 6, v0")
    g("s_nop 0")
    g("v_readfirstlane_b32 s3, v2")
    g("s_lshl_b32 s4, s2, 2")
    g("s_add_u32 s4, s4, s3")
    g("s_mul_i32 s5, s4, 3641")
    g("s_lshr_b32 s5, s5, 16")
    g("s_mul_i32 s6, s5, 18")
    g("s_sub_u32 s6, s4, s6")
    g("s_lshr_b32 s7, s5, 2")
    g("s_and_b32 s8, s5, 3")
    g("s_waitcnt lgkmcnt(0)")
    srd(g, 24, 16, 2359296)
    srd(g, 28, 18, 1152)
    srd(g, 32, 20, 2359296)
    srd(g, 36, 22, WS_SIZE)
    g("s_mul_i32 s9, s7, 589824")
    g("s_mul_i32 s10, s8, 18")
    g("s_add_u32 s10, s10, s6")
    g("s_lshl_b32 s10, s10, 10")
    g("s_add_u32 s9, s9, s10")
    g(f"s_add_u32 s9, s9, {WS_PART}")
    g("v_lshlrev_b32 v2, 4, v1")
    for fs in range(8):
        g(f"buffer_load_dwordx4 {vr(8+4*fs,4)}, v2, s[36:39], s9 offen")
        if fs < 7:
            g("s_add_u32 s9, s9, 73728")
    g("s_lshr_b32 s10, s6, 1")
    g("s_and_b32 s11, s6, 1")
    g("s_mul_i32 s12, s8, 288")
    g("s_lshl_b32 s10, s10, 5")
    g("s_add_u32 s12, s12, s10")
    g("v_lshrrev_b32 v3, 4, v1")
    g("v_lshlrev_b32 v3, 3, v3")
    g("v_add_u32 v3, s12, v3")
    g("s_lshl_b32 s13, s7, 1")
    g("s_add_u32 s13, s13, s11")
    g("s_mul_i32 s13, s13, 36864")
    g("v_and_b32 v4, 15, v1")
    g("v_mul_u32_u24 v4, 1152, v4")
    g("v_add_u32 v4, v4, v3")
    g("s_add_u32 s14, s13, 18432")
    g("buffer_load_dwordx2 v[40:41], v3, s[28:31], 0 offen")
    g("buffer_load_dwordx2 v[42:43], v4, s[24:27], s13 offen")
    g("buffer_load_dwordx2 v[44:45], v4, s[24:27], s14 offen")
    g("s_waitcnt vmcnt(0)")
    def unpack(dst, src):
        g(f"v_lshlrev_b32 v{dst}, 16, v{src}")
        g(f"v_and_b32 v{dst+1}, 0xffff0000, v{src}")
    for d in range(4):
        unpack(48 + 2 * d, 8 + d)
    for fs in range(1, 8):
        for d in range(4):
            unpack(56, 8 + 4 * fs + d)
            g(f"v_pk_add_f32 {vr(48+2*d,2)}, {vr(48+2*d,2)}, v[56:57]")
    for d in range(4):
        unpack(56, 40 + (d & 1))
        g(f"v_pk_add_f32 {vr(48+2*d,2)}, {vr(48+2*d,2)}, v[56:57]")
        unpack(56, 42 + d)
        g(f"v_pk_add_f32 {vr(48+2*d,2)}, {vr(48+2*d,2)}, v[56:57]")
    for d in range(4):
        g(f"v_cvt_pk_bf16_f32 v{60+d}, v{48+2*d}, v{49+2*d}")
    g("buffer_store_dwordx2 v[60:61], v4, s[32:35], s13 offen")
    g("buffer_store_dwordx2 v[62:63], v4, s[32:35], s14 offen")
    g.label("LR_end")
    g("s_endpgm")
    for u in range(2304):
        assert (u * 3641) >> 16 == u // 18
    return f"""
.globl {name}
.p2align 8
.type {name},@function
{name}:
{g.text()}
"""


def kd(name, vgpr, sgpr=100):
    return f"""
.p2align 6
.amdhsa_kernel {name}
  .amdhsa_next_free_vgpr {vgpr}
  .amdhsa_next_free_sgpr {sgpr}
  .amdhsa_accum_offset {vgpr}
  .amdhsa_group_segment_fixed_size 0
  .amdhsa_kernarg_size 104
  .amdhsa_user_sgpr_count 2
  .amdhsa_user_sgpr_kernarg_segment_ptr 1
  .amdhsa_system_sgpr_workgroup_id_x 1
.end_amdhsa_kernel
"""


def build(mode):
    hdr = []
    body = []
    kds = []
    def add(name, code, grid, block, lds, vgpr):
        hdr.append(f"; @launch kernel={name} grid=({grid},1,1) block=({block},1,1) lds={lds}")
        body.append(code)
        kds.append(kd(name, vgpr))
    if mode == "kvtest":
        add("kv_kernel", main_kernel("kv_kernel", dict(kvonly=True, dumpq=True, tag="K")), 256, 512, LDS_SIZE, 256)
    else:
        o = dict(tag="M", publish=False)
        for m in mode.split(","):
            if m: o[m] = True
        add("kv_kernel", main_kernel("kv_kernel", dict(kvonly=True, tag="K")), 256, 512, LDS_SIZE, 256)
        add("main_kernel", main_kernel("main_kernel", o), 256, 512, LDS_SIZE, 256)
        add("reduce_kernel", reduce_kernel("reduce_kernel"), 576, 256, 0, 64)
    out = "\n".join(hdr) + '\n.amdgcn_target "amdgcn-amd-amdhsa--gfx950"\n.text\n' + "\n".join(body) + '\n.section .rodata,"a"\n' + "\n".join(kds)
    return out


if __name__ == "__main__":
    mode = sys.argv[1]
    open(sys.argv[2], "w").write(build(mode))
```

```python
def attention(g, opts, M):
    if opts.get("noattn"):
        return
    vr, sr = M.vr, M.sr
    S_RB, S_FS, S_WV, S_W4, S_LO = M.S_RB, M.S_FS, M.S_WV, M.S_W4, M.S_LO
    Q1, Q2, S, P, O, KV = M.A_Q1, M.A_Q2, M.A_S, M.A_P, M.A_O, M.A_KV
    AM, AK1, AK2, AV = M.A_M, M.A_AK1, M.A_AK2, M.A_AV
    AFL, FLD, FLW, DV, T, FV = M.A_AFL, M.A_FLD, M.A_FLW, M.A_DV0, M.A_T, M.A_FV
    S_C, S_THR, S_DOFF, S_M0B, S_LT = 84, 85, 86, 87, 88
    S_CK = [90, 92]
    LO = f"s[{S_LO}:{S_LO+1}]"
    CH, TB = M.CHUNK_B, M.TILE_B
    ldaux = " sc1" if opts.get("inkernel") else ""

    g("v_and_b32 v2, 31, v1")
    g("v_lshrrev_b32 v3, 5, v1")
    g(f"v_lshlrev_b32 v4, 4, v1")
    g(f"v_add_u32 v{AK1}, {M.KVR}, v4")
    g(f"v_lshlrev_b32 v4, 2, v2")
    g(f"v_add_u32 v{AK2}, {M.KVR + 1024}, v4")
    g("v_min_u32 v4, 19, v2")
    g("v_cmp_eq_u32 vcc, 22, v2")
    g("s_nop 1")
    g("v_cndmask_b32 v4, v4, 18, vcc")
    g("v_lshlrev_b32 v4, 4, v4")
    g(f"v_mul_u32_u24 v5, {M.VG_B}, v3")
    g("v_add_u32 v4, v4, v5")
    g(f"v_add_u32 v{AV}, {M.KVR + 1152}, v4")
    g(f"s_mul_i32 s9, s{S_W4}, {76*16}")
    g(f"v_lshlrev_b32 v4, 4, v1")
    g(f"v_add_u32 v{DV}, s9, v4")
    g(f"s_add_u32 s{S_M0B}, s9, {M.KVR}")
    g(f"s_mov_b32 s{S_LT}, {M.f32bits(M.LTHR) if not opts.get('norare') else 0x7f800000}")
    for st in range(2):
        for u in range(2):
            b = KV(st, u)
            g(f"v_mov_b32 v{b+5}, 0x3f803f80")
            g(f"v_mov_b32 v{b+6}, 0x3f80")
            g(f"v_mov_b32 v{b+7}, 0")
    for r in range(4):
        g(f"v_mov_b32 v{KV(1,1)+12+r}, 0")
    for rt in range(2):
        for r in range(16):
            g(f"v_mov_b32 v{O[rt]+r}, 0")
        for r in range(8):
            g(f"v_mov_b32 v{P[rt]+r}, 0")

    def dma(slot):
        return [[f"s_add_u32 m0, s{S_M0B}, {slot*CH}", "s_nop 0",
                 f"buffer_load_dwordx4 v{DV}, {sr(M.SRD_WS)}, s{S_DOFF} offen{ldaux} lds"],
                ["s_mov_b64 exec, 0xfff",
                 f"buffer_load_dwordx4 v{DV}, {sr(M.SRD_WS)}, s{S_DOFF} offen offset:1024{ldaux} lds",
                 "s_mov_b64 exec, -1",
                 f"s_add_u32 s{S_DOFF}, s{S_DOFF}, {CH}"]]
    def frag_reads(slot, st):
        ops = []
        for u in range(2):
            b = KV(st, u)
            off = slot * CH + u * TB
            ops.append([f"ds_read_b128 {vr(b,4)}, v{AK1} offset:{off}"])
            ops.append([f"ds_read_b32 v{b+4}, v{AK2} offset:{off}"])
            ops.append([f"ds_read_b128 {vr(b+8,4)}, v{AV} offset:{off}"])
            ops.append([f"ds_read_b128 {vr(b+12,4)}, v{AV} offset:{off+M.VH_B}"])
        return ops
    def emit(ops):
        for o in ops:
            for l in o:
                g(l)
    def set_mref(rt):
        g(f"v_sub_f32 v{T}, 0, v{AM[rt]}")
        g(f"v_and_b32 v{T+1}, 0xffff0000, v{T}")
        g(f"v_sub_f32 v{T}, v{T}, v{T+1}")
        g(f"v_and_b32 v{T+2}, 0xffff0000, v{T}")
        g(f"v_sub_f32 v{T}, v{T}, v{T+2}")
        g(f"v_lshrrev_b32 v{T+1}, 16, v{T+1}")
        g(f"v_or_b32 v{T+1}, v{T+1}, v{T+2}")
        g(f"v_lshrrev_b32 v{T}, 16, v{T}")
        g(f"v_cndmask_b32 v{Q2[rt]+1}, 0, v{T+1}, {LO}")
        g(f"v_cndmask_b32 v{Q2[rt]+2}, 0, v{T}, {LO}")
    def qk1(rt, kb):
        return f"v_mfma_f32_32x32x16_bf16 {vr(S[rt],16)}, {vr(kb,4)}, {vr(Q1[rt],4)}, 0"
    def qk2(rt, kb):
        return f"v_mfma_f32_32x32x16_bf16 {vr(S[rt],16)}, {vr(kb+4,4)}, {vr(Q2[rt],4)}, {vr(S[rt],16)}"
    def pva(rt, kb):
        return f"v_mfma_f32_32x32x16_bf16 {vr(O[rt],16)}, {vr(kb+8,4)}, {vr(P[rt],4)}, {vr(O[rt],16)}"
    def pvb(rt, kb):
        return f"v_mfma_f32_32x32x16_bf16 {vr(O[rt],16)}, {vr(kb+12,4)}, {vr(P[rt]+4,4)}, {vr(O[rt],16)}"

    g(f"v_mov_b32 v{FV}, 2")
    g("s_waitcnt vmcnt(0)")
    M.stamp(g, opts, 8)
    g(f"ds_write_b32 v{FLW}, v{FV}")
    if opts.get("inkernel"):
        M.global_kv_sync(g, opts)
    else:
        M.flag_wait(g, AFL, FLD, 2, "ka")
    M.stamp(g, opts, 7)
    g("s_setprio 2")
    if not opts.get("nopf"):
        g("s_lshr_b32 s9, s2, 3")
        g(f"s_mul_i32 s9, s9, {CH}")
        g(f"s_lshl_b32 s10, s{S_W4}, 10")
        g("s_add_u32 s9, s9, s10")
        g(f"s_add_u32 s9, s9, {M.WS_KV}")
        g("v_and_b32 v4, 31, v1")
        g("v_lshlrev_b32 v4, 6, v4")
        g(f"buffer_load_dword v5, v4, {sr(M.SRD_WS)}, s9 offen{ldaux}")
    g(f"s_mov_b32 s{S_DOFF}, {M.WS_KV}")
    for c in range(3):
        emit(dma(c))
    g("s_waitcnt vmcnt(4)")
    g(f"v_mov_b32 v{FV}, 3")
    g(f"ds_write_b32 v{FLW}, v{FV}")
    M.flag_wait(g, AFL, FLD, 3, "kb")
    emit(frag_reads(0, 0))
    g("s_waitcnt lgkmcnt(0)")
    M.stamp(g, opts, 4)
    for u in range(2):
        for rt in range(2):
            g(qk1(rt, KV(0, u)))
            g(qk2(rt, KV(0, u)))
        g("s_nop 15")
        g("s_nop 3")
        for rt in range(2):
            s = S[rt]
            t = T + 10 + rt
            if u == 0:
                g(f"v_max_f32 v{t}, v{s}, v{s+15}")
            else:
                g(f"v_max3_f32 v{t}, v{t}, v{s}, v{s+15}")
            for r in range(1, 15, 2):
                g(f"v_max3_f32 v{t}, v{t}, v{s+r}, v{s+r+1}")
    for rt in range(2):
        t = T + 10 + rt
        g(f"v_mov_b32 v{T+1}, v{t}")
        g("s_nop 1")
        g(f"v_permlane32_swap_b32 v{t}, v{T+1}")
        g("s_nop 1")
        g(f"v_max_f32 v{T}, v{t}, v{T+1}")
        g(f"v_ceil_f32 v{T}, v{T}")
        g(f"v_add_f32 v{AM[rt]}, {M.f32bits(float(M.HEAD))}, v{T}")
        set_mref(rt)
    g("s_nop 1")
    g(qk1(0, KV(0, 0)))
    g(qk2(0, KV(0, 0)))
    g("s_nop 15")
    M.stamp(g, opts, 5)
    M.cstamp(g, opts, 11)
    g("s_mov_b32 s94, 0")
    g(f"s_mov_b32 s{S_C}, 0")
    g(f"s_mov_b32 s{S_THR}, 4")

    rare = []

    def half_iter(pos6, q, extra, shadow=()):
        st = pos6 & 1
        rt = q & 1
        u = q >> 1
        if q < 3:
            nst, nu, nrt = st, (q + 1) >> 1, (q + 1) & 1
        else:
            nst, nu, nrt = st ^ 1, 0, 0
        if q > 0:
            pst, pu, prt = st, (q - 1) >> 1, (q - 1) & 1
        else:
            pst, pu, prt = st ^ 1, 1, 1
        s, p = S[rt], P[rt]
        valu = []
        for grp in range(4):
            for r in range(4):
                valu.append(f"v_exp_f32 v{s+4*grp+r}, v{s+4*grp+r}")
            valu.append(f"v_cvt_pk_bf16_f32 v{p+2*grp}, v{s+4*grp}, v{s+4*grp+1}")
            valu.append(f"v_cvt_pk_bf16_f32 v{p+2*grp+1}, v{s+4*grp+2}, v{s+4*grp+3}")
        mf = {0: qk1(nrt, KV(nst, nu)), 6: qk2(nrt, KV(nst, nu)), 12: pvb(prt, KV(pst, pu)), 18: pva(rt, KV(st, u))}
        sh = list(shadow)
        for i in range(24):
            for l in extra.get(i, []):
                g(l)
            if i in mf:
                g(mf[i])
            g(valu[i])
            if valu[i].startswith("v_exp") and sh and sh[0][0] <= i:
                x = sh.pop(0)[1]
                for l in (x if isinstance(x, list) else [x]):
                    g(l)
        assert not sh, sh

    def rare_block(rt, kb, Lr, Lback):
        b = []
        b.append(f"{Lr}:")
        L = M.G()
        L(pvb(rt, kb))
        L("s_nop 15")
        L("s_nop 3")
        L(f"v_frexp_exp_i32_f32 v{T+3}, v{O[rt]+10}")
        L(f"v_add_u32 v{T+3}, {M.HEAD}, v{T+3}")
        L(f"v_max_i32 v{T+3}, 0, v{T+3}")
        L(f"v_cvt_f32_i32 v{T+4}, v{T+3}")
        L(f"v_sub_u32 v{T+3}, 0, v{T+3}")
        L(f"v_add_f32 v{AM[rt]}, v{AM[rt]}, v{T+4}")
        for r in range(11):
            L(f"v_ldexp_f32 v{O[rt]+r}, v{O[rt]+r}, v{T+3}")
        for r in range(4):
            L(f"v_mov_b32 v{P[rt]+4+r}, 0")
        old = g.lines
        g.lines = L.lines
        set_mref(rt)
        if opts.get("dbgrare"):
            g(f"s_add_u32 s95, s95, 1")
        g("s_nop 1")
        g(f"s_branch {Lback}")
        g.lines = old
        rare.append("\n".join(b + L.lines))

    Lloop, Lexit = g.new("aloop"), g.new("aexit")
    if opts.get("dbgrare"):
        g("s_mov_b32 s95, 0")
    g.label(Lloop)
    for pos6 in range(6):
        st = pos6 & 1
        g.c(f"==== chunk pos {pos6}")
        Lspin, Lback = g.new("aspin"), g.new("aback")
        ex = {}
        sh = [(1, "s_waitcnt vmcnt(2)"), (2, f"v_mov_b32 v{FV}, s{S_THR}"), (3, f"ds_write_b32 v{FLW}, v{FV}"),
              (19, f"ds_read_b32 v{FLD}, v{AFL}")]
        if opts.get("nosync") or opts.get("noflag"): sh = []
        half_iter(pos6, 0, ex, sh)
        fr = [x[0] for x in frag_reads((pos6 + 1) % 3, st ^ 1)]
        sh = [(6, "s_waitcnt lgkmcnt(0)"), (7, f"v_cmp_gt_u32 vcc, s{S_THR}, v{FLD}"),
              (12, [f"s_cbranch_vccnz {Lspin}", f"{Lback}:"]),
              (13, fr[0]), (14, fr[1]), (15, fr[4]), (18, fr[5]), (19, fr[2]), (20, fr[3]), (21, fr[6])]
        if opts.get("nosync"): sh = [(12, f"{Lback}:")]
        if opts.get("noflag"): sh = [(12, f"{Lback}:")] + sh[3:]
        if opts.get("noreads"): sh = sh[:3]
        ex = {}
        if st == 0:
            ex[17] = [f"v_cmp_lt_f32 s[{S_CK[1]}:{S_CK[1]+1}], s{S_LT}, v{O[1]+10}"]
        half_iter(pos6, 1, ex, sh)
        rare.append("\n".join([f"{Lspin}:", f"    ds_read_b32 v{FLD}, v{AFL}", "    s_waitcnt lgkmcnt(0)",
                               f"    v_cmp_gt_u32 vcc, s{S_THR}, v{FLD}", "    s_nop 4",
                               "    s_add_u32 s94, s94, 1", f"    s_cbranch_vccz {Lback}", "    s_sleep 1", f"    s_branch {Lspin}"]))
        ex = {}
        if st == 0:
            Lr, Lb = g.new("rare1"), g.new("rback1")
            ex[0] = [f"s_cmp_lg_u64 s[{S_CK[1]}:{S_CK[1]+1}], 0", f"s_cbranch_scc1 {Lr}", f"{Lb}:"]
            rare_block(1, KV(0, 0), Lr, Lb)
            ex[17] = [f"v_cmp_lt_f32 s[{S_CK[0]}:{S_CK[0]+1}], s{S_LT}, v{O[0]+10}"]
        slot = pos6 % 3
        sh = [(0, fr[7]), (1, f"s_add_u32 m0, s{S_M0B}, {slot*CH}"),
              (2, f"buffer_load_dwordx4 v{DV}, {sr(M.SRD_WS)}, s{S_DOFF} offen{ldaux} lds"),
              (7, ["s_mov_b64 exec, 0xfff",
                   f"buffer_load_dwordx4 v{DV}, {sr(M.SRD_WS)}, s{S_DOFF} offen offset:1024{ldaux} lds",
                   "s_mov_b64 exec, -1"]),
              (9, f"s_add_u32 s{S_DOFF}, s{S_DOFF}, {CH}")]
        if opts.get("nosync"): sh = []
        if opts.get("nodma"): sh = sh[:1]
        if opts.get("nodma2"): sh = sh[:3] + sh[4:]
        if opts.get("noreads"): sh = sh[1:]
        half_iter(pos6, 2, ex, sh)
        ex = {0: ["s_waitcnt lgkmcnt(0)"]}
        if st == 0:
            Lr, Lb = g.new("rare0"), g.new("rback0")
            ex[0] = ex[0] + [f"s_cmp_lg_u64 s[{S_CK[0]}:{S_CK[0]+1}], 0", f"s_cbranch_scc1 {Lr}", f"{Lb}:"]
            rare_block(0, KV(0, 1), Lr, Lb)
        sh = [(13, f"s_add_u32 s{S_THR}, s{S_THR}, 1")]
        if pos6 == 1:
            sh.append((14, f"s_cmp_eq_u32 s{S_THR}, 36"))
        half_iter(pos6, 3, ex, sh)
        if pos6 == 1:
            g(f"s_cbranch_scc1 {Lexit}")
    g(f"s_branch {Lloop}")
    for r in rare:
        g.lines.append(r)
    g.label(Lexit)
    g("s_nop 1")
    g(pvb(1, KV(1, 1)))
    g("s_setprio 0")
    M.stamp(g, opts, 6)
    M.cstamp(g, opts, 12)
    if opts.get("stamp"):
        g("v_writelane_b32 v254, s94, 10")
    g("s_waitcnt vmcnt(0) lgkmcnt(0)")
    g(f"v_mov_b32 v{FV}, 100")
    g(f"ds_write_b32 v{FLW}, v{FV}")
    g("s_nop 7")
    g("s_nop 7")
    if opts.get("dbgrare"):
        g("s_lshl_b32 s9, s2, 2")
        g(f"s_add_u32 s9, s9, s{S_W4}")
        g("s_lshl_b32 s9, s9, 2")
        g(f"s_add_u32 s9, s9, {M.WS_DBG}")
        g("v_mov_b32 v2, 0")
        g("v_mov_b32 v3, s95")
        g(f"buffer_store_dword v3, v2, {sr(M.SRD_WS)}, s9 offen")
    g("s_movk_i32 s9, 0x207")
    g("s_mov_b64 s[90:91], 0")
    the_slow = opts.get("slow", True)
    for rt in range(2):
        Lok = g.new("fin_ok")
        g("s_mov_b64 s[90:91], 0")
        for r in range(11):
            g(f"v_cmp_class_f32 vcc, v{O[rt]+r}, s9")
            g("s_or_b64 s[90:91], s[90:91], vcc")
        if opts.get("forceslow"):
            g("s_mov_b64 s[90:91], -1")
        g("s_cmp_eq_u64 s[90:91], 0")
        g(f"s_cbranch_scc1 {Lok}")
        slow_path(g, opts, M, rt, set_mref, qk1, qk2, pva, pvb)
        g.label(Lok)
    g("v_and_b32 v2, 31, v1")
    g("v_lshrrev_b32 v3, 5, v1")
    g(f"v_mul_u32_u24 v4, {M.OSTR}, v2")
    g(f"v_add_u32 v4, {M.OREG}, v4")
    g(f"s_mul_i32 s9, s{S_W4}, 18")
    g("v_lshlrev_b32 v5, 2, v3")
    g("v_add_u32 v5, s9, v5")
    AD = 8
    for p, dd in enumerate((0, 2, 8, 10, 16)):
        g(f"v_add_u32 v6, {dd}, v5")
        g("v_lshrrev_b32 v7, 5, v6")
        g(f"v_lshl_add_u32 v{AD+p}, v7, 6, v4")
        g("v_bfe_u32 v7, v6, 2, 2")
        g(f"v_lshl_add_u32 v{AD+p}, v7, 4, v{AD+p}")
        g("v_bfe_u32 v7, v6, 4, 1")
        g(f"v_lshl_add_u32 v{AD+p}, v7, 3, v{AD+p}")
        g("v_and_b32 v7, 3, v6")
        g(f"v_lshl_add_u32 v{AD+p}, v7, 1, v{AD+p}")
    g("v_and_b32 v6, 15, v1")
    g(f"s_lshl_b32 s9, s{S_W4}, 4")
    g("v_add_u32 v6, s9, v6")
    g(f"v_mul_u32_u24 v6, {M.OSTR}, v6")
    g(f"v_add_u32 v6, {M.OREG + 128}, v6")
    g("v_lshrrev_b32 v7, 4, v1")
    g("v_lshl_add_u32 v13, v7, 4, 16")
    g("v_add_u32 v14, 8, v13")
    g("v_cmp_eq_u32 vcc, 0, v7")
    g("v_cmp_eq_u32 s[92:93], 3, v7")
    g("s_nop 1")
    g("s_or_b64 vcc, vcc, s[92:93]")
    g("s_nop 1")
    g("v_cndmask_b32 v13, v13, 8, vcc")
    g("v_cndmask_b32 v14, v14, 24, vcc")
    g("v_add_u32 v13, v13, v6")
    g("v_add_u32 v14, v14, v6")
    g("v_mov_b32 v6, 0")
    g("v_mov_b32 v7, 0")
    for rt in range(2):
        o = O[rt]
        g(f"v_rcp_f32 v{T}, v{o+10}")
        g("s_nop 0")
        for r in range(10):
            g(f"v_mul_f32 v{o+r}, v{o+r}, v{T}")
        for p in range(5):
            g(f"v_cvt_pk_bf16_f32 v{o+p}, v{o+2*p}, v{o+2*p+1}")
    M.flag_wait(g, AFL, FLD, 100, "kend")
    g("ds_write_b64 v13, v[6:7]")
    g("ds_write_b64 v14, v[6:7]")
    for rt in range(2):
        o = O[rt]
        for p in range(4):
            g(f"ds_write_b32 v{AD+p}, v{o+p} offset:{rt*32*M.OSTR}")
        g(f"s_mov_b64 exec, {LO}")
        g(f"ds_write_b32 v{AD+4}, v{o+4} offset:{rt*32*M.OSTR}")
        g("s_mov_b64 exec, -1")
    g("s_waitcnt lgkmcnt(0)")
    g(f"v_add_u32 v{FLW}, {M.F_O - M.F_KV}, v{FLW}")
    g(f"v_mov_b32 v{FV}, 1")
    g(f"ds_write_b32 v{FLW}, v{FV}")
    g("s_waitcnt lgkmcnt(0)")


def slow_path(g, opts, M, rt, set_mref, qk1, qk2, pva, pvb):
    vr, sr = M.vr, M.sr
    Q1, Q2, S, P, O, KV = M.A_Q1, M.A_Q2, M.A_S, M.A_P, M.A_O, M.A_KV
    AM, AK1, AK2, AV, T = M.A_M, M.A_AK1, M.A_AK2, M.A_AV, M.A_T
    ldaux = " sc1" if opts.get("inkernel") else ""
    kb = KV(0, 0)
    s, p, o = S[rt], P[rt], O[rt]
    G1, G2, G3 = T + 6, T + 7, T + 8
    g(f"v_subrev_u32 v{G1}, {M.KVR}, v{AK1}")
    g(f"v_subrev_u32 v{G2}, {M.KVR}, v{AK2}")
    g(f"v_subrev_u32 v{G3}, {M.KVR}, v{AV}")
    for r in range(16):
        g(f"v_mov_b32 v{o+r}, 0")
    g(f"v_mov_b32 v{AM[rt]}, {M.f32bits(-8388608.0)}")
    g(f"s_mov_b32 s10, {M.WS_KV}")
    g("s_mov_b32 s11, 0")
    L, Lno = g.new("slow"), g.new("slownors")
    g.label(L)
    g(f"buffer_load_dwordx4 {vr(kb,4)}, v{G1}, {sr(M.SRD_WS)}, s10 offen{ldaux}")
    g(f"buffer_load_dword v{kb+4}, v{G2}, {sr(M.SRD_WS)}, s10 offen{ldaux}")
    g(f"buffer_load_dwordx4 {vr(kb+8,4)}, v{G3}, {sr(M.SRD_WS)}, s10 offen{ldaux}")
    g(f"buffer_load_dwordx4 {vr(kb+12,4)}, v{G3}, {sr(M.SRD_WS)}, s10 offen offset:{M.VH_B}{ldaux}")
    g(f"v_mov_b32 v{Q2[rt]+1}, 0")
    g(f"v_mov_b32 v{Q2[rt]+2}, 0")
    g("s_waitcnt vmcnt(0)")
    g("s_nop 1")
    g(qk1(rt, kb))
    g(qk2(rt, kb))
    g("s_nop 15")
    g("s_nop 3")
    g(f"v_max3_f32 v{T}, v{s}, v{s+1}, v{s+2}")
    for r in range(3, 15, 2):
        g(f"v_max3_f32 v{T}, v{T}, v{s+r}, v{s+r+1}")
    g(f"v_max_f32 v{T}, v{T}, v{s+15}")
    g(f"v_mov_b32 v{T+1}, v{T}")
    g("s_nop 1")
    g(f"v_permlane32_swap_b32 v{T}, v{T+1}")
    g("s_nop 1")
    g(f"v_max_f32 v{T}, v{T}, v{T+1}")
    g(f"v_ceil_f32 v{T}, v{T}")
    g(f"v_max_f32 v{T}, v{T}, v{AM[rt]}")
    g(f"v_sub_f32 v{T+1}, v{AM[rt]}, v{T}")
    g(f"v_max_f32 v{T+1}, {M.f32bits(-1000.0)}, v{T+1}")
    g(f"v_cvt_i32_f32 v{T+1}, v{T+1}")
    g(f"v_mov_b32 v{AM[rt]}, v{T}")
    for r in range(16):
        g(f"v_ldexp_f32 v{o+r}, v{o+r}, v{T+1}")
    for r in range(16):
        g(f"v_sub_f32 v{s+r}, v{s+r}, v{AM[rt]}")
        g(f"v_exp_f32 v{s+r}, v{s+r}")
    g("s_nop 0")
    for r in range(8):
        g(f"v_cvt_pk_bf16_f32 v{p+r}, v{s+2*r}, v{s+2*r+1}")
    g("s_nop 1")
    g(pva(rt, kb))
    g(pvb(rt, kb))
    g("s_nop 15")
    g("s_nop 3")
    g(f"s_add_u32 s10, s10, {M.TILE_B}")
    g("s_add_u32 s11, s11, 1")
    g("s_cmp_lt_u32 s11, 64")
    g(f"s_cbranch_scc1 {L}")
```

```python
def ffn_setup(g, opts, M):
    vr, sr = M.vr, M.sr
    S_RB, S_FS, S_WV, S_W4 = M.S_RB, M.S_FS, M.S_WV, M.S_W4
    ACC = lambda ct, rt: 16 + (ct * 4 + rt) * 4
    AB = [160, 172]
    BB = [184, 200]
    VO1, VO2 = 216, 225
    VBE = [234, 235]
    VTA, VBO, VFL, VFW = 236, 237, 238, 239
    VH = 240
    VT = 244
    S_WR, S_O1, S_O2, S_O3 = 84, 85, 86, 87
    noattn = opts.get("noattn")
    for j in range(9):
        g(f"v_add_u32 v5, {64*j}, v1")
        g("v_mul_u32_u24 v6, 3641, v5")
        g("v_lshrrev_b32 v6, 16, v6")
        g("v_mul_u32_u24 v7, 18, v6")
        g("v_sub_u32 v7, v5, v7")
        g("v_lshlrev_b32 v7, 4, v7")
        if j % 4:
            g(f"v_subrev_u32 v7, {(j%4)*1024}, v7")
        g("v_mul_u32_u24 v5, 9216, v6")
        g(f"v_add_u32 v{VO1+j}, v5, v7")
        g("v_mul_u32_u24 v5, 1152, v6")
        g(f"v_add_u32 v{VO2+j}, v5, v7")
    g(f"s_mul_i32 s{S_WR}, s{S_W4}, 18432")
    g(f"s_add_u32 s{S_WR}, s{S_WR}, {M.WR}")
    g(f"s_mul_i32 s9, s{S_W4}, 288")
    g(f"s_mul_i32 s{S_O1}, s{S_FS}, 1152")
    g(f"s_add_u32 s{S_O1}, s{S_O1}, s9")
    g(f"s_mul_i32 s{S_O2}, s{S_FS}, {576*1152}")
    g(f"s_add_u32 s{S_O2}, s{S_O2}, s9")
    g(f"s_mul_i32 s{S_O3}, s{S_FS}, {72*1152}")
    g(f"s_add_u32 s{S_O3}, s{S_O3}, s9")
    g("v_and_b32 v2, 15, v1")
    g("v_lshrrev_b32 v3, 4, v1")
    g("v_bfe_u32 v4, v2, 1, 3")
    g("v_xor_b32 v5, v4, v3")
    g("v_mul_u32_u24 v6, 1152, v2")
    g(f"v_lshl_add_u32 v{VBE[0]}, v5, 4, v6")
    g("v_xor_b32 v5, 4, v5")
    g(f"v_lshl_add_u32 v{VBE[1]}, v5, 4, v6")
    g(f"v_mul_u32_u24 v5, {M.OSTR}, v2")
    g("v_lshl_add_u32 v5, v3, 4, v5")
    g(f"v_add_u32 v{VBO}, {M.OREG}, v5")
    g("v_lshrrev_b32 v5, 2, v1")
    g("v_mul_u32_u24 v5, 288, v5")
    g("v_and_b32 v7, 3, v1")
    g("v_lshl_add_u32 v5, v7, 3, v5")
    g(f"v_add_u32 v{VTA}, s{S_WR}, v5")
    g("v_lshlrev_b32 v5, 2, v7")
    g(f"v_add_u32 v{VFL}, {M.F_X}, v5")
    g(f"s_lshl_b32 s9, s{S_W4}, 2")
    g(f"s_add_u32 s9, s9, {M.F_X}")
    g(f"v_mov_b32 v{VFW}, s9")
    for c in range(4):
        g(f"s_mul_i32 s9, s{S_W4}, 9")
        g(f"s_add_u32 s9, s9, {c}")
        g("s_lshr_b32 s10, s9, 2")
        g("s_lshl_b32 s10, s10, 7")
        g("s_and_b32 s11, s9, 1")
        g("s_lshl_b32 s11, s11, 3")
        g("s_add_u32 s10, s10, s11")
        g("s_and_b32 s11, s9, 2")
        g("s_lshl_b32 s11, s11, 1")
        g("v_xor_b32 v5, v4, v3")
        g("v_xor_b32 v5, s11, v5")
        g("v_lshl_add_u32 v5, v5, 4, v6")
        g(f"v_add_u32 v{VH+c}, s10, v5")
    steps = [("w1", k) for k in range(18)] + [("w2", k) for k in range(18)]
    if not noattn:
        steps += [("wo", k) for k in range(3)]
    NS = len(steps)

    def dma_ops(gs):
        kind, kk = steps[gs]
        st = gs & 1
        if kind == "w1":
            srd, vo, sb, inc = M.SRD_W1, VO1, S_O1, kk * 32 * 9216
        elif kind == "w2":
            srd, vo, sb, inc = M.SRD_W2, VO2, S_O2, kk * 32 * 1152
        else:
            srd, vo, sb, inc = M.SRD_WO, VO2, S_O3, kk * 32 * 1152
        ops = []
        for j in range(9):
            pre = []
            if j == 0:
                pre.append(f"s_add_u32 s88, s{sb}, {inc}")
            if j % 4 == 0:
                pre.append(f"s_add_u32 m0, s{S_WR}, {st*9216 + (j//4)*4096}")
                pre.append("s_nop 0")
            ops.append(pre + [f"buffer_load_dwordx4 v{vo+j}, {sr(srd)}, s88 offen offset:{(j%4)*1024} lds"])
        return ops
    return dma_ops(0) + dma_ops(1)


def ffn(g, opts, M):
    vr, sr = M.vr, M.sr
    S_RB, S_FS, S_WV, S_W4 = M.S_RB, M.S_FS, M.S_WV, M.S_W4
    ACC = lambda ct, rt: 16 + (ct * 4 + rt) * 4
    AB = [160, 172]
    BB = [184, 200]
    VO1, VO2 = 216, 225
    VBE = [234, 235]
    VTA, VBO, VFL, VFW = 236, 237, 238, 239
    VH = 240
    VT = 244
    S_WR, S_O1, S_O2, S_O3 = 84, 85, 86, 87
    noattn = opts.get("noattn")
    g(f"s_waitcnt vmcnt({18 + opts['npf']})")
    for ct in range(9):
        a, b = ACC(ct, 0), 160 + 2 * ct
        g(f"v_lshlrev_b32 v{a}, 16, v{b}")
        g(f"v_and_b32 v{a+1}, 0xffff0000, v{b}")
        g(f"v_lshlrev_b32 v{a+2}, 16, v{b+1}")
        g(f"v_and_b32 v{a+3}, 0xffff0000, v{b+1}")
    M.stamp(g, opts, 3)
    if opts.get("noffn"):
        return

    steps = [("w1", k) for k in range(18)] + [("w2", k) for k in range(18)]
    if not noattn:
        steps += [("wo", k) for k in range(3)]
    NS = len(steps)

    def dma_ops(gs):
        kind, kk = steps[gs]
        st = gs & 1
        if kind == "w1":
            srd, vo, sb, inc = M.SRD_W1, VO1, S_O1, kk * 32 * 9216
        elif kind == "w2":
            srd, vo, sb, inc = M.SRD_W2, VO2, S_O2, kk * 32 * 1152
        else:
            srd, vo, sb, inc = M.SRD_WO, VO2, S_O3, kk * 32 * 1152
        ops = []
        for j in range(9):
            pre = []
            if j == 0:
                pre.append(f"s_add_u32 s88, s{sb}, {inc}")
            if j % 4 == 0:
                pre.append(f"s_add_u32 m0, s{S_WR}, {st*9216 + (j//4)*4096}")
                pre.append("s_nop 0")
            ops.append(pre + [f"buffer_load_dwordx4 v{vo+j}, {sr(srd)}, s88 offen offset:{(j%4)*1024} lds"])
        return ops
    def tr_ops(gs, c):
        st = gs & 1
        ab = AB[(3 * gs + c) & 1]
        ops = []
        for i in range(3):
            ct = 3 * c + i
            for jh in range(2):
                ops.append([f"ds_read_b64_tr_b16 {vr(ab+i*4+jh*2,2)}, v{VTA} offset:{st*9216 + ct*32 + jh*4608}"])
        return ops
    def b_ops(gs):
        kind, kk = steps[gs]
        bb = BB[gs & 1]
        ops = []
        for rt in range(4):
            if kind == "wo":
                ops.append([f"ds_read_b128 {vr(bb+rt*4,4)}, v{VBO} offset:{rt*16*M.OSTR + kk*64}"])
            else:
                ops.append([f"ds_read_b128 {vr(bb+rt*4,4)}, v{VBE[kk&1]} offset:{M.XH + rt*18432 + (kk>>1)*128}"])
        return ops
    def emit(ops):
        for o in ops:
            for l in o:
                g(l)

    emit(b_ops(0))
    npf = opts["npf"]
    g(f"s_waitcnt vmcnt({9 + npf})")
    emit(tr_ops(0, 0))
    for gs in range(NS):
        kind, kk = steps[gs]
        g.c(f"---- step {gs} {kind} {kk}")
        if gs == 1: M.stamp(g, opts, 4)
        if not opts.get("fst"):
            if gs == 5: M.stamp(g, opts, 10)
            if gs == 9: M.stamp(g, opts, 11)
            if gs == 13: M.stamp(g, opts, 12)
        first = (kk == 0 and kind in ("w1", "w2"))
        bpre = gs + 1 < NS and not (steps[gs + 1][1] == 0 and steps[gs + 1][0] in ("w2", "wo"))
        for c in range(3):
            fill = []
            if c == 2 and bpre:
                g("s_waitcnt lgkmcnt(4)")
            else:
                g("s_waitcnt lgkmcnt(0)")
            if c < 2:
                fill += tr_ops(gs, c + 1)
                if c == 1 and bpre:
                    fill += b_ops(gs + 1)
                if c == 0 and gs == 2 and not opts.get("nopf"):
                    fill += [[f"s_min_u32 s9, s{S_W4}, 2", "s_mul_i32 s9, s9, 6912", f"s_mul_i32 s10, s{S_RB}, 20736", "s_add_u32 s9, s9, s10",
                              f"s_mul_i32 s10, s{S_FS}, {576*1152}", "s_add_u32 s9, s9, s10"],
                             [f"v_min_u32 v{VT+2}, 53, v1", f"v_lshlrev_b32 v{VT+2}, 7, v{VT+2}"],
                             [f"buffer_load_dword v{VT+3}, v{VT+2}, {sr(M.SRD_W2)}, s9 offen"]]
                if c == 0 and kind == "w1" and kk == 17:
                    fill += [[f"v_mov_b32 v{VT}, 1", f"ds_write_b32 v{VFW}, v{VT}"]]
            else:
                if gs + 1 < NS:
                    g(f"s_waitcnt vmcnt({1 if (gs == 2 and not opts.get('nopf')) else 0})")
                    fill += tr_ops(gs + 1, 0)
                if gs + 2 < NS:
                    fill += dma_ops(gs + 2)
            ab = AB[(3 * gs + c) & 1]
            bb = BB[gs & 1]
            mf = []
            for i in range(3):
                ct = 3 * c + i
                order = (1, 2, 3, 0) if (first and kind == "w1") else (0, 1, 2, 3)
                for rt in order:
                    if first and kind == "w1":
                        cc = vr(ACC(ct, 0), 4)
                    elif first:
                        cc = "0"
                    else:
                        cc = vr(ACC(ct, rt), 4)
                    mf.append(f"v_mfma_f32_16x16x32_bf16 {vr(ACC(ct,rt),4)}, {vr(ab+i*4,4)}, {vr(bb+rt*4,4)}, {cc}")
            nf = len(fill)
            fi = 0
            for mi, m in enumerate(mf):
                g(m)
                want = ((mi + 1) * nf + 11) // 12
                while fi < want:
                    for l in fill[fi]:
                        g(l)
                    fi += 1
        if kind == "w1" and kk == 17:
            g.c("---- GEMM1 epilogue")
            M.stamp(g, opts, 5)
            M.flag_wait(g, VFL, VT, 1, "fx1")
            g(f"v_subrev_u32 v{VT+1}, {M.F_X - M.F_KV}, v{VFL}")
            if not noattn:
                M.flag_wait(g, VT + 1, VT, 2, "fxa")
            g("s_setprio 3")
            for ct in range(9):
                for rt in range(4):
                    a = ACC(ct, rt)
                    for r in range(4):
                        g(f"v_max_f32 v{a+r}, 0, v{a+r}")
                    g(f"v_pk_mul_f32 {vr(a,2)}, {vr(a,2)}, {vr(a,2)}")
                    g(f"v_pk_mul_f32 {vr(a+2,2)}, {vr(a+2,2)}, {vr(a+2,2)}")
                    g(f"v_cvt_pk_bf16_f32 v{a}, v{a}, v{a+1}")
                    g(f"v_cvt_pk_bf16_f32 v{a+1}, v{a+2}, v{a+3}")
                    g(f"ds_write_b64 v{VH + (ct & 3)}, {vr(a,2)} offset:{M.XH + rt*18432 + (ct>>2)*128}")
            g("s_waitcnt lgkmcnt(0)")
            g(f"v_mov_b32 v{VT}, 2")
            g(f"ds_write_b32 v{VFW}, v{VT}")
            g("s_setprio 0")
            M.flag_wait(g, VFL, VT, 2, "fx2")
            M.stamp(g, opts, 6)
            emit(b_ops(gs + 1))
        if kind == "w2" and kk == 17 and not noattn:
            g.c("---- wait for O")
            M.stamp(g, opts, 7)
            g(f"v_add_u32 v{VFL}, {M.F_O - M.F_X}, v{VFL}")
            M.flag_wait(g, VFL, VT, 1, "fo")
            M.stamp(g, opts, 8)
            emit(b_ops(gs + 1))
    g.c("---- GEMM2 epilogue: partial store")
    M.stamp(g, opts, 9)
    g(f"s_lshl_b32 s9, s{S_RB}, 3")
    g(f"s_add_u32 s9, s9, s{S_FS}")
    g("s_mul_i32 s9, s9, 73728")
    g(f"s_mul_i32 s10, s{S_W4}, 18432")
    g("s_add_u32 s9, s9, s10")
    g(f"s_add_u32 s9, s9, {M.WS_PART}")
    g("v_lshlrev_b32 v2, 4, v1")
    g("s_nop 7")
    for ct in range(9):
        for u in range(2):
            b = ACC(ct, 2 * u)
            tp = ct * 2 + u
            for d in range(4):
                g(f"v_cvt_pk_bf16_f32 v{b+d}, v{b+2*d}, v{b+2*d+1}")
            if tp % 4 == 0 and tp:
                g("s_add_u32 s9, s9, 4096")
            g(f"buffer_store_dwordx4 {vr(b,4)}, v2, {sr(M.SRD_WS)}, s9 offen offset:{(tp%4)*1024}{' sc1' if opts.get('fuse') else ''}")
    if not opts.get("fuse"):
        g("s_waitcnt vmcnt(0)")
        return
    M.srd(g, M.SRD_B1, M.P_B2, 1152)
    M.srd(g, M.SRD_W1, M.P_OUT, 2359296)
    g(f"s_lshr_b32 s10, s{S_FS}, 1")
    g(f"s_and_b32 s11, s{S_FS}, 1")
    g("s_mul_i32 s12, s10, 288")
    g(f"s_lshl_b32 s9, s{S_W4}, 5")
    g("s_add_u32 s12, s12, s9")
    g("v_lshrrev_b32 v3, 4, v1")
    g("v_lshlrev_b32 v3, 3, v3")
    g("v_add_u32 v3, s12, v3")
    g("v_and_b32 v4, 15, v1")
    g("v_mul_u32_u24 v4, 1152, v4")
    g("v_add_u32 v4, v4, v3")
    g(f"s_lshl_b32 s13, s{S_RB}, 1")
    g("s_add_u32 s13, s13, s11")
    g("s_mul_i32 s13, s13, 36864")
    g("s_add_u32 s14, s13, 18432")
    XB = 176
    for p in range(3):
        g(f"buffer_load_dwordx2 {vr(XB+6*p,2)}, v3, {sr(M.SRD_B1)}, 0 offen offset:{p*128}")
        g(f"buffer_load_dwordx2 {vr(XB+6*p+2,2)}, v4, {sr(M.SRD_X)}, s13 offen offset:{p*128}")
        g(f"buffer_load_dwordx2 {vr(XB+6*p+4,2)}, v4, {sr(M.SRD_X)}, s14 offen offset:{p*128}")
    g("v_and_b32 v5, 3, v1")
    g("v_lshlrev_b32 v5, 2, v5")
    g(f"v_add_u32 v5, {M.F_R}, v5")
    g(f"s_lshl_b32 s9, s{S_W4}, 2")
    g(f"s_add_u32 s9, s9, {M.F_R}")
    g("v_mov_b32 v6, s9")
    g("v_mov_b32 v7, 1")
    g(f"v_mov_b32 v8, {M.F_R + 16}")
    g("s_waitcnt vmcnt(9)")
    g("ds_write_b32 v6, v7")
    M.stamp(g, opts, 10)
    Ln = g.new("rsn")
    g(f"s_cmp_lg_u32 s{S_W4}, 0")
    g(f"s_cbranch_scc1 {Ln}")
    M.flag_wait(g, 5, 9, 1, "rsa")
    g(f"s_lshl_b32 s9, s{S_RB}, 7")
    g(f"s_add_u32 s9, s9, {M.WS_FLAG}")
    g("v_mov_b32 v10, 0")
    g("s_mov_b64 exec, 1")
    g(f"buffer_atomic_add v7, v10, {sr(M.SRD_WS)}, s9 offen sc1")
    g("s_mov_b64 exec, -1")
    Lp, Ld = g.new("rpoll"), g.new("rpolld")
    g.label(Lp)
    g(f"buffer_load_dword v11, v10, {sr(M.SRD_WS)}, s9 offen sc1")
    g("s_waitcnt vmcnt(0)")
    g("v_cmp_ne_u32 vcc, 8, v11")
    g("s_nop 4")
    g(f"s_cbranch_vccz {Ld}")
    g("s_sleep 2")
    g(f"s_branch {Lp}")
    g.label(Ld)
    g("ds_write_b32 v8, v7")
    g.label(Ln)
    M.flag_wait(g, 8, 9, 1, "rsb")
    M.stamp(g, opts, 11)
    g(f"s_mul_i32 s9, s{S_RB}, 589824")
    g("s_mul_i32 s12, s10, 18")
    g("s_add_u32 s12, s12, s11")
    g(f"s_lshl_b32 s15, s{S_W4}, 1")
    g("s_add_u32 s12, s12, s15")
    g("s_lshl_b32 s12, s12, 10")
    g("s_add_u32 s9, s9, s12")
    g(f"s_add_u32 s9, s9, {M.WS_PART}")
    PB = 16
    Lskip = g.new("rs3")
    for p in range(3):
        if p == 2:
            g(f"s_cmp_lg_u32 s{S_W4}, 0")
            g(f"s_cbranch_scc1 {Lskip}")
        g(f"s_add_u32 s12, s9, {p*8192}")
        for f2 in range(8):
            g(f"buffer_load_dwordx4 {vr(PB+(p*8+f2)*4,4)}, v2, {sr(M.SRD_WS)}, s12 offen sc1")
            if f2 < 7:
                g("s_add_u32 s12, s12, 73728")
    g.label(Lskip)
    def unpack(dst, src):
        g(f"v_lshlrev_b32 v{dst}, 16, v{src}")
        g(f"v_and_b32 v{dst+1}, 0xffff0000, v{src}")
    AC, TM = 200, 210
    Lend = g.new("rsend")
    for p in range(3):
        if p == 2:
            g(f"s_cmp_lg_u32 s{S_W4}, 0")
            g(f"s_cbranch_scc1 {Lend}")
        g(f"s_waitcnt vmcnt({8 if p == 0 else 2 if p == 1 else 4})" if p else "s_waitcnt vmcnt(8)")
        if p >= 1:
            g("s_waitcnt vmcnt(0)") if p == 2 else None
        b = PB + p * 32
        for d in range(4):
            unpack(AC + 2 * d, b + d)
        for f2 in range(1, 8):
            for d in range(4):
                unpack(TM + 2 * (d & 1), b + 4 * f2 + d)
                g(f"v_pk_add_f32 {vr(AC+2*d,2)}, {vr(AC+2*d,2)}, {vr(TM+2*(d&1),2)}")
        for d in range(4):
            unpack(TM, XB + 6 * p + (d & 1))
            g(f"v_pk_add_f32 {vr(AC+2*d,2)}, {vr(AC+2*d,2)}, {vr(TM,2)}")
            unpack(TM + 2, XB + 6 * p + 2 + d)
            g(f"v_pk_add_f32 {vr(AC+2*d,2)}, {vr(AC+2*d,2)}, {vr(TM+2,2)}")
        o = 216 + 4 * p
        for d in range(4):
            g(f"v_cvt_pk_bf16_f32 v{o+d}, v{AC+2*d}, v{AC+2*d+1}")
        g(f"buffer_store_dwordx2 {vr(o,2)}, v4, {sr(M.SRD_W1)}, s13 offen offset:{p*128}")
        g(f"buffer_store_dwordx2 {vr(o+2,2)}, v4, {sr(M.SRD_W1)}, s14 offen offset:{p*128}")
    g.label(Lend)
    g("s_waitcnt vmcnt(0)")
```

```python
import sys, struct, math

KN = "parallel_sum__grouped_kv_mqa__dense_activation_squared_relu__prompt"

XH = 0
WR = 73728
KVR = 147456
OREG = 147456
OSTR = 224
FLAGS = 163712
LDS_SIZE = 163840
QST = 73728
F_KV = FLAGS
F_X = FLAGS + 16
F_O = FLAGS + 32
F_G = FLAGS + 48
F_P = FLAGS + 64
F_R = FLAGS + 80
TILE_B = 2432
VH_B = 640
VG_B = 320
VSCR = 160768
PQ_B = 3584
CHUNK_B = 2 * TILE_B
WS_KV = 0
WS_FLAG = 512 << 10
WS_PART = 1 << 20
WS_DBG = 24 << 20
WS_SIZE = 32 << 20

def f32bits(x):
    return struct.unpack("<I", struct.pack("<f", x))[0]

CSCALE = math.log2(math.e) / math.sqrt(18.0)
HEAD = 40
LTHR = 2.0 ** 60


class G:
    def __init__(s):
        s.lines = []
        s.uid = 0
    def __call__(s, t):
        s.lines.append("    " + t)
    def label(s, l):
        s.lines.append(l + ":")
    def c(s, t):
        s.lines.append("    ; " + t)
    def new(s, p):
        s.uid += 1
        return f"L_{p}_{s.uid}"
    def text(s):
        return "\n".join(s.lines)


def vr(a, n):
    return f"v[{a}:{a+n-1}]"

S_RB, S_FS, S_WV, S_W4 = 4, 5, 6, 7
P_X, P_WQ, P_WK, P_WV, P_WO, P_BX, P_W1, P_B1, P_W2, P_B2, P_OUT, P_DBG, P_WS = [16 + 2 * i for i in range(13)]
SRD_X, SRD_WQ, SRD_W1, SRD_W2, SRD_WO, SRD_B1, SRD_WS, SRD_WK, SRD_WVV = 44, 48, 52, 56, 60, 64, 68, 72, 76
SRD_DBG = 12
S_SH = 3
S_LO = 80
S_HI = 82


def srd(g, d, p, nbytes):
    g(f"s_mov_b32 s{d}, s{p}")
    g(f"s_and_b32 s{d+1}, s{p+1}, 0xffff")
    g(f"s_mov_b32 s{d+2}, {nbytes}")
    g(f"s_mov_b32 s{d+3}, 0x00020000")

def sr(d):
    return f"s[{d}:{d+3}]"


def flag_wait(g, vaddr, vtmp, thr, name):
    L = g.new(name)
    Ld = g.new(name + "d")
    g.label(L)
    g(f"ds_read_b32 v{vtmp}, v{vaddr}")
    g("s_waitcnt lgkmcnt(0)")
    g(f"v_cmp_gt_u32 vcc, {thr}, v{vtmp}")
    g("s_nop 4")
    g(f"s_cbranch_vccz {Ld}")
    g("s_sleep 1")
    g(f"s_branch {L}")
    g.label(Ld)


def stamp(g, opts, idx):
    if not opts.get("stamp"):
        return
    g("s_memrealtime s[96:97]")
    g("s_waitcnt lgkmcnt(0)")
    g(f"v_writelane_b32 v254, s96, {idx}")


def cstamp(g, opts, idx):
    if not opts.get("stamp"):
        return
    g("s_memtime s[96:97]")
    g("s_waitcnt lgkmcnt(0)")
    g(f"v_writelane_b32 v254, s96, {idx}")


def stamp_flush(g, opts):
    if not opts.get("stamp"):
        return
    stamp(g, opts, 15)
    g("s_memtime s[96:97]")
    g("s_waitcnt lgkmcnt(0)")
    g(f"v_writelane_b32 v254, s96, 14")
    base = WS_DBG + (1 << 20) + (0 if opts["tag"] == "K" else (1 << 18))
    g("s_lshl_b32 s98, s2, 3")
    g(f"s_add_u32 s98, s98, s{S_WV}")
    g("s_lshl_b32 s98, s98, 6")
    g(f"s_add_u32 s98, s98, {base}")
    g("v_lshlrev_b32 v253, 2, v1")
    g("s_mov_b64 exec, 0xffff")
    g(f"buffer_store_dword v254, v253, {sr(SRD_WS)}, s98 offen")
    g("s_mov_b64 exec, -1")
    g("s_waitcnt vmcnt(0)")


def head(g, opts):
    g("s_cmp_ge_u32 s2, 256")
    g("s_cbranch_scc1 L_end")
    if opts.get("stamp"):
        g("v_mov_b32 v254, 0")
    stamp(g, opts, 0)
    cstamp(g, opts, 13)
    g("s_load_dwordx16 s[16:31], s[0:1], 0")
    g("s_load_dwordx8 s[32:39], s[0:1], 64")
    g("s_load_dwordx2 s[40:41], s[0:1], 96")
    g("v_and_b32 v1, 63, v0")
    g("v_lshrrev_b32 v2, 6, v0")
    if opts.get("map2"):
        g("s_lshr_b32 s8, s2, 3")
        g("s_and_b32 s9, s2, 3")
        g("s_lshl_b32 s9, s9, 1")
        g("s_and_b32 s10, s8, 1")
        g(f"s_add_u32 s{S_FS}, s9, s10")
        g("s_bfe_u32 s9, s2, 0x10002")
        g("s_lshl_b32 s9, s9, 4")
        g("s_lshr_b32 s10, s8, 1")
        g(f"s_add_u32 s{S_RB}, s9, s10")
    else:
        g(f"s_lshr_b32 s{S_RB}, s2, 3")
        g(f"s_and_b32 s{S_FS}, s2, 7")
    g(f"v_readfirstlane_b32 s{S_WV}, v2")
    g(f"s_mov_b32 s{S_LO}, -1")
    g(f"s_mov_b32 s{S_LO+1}, 0")
    g(f"s_mov_b32 s{S_HI}, 0")
    g(f"s_mov_b32 s{S_HI+1}, -1")
    g(f"s_and_b32 s{S_W4}, s{S_WV}, 3")
    if opts.get("map2"):
        g(f"s_and_b32 s{S_SH}, s{S_RB}, 15")
    else:
        g(f"s_mov_b32 s{S_SH}, s{S_RB}")
    g("s_waitcnt lgkmcnt(0)")
    srd(g, SRD_X, P_X, 2359296)
    srd(g, SRD_WS, P_WS, WS_SIZE)


def touch_w1(g, opts):
    if opts.get("nopf"):
        return
    g("v_min_u32 v5, 53, v1")
    g("v_mul_u32_u24 v6, 7282, v5")
    g("v_lshrrev_b32 v6, 16, v6")
    g("v_mul_u32_u24 v7, 9, v6")
    g("v_sub_u32 v7, v5, v7")
    g(f"s_mov_b32 s10, {32*9216}")
    g("v_mul_lo_u32 v6, v6, s10")
    g("v_lshl_add_u32 v5, v7, 7, v6")
    g(f"s_min_u32 s9, s{S_W4}, 2")
    g("s_mul_i32 s9, s9, 192")
    g(f"s_add_u32 s9, s9, s{S_RB}")
    g("s_mul_i32 s9, s9, 9216")
    g(f"s_mul_i32 s10, s{S_FS}, 1152")
    g("s_add_u32 s9, s9, s10")
    g(f"buffer_load_dword v251, v5, {sr(SRD_W1)}, s9 offen")


def touches(g, opts):
    if opts.get("nopf"):
        return
    L1, Ld = g.new("tc"), g.new("tcd")
    g(f"s_cmp_ge_u32 s{S_W4}, 2")
    g(f"s_cbranch_scc1 {Ld}")
    g(f"s_cmp_lg_u32 s{S_W4}, 0")
    g(f"s_cbranch_scc1 {L1}")
    srd(g, SRD_WQ, P_WQ, 663552)
    g("v_min_u32 v5, 53, v1")
    g("v_mul_u32_u24 v6, 21846, v5")
    g("v_lshrrev_b32 v6, 16, v6")
    g("v_mul_u32_u24 v7, 3, v6")
    g("v_sub_u32 v7, v5, v7")
    g("v_mul_u32_u24 v6, 1152, v6")
    g("v_lshl_add_u32 v6, v7, 6, v6")
    g(f"s_mul_i32 s9, s{S_RB}, {18*1152}")
    g(f"s_mul_i32 s10, s{S_FS}, 144")
    g("s_add_u32 s9, s9, s10")
    g(f"buffer_load_dword v252, v6, {sr(SRD_WQ)}, s9 offen offset:12")
    g(f"s_branch {Ld}")
    g.label(L1)
    srd(g, SRD_WO, P_WO, 663552)
    g("v_min_u32 v6, 26, v1")
    g("v_lshlrev_b32 v6, 7, v6")
    g(f"s_mul_i32 s9, s{S_FS}, {72*1152}")
    g(f"s_mul_i32 s10, s{S_RB}, 3456")
    g("s_add_u32 s9, s9, s10")
    g(f"buffer_load_dword v252, v6, {sr(SRD_WO)}, s9 offen")
    g.label(Ld)


def ln_load(g, X, srow):
    g(f"s_lshl_b32 s8, s{S_RB}, 6")
    g(f"s_add_u32 s8, s8, s{srow}")
    g("s_mul_i32 s8, s8, 1152")
    for i in range(9):
        g(f"buffer_load_dwordx4 {vr(X+4*i,4)}, v4, {sr(SRD_X)}, s8 offen offset:{i*128}")


def ln_addr(g, A, srow):
    g(f"v_add_u32 v5, s{srow}, v2")
    g("v_bfe_u32 v6, v5, 1, 3")
    g("v_lshrrev_b32 v7, 2, v3")
    g("v_lshlrev_b32 v7, 2, v7")
    g(f"v_and_b32 v{A}, 1, v3")
    g(f"v_lshl_add_u32 v7, v{A}, 1, v7")
    g("v_xor_b32 v7, v7, v6")
    g(f"v_mul_u32_u24 v{A}, 1152, v5")
    g(f"v_lshl_add_u32 v{A}, v7, 4, v{A}")
    g("v_bfe_u32 v7, v3, 1, 1")
    g(f"v_lshl_add_u32 v{A}, v7, 3, v{A}")
    g(f"v_xor_b32 v{A+1}, 16, v{A}")


def ln_compute(g, X):
    for r in range(52, 56):
        g(f"v_mov_b32 v{r}, 0")
    g("s_mov_b32 s9, 0x3f803f80")
    for n in range(36):
        g(f"v_dot2c_f32_bf16 v{52 + (n&1)}, s9, v{X+n}")
        g(f"v_dot2c_f32_bf16 v{54 + (n&1)}, v{X+n}, v{X+n}")
    g("s_nop 3")
    g("v_add_f32 v52, v52, v53")
    g("v_add_f32 v54, v54, v55")
    for pat in ("quad_perm:[1,0,3,2]", "quad_perm:[2,3,0,1]", "row_half_mirror"):
        g("s_nop 1")
        g(f"v_add_f32_dpp v52, v52, v52 {pat} row_mask:0xf bank_mask:0xf")
        g(f"v_add_f32_dpp v54, v54, v54 {pat} row_mask:0xf bank_mask:0xf")
    g(f"s_mov_b32 s9, {f32bits(1.0/576.0)}")
    g("v_mul_f32 v52, s9, v52")
    g("v_mul_f32 v54, s9, v54")
    g("v_fma_f32 v54, -v52, v52, v54")
    g("v_max_f32 v54, 0, v54")
    g(f"v_add_f32 v54, {f32bits(1e-5)}, v54")
    g("v_rsq_f32 v56, v54")
    g("s_nop 0")
    g("v_mov_b32 v57, v56")
    g("v_mul_f32 v58, v52, v56")
    g("v_sub_f32 v58, 0, v58")
    g("v_mov_b32 v59, v58")
    for n in range(36):
        t = 60 + 2 * (n % 4)
        g(f"v_lshlrev_b32 v{t}, 16, v{X+n}")
        g(f"v_and_b32 v{t+1}, 0xffff0000, v{X+n}")
        g(f"v_pk_fma_f32 {vr(t,2)}, {vr(t,2)}, v[56:57], v[58:59]")
        g(f"v_cvt_pk_bf16_f32 v{X+n}, v{t}, v{t+1}")


def ln_write(g, X, A):
    for i in range(9):
        g(f"ds_write_b64 v{A}, {vr(X+4*i,2)} offset:{i*128}")
        g(f"ds_write_b64 v{A+1}, {vr(X+2+4*i,2)} offset:{i*128}")


def ln_lane_setup(g):
    g("v_lshrrev_b32 v2, 3, v1")
    g("v_and_b32 v3, 7, v1")
    g("v_mul_u32_u24 v4, 1152, v2")
    g("v_lshl_add_u32 v4, v3, 4, v4")


def a_layernorm(g, opts):
    XS = [8, 68]
    ln_lane_setup(g)
    g(f"s_lshl_b32 s11, s{S_W4}, 4")
    g("s_add_u32 s12, s11, 8")
    if opts.get("asleep"):
        g(f"s_sleep {opts['asleep']}")
    ln_load(g, XS[0], 11)
    ln_load(g, XS[1], 12)
    ln_addr(g, 44, 11)
    ln_addr(g, 46, 12)
    g("v_and_b32 v48, 3, v1")
    g("v_lshlrev_b32 v48, 2, v48")
    g(f"v_add_u32 v48, {F_P}, v48")
    g("s_waitcnt vmcnt(9)")
    stamp(g, opts, 1)
    ln_compute(g, XS[0])
    g("s_waitcnt vmcnt(0)")
    ln_compute(g, XS[1])
    flag_wait(g, 48, 49, 2, "kvw")
    ln_write(g, XS[0], 44)
    ln_write(g, XS[1], 46)
    g("s_waitcnt lgkmcnt(0)")
    stamp(g, opts, 9)
    g("s_barrier")
    stamp(g, opts, 2)


def f_kv(g, opts):
    aux = " sc1"
    ln_lane_setup(g)
    g(f"s_lshr_b32 s13, s{S_FS}, 1")
    g("s_lshl_b32 s11, s13, 4")
    g(f"s_lshl_b32 s12, s{S_W4}, 3")
    g("s_add_u32 s11, s11, s12")
    ln_load(g, 8, 11)
    ln_addr(g, 44, 11)
    g("v_and_b32 v48, 3, v1")
    g("v_lshlrev_b32 v48, 2, v48")
    g(f"v_add_u32 v48, {F_P}, v48")
    g(f"s_lshl_b32 s9, s{S_W4}, 2")
    g(f"s_add_u32 s9, s9, {F_P}")
    g("v_mov_b32 v47, s9")
    g("v_and_b32 v5, 15, v1")
    g("v_lshrrev_b32 v6, 4, v1")
    g("v_bfe_u32 v7, v5, 1, 3")
    g("v_xor_b32 v7, v7, v6")
    g("v_mul_u32_u24 v70, 1152, v5")
    g("s_mul_i32 s9, s13, 18432")
    g("v_add_u32 v70, s9, v70")
    g("v_xor_b32 v71, 4, v7")
    g("v_lshl_add_u32 v71, v71, 4, v70")
    g("v_lshl_add_u32 v70, v7, 4, v70")
    g("v_lshrrev_b32 v7, 2, v1")
    g("v_mul_u32_u24 v72, 48, v7")
    g("v_and_b32 v7, 3, v1")
    g("v_lshlrev_b32 v7, 3, v7")
    g(f"s_cmp_lg_u32 s{S_W4}, 0")
    g("s_cselect_b64 vcc, -1, 0")
    g("v_cndmask_b32 v7, v7, 40, vcc")
    g("v_add_u32 v72, v72, v7")
    g("s_cmp_lt_u32 s13, 2")
    g("s_cselect_b32 s9, 36864, 0")
    g("v_add_u32 v72, s9, v72")
    g("s_waitcnt vmcnt(0)")
    stamp(g, opts, 10)
    ln_compute(g, 8)
    ln_write(g, 8, 44)
    g("v_mov_b32 v46, 1")
    g("s_waitcnt lgkmcnt(0)")
    g("ds_write_b32 v47, v46")
    flag_wait(g, 48, 49, 1, "kvr")
    def rd(kk):
        b = 80 + 8 * (kk % 3)
        return [f"ds_read_b64_tr_b16 {vr(b,2)}, v72 offset:{kk*1536}",
                f"ds_read_b64_tr_b16 {vr(b+2,2)}, v72 offset:{kk*1536+768}",
                f"ds_read_b128 {vr(b+4,4)}, v{70+(kk&1)} offset:{XH + (kk>>1)*128}"]
    LVv, Lj = g.new("kv_v"), g.new("kv_j")
    g(f"s_bitcmp1_b32 s{S_FS}, 0")
    g(f"s_cbranch_scc1 {LVv}")
    for isv in range(2):
        if isv:
            g.label(LVv)
        for l in rd(0) + rd(1): g(l)
        for kk in range(18):
            if kk + 2 < 18:
                for l in rd(kk + 2): g(l)
                g("s_waitcnt lgkmcnt(6)")
            else:
                g(f"s_waitcnt lgkmcnt({3 if kk == 16 else 0})")
            b = 80 + 8 * (kk % 3)
            A, B = (vr(b+4,4), vr(b,4)) if isv else (vr(b,4), vr(b+4,4))
            g(f"v_mfma_f32_16x16x32_bf16 v[76:79], {A}, {B}, {'0' if kk == 0 else 'v[76:79]'}")
        if not isv:
            g(f"s_branch {Lj}")
    g.label(Lj)
    g("v_mov_b32 v46, 2")
    g("ds_write_b32 v47, v46")
    g(f"s_lshl_b32 s9, s{S_RB}, 1")
    g("s_lshr_b32 s10, s13, 1")
    g("s_add_u32 s9, s9, s10")
    g(f"s_mul_i32 s9, s9, {TILE_B}")
    g(f"s_add_u32 s9, s9, {WS_KV}")
    g("s_and_b32 s12, s13, 1")
    g("s_nop 4")
    g("v_cvt_pk_bf16_f32 v76, v76, v77")
    g("v_cvt_pk_bf16_f32 v77, v78, v79")
    Lc = [g.new("kvp") for _ in range(4)]
    g(f"s_bitcmp1_b32 s{S_FS}, 0")
    g(f"s_cbranch_scc1 {Lc[1]}")
    g("s_lshl_b32 s10, s12, 4")
    g("v_add_u32 v7, s10, v5")
    g(f"s_cmp_lg_u32 s{S_W4}, 0")
    g(f"s_cbranch_scc1 {Lc[0]}")
    g("v_lshrrev_b32 v2, 1, v6")
    g("v_lshl_add_u32 v7, v2, 5, v7")
    g("v_lshlrev_b32 v7, 4, v7")
    g("v_and_b32 v2, 1, v6")
    g("v_lshl_add_u32 v7, v2, 3, v7")
    g(f"buffer_store_dwordx2 v[76:77], v7, {sr(SRD_WS)}, s9 offen{aux}")
    g(f"s_branch {Lc[3]}")
    g.label(Lc[0])
    g("v_lshlrev_b32 v7, 2, v7")
    g("s_mov_b64 exec, 0xffff")
    g(f"buffer_store_dword v77, v7, {sr(SRD_WS)}, s9 offen offset:1024{aux}")
    g("s_mov_b64 exec, -1")
    g(f"s_branch {Lc[3]}")
    g.label(Lc[1])
    g(f"s_mul_i32 s10, s12, {VH_B}")
    g("s_add_u32 s9, s9, s10")
    g("v_and_b32 v2, 1, v6")
    g(f"v_mul_u32_u24 v7, {VG_B}, v2")
    g("v_lshl_add_u32 v7, v5, 4, v7")
    g("v_lshrrev_b32 v2, 1, v6")
    g("v_lshl_add_u32 v7, v2, 3, v7")
    g(f"s_cmp_lg_u32 s{S_W4}, 0")
    g(f"s_cbranch_scc1 {Lc[2]}")
    g(f"buffer_store_dwordx2 v[76:77], v7, {sr(SRD_WS)}, s9 offen offset:1152{aux}")
    g(f"s_branch {Lc[3]}")
    g.label(Lc[2])
    g("v_mov_b32 v2, 0x3f803f80")
    g("v_cmp_eq_u32 vcc, 4, v5")
    g("s_nop 1")
    g("v_cndmask_b32 v76, v76, v2, vcc")
    g("v_cndmask_b32 v77, v77, v2, vcc")
    g("v_cmp_eq_u32 vcc, 5, v5")
    g("s_nop 1")
    g("v_cndmask_b32 v76, v76, 0, vcc")
    g("v_cndmask_b32 v77, v77, 0, vcc")
    g("s_mov_b32 exec_lo, 0x003c003c")
    g("s_mov_b32 exec_hi, 0x003c003c")
    g(f"buffer_store_dwordx2 v[76:77], v7, {sr(SRD_WS)}, s9 offen offset:{1152+14*16}{aux}")
    g("s_mov_b64 exec, -1")
    g.label(Lc[3])
    if opts.get("fuse"):
        Lz = g.new("kvz")
        g(f"s_add_u32 s9, s{S_FS}, s{S_W4}")
        g("s_cmp_lg_u32 s9, 0")
        g(f"s_cbranch_scc1 {Lz}")
        g(f"s_lshl_b32 s9, s{S_RB}, 7")
        g(f"s_add_u32 s9, s9, {WS_FLAG}")
        g("v_mov_b32 v2, 0")
        g("s_mov_b64 exec, 1")
        g(f"buffer_store_dword v2, v2, {sr(SRD_WS)}, s9 offen sc1")
        g("s_mov_b64 exec, -1")
        g.label(Lz)
    g("s_waitcnt vmcnt(0)")
    stamp(g, opts, 11)
    Lw1, Lad = g.new("arr1"), g.new("arrd")
    g(f"s_cmp_lg_u32 s{S_W4}, 0")
    g(f"s_cbranch_scc1 {Lw1}")
    g(f"v_mov_b32 v48, {F_P + 4}")
    flag_wait(g, 48, 49, 3, "arr")
    srd(g, SRD_DBG, P_DBG, 256)
    g("v_mov_b32 v249, 0")
    g("v_mov_b32 v250, 1")
    g("s_mov_b64 exec, 1")
    g(f"buffer_atomic_add v250, v249, {sr(SRD_DBG)}, 0 offen sc0 sc1")
    g(f"s_branch {Lad}")
    g.label(Lw1)
    g("v_mov_b32 v46, 3")
    g("ds_write_b32 v47, v46")
    g.label(Lad)
    g("s_mov_b64 exec, -1")


def f_stage(g, opts):
    g(f"s_bitcmp1_b32 s{S_FS}, 0")
    g(f"s_cselect_b32 s{SRD_WK}, s{P_WV}, s{P_WK}")
    g(f"s_cselect_b32 s{SRD_WK+1}, s{P_WV+1}, s{P_WK+1}")
    g(f"s_and_b32 s{SRD_WK+1}, s{SRD_WK+1}, 0xffff")
    g(f"s_mov_b32 s{SRD_WK+2}, 20736")
    g(f"s_mov_b32 s{SRD_WK+3}, 0x00020000")
    for j in range(3):
        g(f"v_add_u32 v5, {64*j}, v1")
        g("v_mul_u32_u24 v6, 21846, v5")
        g("v_lshrrev_b32 v6, 16, v6")
        g("v_mul_u32_u24 v7, 3, v6")
        g("v_sub_u32 v7, v5, v7")
        g("v_lshlrev_b32 v7, 4, v7")
        g("v_min_u32 v7, 20, v7")
        g(f"v_mad_u32_u24 v{44+j}, v6, 36, v7")
    g(f"s_lshr_b32 s13, s{S_FS}, 1")
    g("s_cmp_lt_u32 s13, 2")
    g("s_cselect_b32 s12, 36864, 0")
    g(f"s_and_b32 s11, s{S_W4}, 1")
    for n in range(5):
        Ls = g.new("kws")
        if n == 4:
            g("s_cmp_lg_u32 s11, 0")
            g(f"s_cbranch_scc1 {Ls}")
        g(f"s_add_u32 s14, s11, {2*n}")
        g(f"s_mul_i32 s9, s14, {64*36}")
        g("s_mul_i32 s10, s14, 3072")
        g("s_add_u32 s10, s10, s12")
        for j in range(3):
            g(f"s_add_u32 m0, s10, {j*1024}")
            g("s_nop 0")
            g(f"buffer_load_dwordx4 v{44+j}, {sr(SRD_WK)}, s9 offen lds")
        g.label(Ls)
    for j in range(9):
        g(f"v_add_u32 v5, {64*j}, v1")
        g("v_mul_u32_u24 v6, 7282, v5")
        g("v_lshrrev_b32 v6, 16, v6")
        g("v_mul_u32_u24 v7, 9, v6")
        g("v_sub_u32 v7, v5, v7")
        g("v_mul_u32_u24 v6, 1152, v6")
        g(f"v_lshl_add_u32 v{50+j}, v7, 4, v6")
        if j % 4:
            g(f"v_subrev_u32 v{50+j}, {(j%4)*1024}, v{50+j}")
    g(f"s_lshl_b32 s9, s{S_W4}, 2")
    g(f"s_add_u32 s9, s9, {F_P}")
    g("v_mov_b32 v47, s9")
    g("v_mov_b32 v46, 2")
    g("s_waitcnt vmcnt(0)")
    g("ds_write_b32 v47, v46")
    stamp(g, opts, 10)
    g(f"s_mul_i32 s12, s{S_FS}, 144")
    for n in range(5):
        Ls = g.new("qs")
        if n == 4:
            g("s_cmp_lg_u32 s11, 0")
            g(f"s_cbranch_scc1 {Ls}")
        g(f"s_add_u32 s14, s11, {2*n}")
        g(f"s_mul_i32 s9, s14, {64*1152}")
        g("s_add_u32 s9, s9, s12")
        g("s_mul_i32 s10, s14, 9216")
        g(f"s_add_u32 s10, s10, {QST}")
        for j in range(9):
            if j % 4 == 0:
                g(f"s_add_u32 m0, s10, {(j//4)*4096}")
                g("s_nop 0")
            g(f"buffer_load_dwordx4 v{50+j}, {sr(SRD_WQ)}, s9 offen offset:{(j%4)*1024} lds")
        g.label(Ls)
    stamp(g, opts, 11)


A_Q1 = [16, 20]
A_Q2 = [24, 28]
A_S = [32, 48]
A_P = [64, 72]
A_O = [80, 96]
def A_KV(st, u):
    return 112 + (st * 2 + u) * 16
A_M = [176, 177]
A_AK1, A_AK2, A_AV = 178, 179, 180
A_AFL, A_FLD, A_FLW = 181, 182, 183
A_DV0, A_DV1 = 184, 185
A_T = 186
A_FV = 200
QW = 128
QX = 236


def q_phase(g, opts):
    QA = [32, 48]
    AB = [112, 120]
    BB = [128, 144]
    def reads(kk):
        b = kk & 1
        off = kk * 4608
        st = 0
        if off >= 65536 - 4608:
            off -= 13 * 4608; st = 1
        L = []
        for m in range(2):
            for jh in range(2):
                L.append(f"ds_read_b64_tr_b16 {vr(AB[b]+m*4+jh*2,2)}, v{Q_VTA+st} offset:{off + (m*8+jh*16)*144}")
            for rt in range(2):
                L.append(f"ds_read_b128 {vr(BB[b]+(rt*2+m)*4,4)}, v{Q_VBA+(kk&1)*2+m} offset:{XH + rt*36864 + (kk>>1)*128}")
        return L
    def mfmas(kk):
        b = kk & 1
        L = []
        for m in range(2):
            for rt in range(2):
                c = "0" if (kk == 0 and m == 0) else vr(QA[rt], 16)
                L.append(f"v_mfma_f32_32x32x16_bf16 {vr(QA[rt],16)}, {vr(AB[b]+m*4,4)}, {vr(BB[b]+(rt*2+m)*4,4)}, {c}")
        return L
    for l in reads(0): g(l)
    for l in reads(1): g(l)
    for kk in range(18):
        g("s_waitcnt lgkmcnt(8)" if kk < 16 else "s_waitcnt lgkmcnt(8)" if kk == 16 else "s_waitcnt lgkmcnt(0)")
        if kk == 15:
            g(f"ds_write_b32 v{A_FLW}, v{A_FV}")
        mf = mfmas(kk)
        rd = reads(kk + 2) if kk + 2 < 18 else []
        g(mf[0]); g(mf[1])
        for l in rd[:2]: g(l)
        g(mf[2])
        for l in rd[2:4]: g(l)
        g(mf[3])
        for l in rd[4:]: g(l)
    g(f"s_mov_b32 s9, {f32bits(CSCALE)}")
    g("s_nop 15")
    for rt in range(2):
        for r in range(16):
            g(f"v_mul_f32 v{QA[rt]+r}, s9, v{QA[rt]+r}")
    Lodd, Lqd = g.new("odd"), g.new("qdone")
    g(f"s_bitcmp1_b32 s{S_W4}, 0")
    g(f"s_cbranch_scc1 {Lodd}")
    for odd in range(2):
        if odd:
            g.label(Lodd)
        for rt in range(2):
            q = QA[rt] + 2 * odd
            for p in range(4):
                g(f"v_cvt_pk_bf16_f32 v{A_Q1[rt]+p}, v{q+2*p}, v{q+2*p+1}")
            t = QA[rt] + (14 if odd else 8)
            g(f"v_cvt_pk_bf16_f32 v{A_T+8}, v{t}, v{t+1}")
            g(f"v_cndmask_b32 v{A_Q2[rt]}, 0, v{A_T+8}, s[{S_LO}:{S_LO+1}]")
        if not odd:
            g(f"s_branch {Lqd}")
    g.label(Lqd)
    for rt in range(2):
        for p in range(1, 4):
            g(f"v_mov_b32 v{A_Q2[rt]+p}, 0")


Q_VBA = 160
Q_VTA = 164
def q_setup(g, opts):
    g("v_and_b32 v2, 31, v1")
    g("v_lshrrev_b32 v3, 5, v1")
    g("v_bfe_u32 v4, v2, 1, 3")
    g("v_xor_b32 v4, v4, v3")
    g("v_mul_u32_u24 v5, 1152, v2")
    for e in range(2):
        for m in range(2):
            g(f"v_xor_b32 v6, {4*e+2*m}, v4")
            g(f"v_lshl_add_u32 v{Q_VBA+e*2+m}, v6, 4, v5")
    g("v_bfe_u32 v4, v1, 2, 2")
    g("v_lshl_add_u32 v4, v3, 2, v4")
    g("v_bfe_u32 v5, v1, 4, 1")
    g("v_and_b32 v6, 3, v1")
    g("v_lshl_add_u32 v5, v5, 2, v6")
    g(f"s_mul_i32 s9, s{S_W4}, 36")
    g(f"s_and_b32 s10, s{S_W4}, 1")
    g("s_lshl_b32 s10, s10, 2")
    g("s_sub_u32 s9, s9, s10")
    g(f"s_add_u32 s9, s9, {QST}")
    tbl_e = sum(v << (4*i) for i, v in enumerate([0,2,1,3,4,4,4,4]))
    tbl_o = sum(v << (4*i) for i, v in enumerate([0,2,1,3,2,4,4,4]))
    g(f"s_mov_b32 s11, {tbl_e}")
    g("s_cmp_lg_u32 s10, 0")
    g(f"s_cselect_b32 s11, {tbl_o}, s11")
    g("v_lshlrev_b32 v5, 2, v5")
    g("v_bfe_u32 v5, s11, v5, 4")
    g("v_lshlrev_b32 v6, 3, v5")
    g("v_add_u32 v6, s9, v6")
    g("v_mul_u32_u24 v4, 144, v4")
    g(f"v_add_u32 v{Q_VTA}, v4, v6")
    g(f"v_add_u32 v{Q_VTA+1}, {13*4608}, v{Q_VTA}")
    g("v_and_b32 v4, 3, v1")
    g("v_lshlrev_b32 v4, 2, v4")
    g(f"v_add_u32 v{A_AFL}, {F_KV}, v4")
    g(f"s_lshl_b32 s9, s{S_W4}, 2")
    g(f"s_add_u32 s9, s9, {F_KV}")
    g(f"v_mov_b32 v{A_FLW}, s9")
    g(f"v_mov_b32 v{A_FV}, 1")


def global_kv_sync(g, opts):
    Ln = g.new("gsn")
    g(f"v_mov_b32 v2, {F_G}")
    g(f"s_cmp_lg_u32 s{S_W4}, 0")
    g(f"s_cbranch_scc1 {Ln}")
    srd(g, SRD_DBG, P_DBG, 256)
    g("v_mov_b32 v3, 0")
    g("v_mov_b32 v4, 1")
    Lp, Ld = g.new("gpoll"), g.new("gpolld")
    g.label(Lp)
    g(f"buffer_load_dword v5, v3, {sr(SRD_DBG)}, 0 offen offset:128 sc1")
    g("s_waitcnt vmcnt(0)")
    g("v_cmp_ne_u32 vcc, 1, v5")
    g("s_nop 4")
    g(f"s_cbranch_vccz {Ld}")
    g(f"s_sleep {opts.get('psleep', 4)}")
    g(f"s_branch {Lp}")
    g.label(Ld)
    flag_wait(g, A_AFL, A_FLD, 2, "gsa")
    g("ds_write_b32 v2, v4")
    g.label(Ln)
    flag_wait(g, 2, A_FLD, 1, "gsb")


from gen_attn import attention
from gen_ffn import ffn, ffn_setup


def main_kernel(name, opts):
    g = G()
    me = sys.modules[__name__]
    head(g, opts)
    Lfl = g.new("noflag")
    g(f"s_cmp_lg_u32 s{S_WV}, 0")
    g(f"s_cbranch_scc1 {Lfl}")
    g("v_lshlrev_b32 v5, 2, v1")
    g("v_and_b32 v5, 127, v5")
    g(f"v_add_u32 v5, {FLAGS}, v5")
    g("v_mov_b32 v6, 0")
    g("ds_write_b32 v5, v6")
    g("s_waitcnt lgkmcnt(0)")
    g.label(Lfl)
    g("s_barrier")
    Lf = g.new("fwaves")
    g(f"s_cmp_ge_u32 s{S_WV}, 4")
    g(f"s_cbranch_scc1 {Lf}")
    touches(g, opts)
    q_setup(g, opts)
    a_layernorm(g, opts)
    q_phase(g, opts)
    stamp(g, opts, 3)
    attention(g, opts, me)
    stamp_flush(g, opts)
    g("s_branch L_end")
    g.label(Lf)
    g("s_setprio 3")
    srd(g, SRD_WQ, P_WQ, 663552)
    Lst, Lfj = g.new("fstage"), g.new("fjoin")
    g(f"s_cmp_ge_u32 s{S_W4}, 2")
    g(f"s_cbranch_scc1 {Lst}")
    f_kv(g, opts)
    g(f"s_branch {Lfj}")
    g.label(Lst)
    f_stage(g, opts)
    g.label(Lfj)
    g("s_setprio 0")
    srd(g, SRD_WO, P_WO, 663552)
    srd(g, SRD_W1, P_W1, 5308416)
    srd(g, SRD_W2, P_W2, 5308416)
    srd(g, SRD_B1, P_B1, 9216)
    g(f"s_mul_i32 s9, s{S_W4}, 288")
    g(f"s_mul_i32 s10, s{S_FS}, 1152")
    g("s_add_u32 s9, s9, s10")
    g("v_lshrrev_b32 v5, 4, v1")
    g("v_lshlrev_b32 v5, 3, v5")
    for ct in range(9):
        g(f"buffer_load_dwordx2 {vr(160+2*ct,2)}, v5, {sr(SRD_B1)}, s9 offen offset:{ct*32}")
    touch_w1(g, opts)
    fill = ffn_setup(g, opts, me)
    Lnw = g.new("fnw")
    g(f"s_cmp_lt_u32 s{S_W4}, 2")
    g(f"s_cbranch_scc1 {Lnw}")
    g(f"s_waitcnt vmcnt({9 if opts.get('nopf') else 10})")
    g.label(Lnw)
    stamp(g, opts, 1)
    g("s_barrier")
    stamp(g, opts, 2)
    Lgo = g.new("fgo")
    g(f"s_cmp_lg_u32 s{S_W4}, 0")
    g(f"s_cbranch_scc1 {Lgo}")
    g(f"s_waitcnt vmcnt({9 if opts.get('nopf') else 10})")
    g("v_readfirstlane_b32 s9, v250")
    g("s_cmp_lg_u32 s9, 255")
    g(f"s_cbranch_scc1 {Lgo}")
    g("v_mov_b32 v250, 1")
    g("s_mov_b64 exec, 1")
    g(f"buffer_store_dword v250, v249, {sr(SRD_DBG)}, 0 offen offset:128 sc1")
    g("s_mov_b64 exec, -1")
    g.label(Lgo)
    stamp(g, opts, 12)
    g("v_and_b32 v5, 3, v1")
    g("v_lshlrev_b32 v5, 2, v5")
    g(f"v_add_u32 v5, {F_KV}, v5")
    flag_wait(g, 5, 6, 1, "ring")
    for o in fill:
        for l in o: g(l)
    opts["npf"] = 0
    ffn(g, opts, me)
    stamp_flush(g, opts)
    g.label("L_end")
    g("s_endpgm")
    txt = g.text().replace("L_", f"L{opts['tag']}_")
    return f"""
.globl {name}
.p2align 8
.type {name},@function
{name}:
{txt}
"""


def reduce_kernel(name, opts={}):
    g = G()
    g("s_cmp_ge_u32 s2, 576")
    g("s_cbranch_scc1 LR_end")
    if opts.get("stamp"):
        g("s_memrealtime s[40:41]")
    g("s_load_dwordx2 s[16:17], s[0:1], 0")
    g("s_load_dwordx2 s[18:19], s[0:1], 72")
    g("s_load_dwordx2 s[20:21], s[0:1], 80")
    g("s_load_dwordx2 s[22:23], s[0:1], 96")
    g("v_and_b32 v1, 63, v0")
    g("v_lshrrev_b32 v2, 6, v0")
    g("s_nop 0")
    g("v_readfirstlane_b32 s3, v2")
    g("s_lshl_b32 s4, s2, 2")
    g("s_add_u32 s4, s4, s3")
    g("s_mul_i32 s5, s4, 3641")
    g("s_lshr_b32 s5, s5, 16")
    g("s_mul_i32 s6, s5, 18")
    g("s_sub_u32 s6, s4, s6")
    g("s_lshr_b32 s7, s5, 2")
    g("s_and_b32 s8, s5, 3")
    g("s_waitcnt lgkmcnt(0)")
    srd(g, 24, 16, 2359296)
    srd(g, 28, 18, 1152)
    srd(g, 32, 20, 2359296)
    srd(g, 36, 22, WS_SIZE)
    g("s_mul_i32 s9, s7, 589824")
    g("s_mul_i32 s10, s8, 18")
    g("s_add_u32 s10, s10, s6")
    g("s_lshl_b32 s10, s10, 10")
    g("s_add_u32 s9, s9, s10")
    g(f"s_add_u32 s9, s9, {WS_PART}")
    g("v_lshlrev_b32 v2, 4, v1")
    for fs in range(8):
        g(f"buffer_load_dwordx4 {vr(8+4*fs,4)}, v2, s[36:39], s9 offen")
        if fs < 7:
            g("s_add_u32 s9, s9, 73728")
    g("s_lshr_b32 s10, s6, 1")
    g("s_and_b32 s11, s6, 1")
    g("s_mul_i32 s12, s8, 288")
    g("s_lshl_b32 s10, s10, 5")
    g("s_add_u32 s12, s12, s10")
    g("v_lshrrev_b32 v3, 4, v1")
    g("v_lshlrev_b32 v3, 3, v3")
    g("v_add_u32 v3, s12, v3")
    g("s_lshl_b32 s13, s7, 1")
    g("s_add_u32 s13, s13, s11")
    g("s_mul_i32 s13, s13, 36864")
    g("v_and_b32 v4, 15, v1")
    g("v_mul_u32_u24 v4, 1152, v4")
    g("v_add_u32 v4, v4, v3")
    g("s_add_u32 s14, s13, 18432")
    g("buffer_load_dwordx2 v[40:41], v3, s[28:31], 0 offen")
    g("buffer_load_dwordx2 v[42:43], v4, s[24:27], s13 offen")
    g("buffer_load_dwordx2 v[44:45], v4, s[24:27], s14 offen")
    g("s_waitcnt vmcnt(0)")
    def unpack(dst, src):
        g(f"v_lshlrev_b32 v{dst}, 16, v{src}")
        g(f"v_and_b32 v{dst+1}, 0xffff0000, v{src}")
    for d in range(4):
        unpack(48 + 2 * d, 8 + d)
    for fs in range(1, 8):
        for d in range(4):
            unpack(56, 8 + 4 * fs + d)
            g(f"v_pk_add_f32 {vr(48+2*d,2)}, {vr(48+2*d,2)}, v[56:57]")
    for d in range(4):
        unpack(56, 40 + (d & 1))
        g(f"v_pk_add_f32 {vr(48+2*d,2)}, {vr(48+2*d,2)}, v[56:57]")
        unpack(56, 42 + d)
        g(f"v_pk_add_f32 {vr(48+2*d,2)}, {vr(48+2*d,2)}, v[56:57]")
    for d in range(4):
        g(f"v_cvt_pk_bf16_f32 v{60+d}, v{48+2*d}, v{49+2*d}")
    g("buffer_store_dwordx2 v[60:61], v4, s[32:35], s13 offen")
    g("buffer_store_dwordx2 v[62:63], v4, s[32:35], s14 offen")
    if opts.get("stamp"):
        g("s_waitcnt vmcnt(0)")
        g("s_memrealtime s[42:43]")
        g("s_waitcnt lgkmcnt(0)")
        g("v_mov_b32 v8, s40")
        g("v_mov_b32 v9, s42")
        g("v_mov_b32 v2, 0")
        g("s_lshl_b32 s4, s4, 3")
        g(f"s_add_u32 s4, s4, {WS_DBG + (1<<20) + (2<<18)}")
        g("s_mov_b64 exec, 1")
        g("buffer_store_dwordx2 v[8:9], v2, s[36:39], s4 offen")
    g.label("LR_end")
    g("s_endpgm")
    for u in range(2304):
        assert (u * 3641) >> 16 == u // 18
    return f"""
.globl {name}
.p2align 8
.type {name},@function
{name}:
{g.text()}
"""


def kd(name, vgpr, sgpr=100):
    return f"""
.p2align 6
.amdhsa_kernel {name}
  .amdhsa_next_free_vgpr {vgpr}
  .amdhsa_next_free_sgpr {sgpr}
  .amdhsa_accum_offset {vgpr}
  .amdhsa_group_segment_fixed_size 0
  .amdhsa_kernarg_size 104
  .amdhsa_user_sgpr_count 2
  .amdhsa_user_sgpr_kernarg_segment_ptr 1
  .amdhsa_system_sgpr_workgroup_id_x 1
.end_amdhsa_kernel
"""


def build(mode):
    hdr = []
    body = []
    kds = []
    def add(name, code, grid, block, lds, vgpr):
        hdr.append(f"; @launch kernel={name} grid=({grid},1,1) block=({block},1,1) lds={lds}")
        body.append(code)
        kds.append(kd(name, vgpr))
    o = dict(tag="M", publish=True, inkernel=True)
    for m in mode.split(","):
        if "=" in m:
            k, v = m.split("="); o[k] = int(v)
        elif m: o[m] = True
    add("main_kernel", main_kernel("main_kernel", o), 256, 512, LDS_SIZE, 256)
    if not o.get("fuse"):
        add("reduce_kernel", reduce_kernel("reduce_kernel", o), 576, 256, 0, 64)
    out = "\n".join(hdr) + '\n.amdgcn_target "amdgcn-amd-amdhsa--gfx950"\n.text\n' + "\n".join(body) + '\n.section .rodata,"a"\n' + "\n".join(kds)
    return out


if __name__ == "__main__":
    mode = sys.argv[1]
    open(sys.argv[2], "w").write(build(mode))
```

```python
import sys, struct, math

KN = "parallel_sum__grouped_kv_mqa__dense_activation_squared_relu__prompt"

XH = 0
WR = 73728
KVR = 147456
OREG = 147456
OSTR = 224
FLAGS = 163712
LDS_SIZE = 163840
QST = 73728
F_KV = FLAGS
F_X = FLAGS + 16
F_O = FLAGS + 32
F_G = FLAGS + 48
F_P = FLAGS + 64
F_R = FLAGS + 80
TILE_B = 2432
VH_B = 640
VG_B = 320
VSCR = 160768
PQ_B = 3584
CHUNK_B = 2 * TILE_B
WS_KV = 0
WS_FLAG = 512 << 10
WS_PART = 1 << 20
WS_DBG = 24 << 20
WS_SIZE = 32 << 20

def f32bits(x):
    return struct.unpack("<I", struct.pack("<f", x))[0]

CSCALE = math.log2(math.e) / math.sqrt(18.0)
HEAD = 40
LTHR = 2.0 ** 60


class G:
    def __init__(s):
        s.lines = []
        s.uid = 0
    def __call__(s, t):
        s.lines.append("    " + t)
    def label(s, l):
        s.lines.append(l + ":")
    def c(s, t):
        s.lines.append("    ; " + t)
    def new(s, p):
        s.uid += 1
        return f"L_{p}_{s.uid}"
    def text(s):
        return "\n".join(s.lines)


def vr(a, n):
    return f"v[{a}:{a+n-1}]"

S_RB, S_FS, S_WV, S_W4 = 4, 5, 6, 7
P_X, P_WQ, P_WK, P_WV, P_WO, P_BX, P_W1, P_B1, P_W2, P_B2, P_OUT, P_DBG, P_WS = [16 + 2 * i for i in range(13)]
SRD_X, SRD_WQ, SRD_W1, SRD_W2, SRD_WO, SRD_B1, SRD_WS, SRD_WK, SRD_WVV = 44, 48, 52, 56, 60, 64, 68, 72, 76
SRD_DBG = 12
S_SH = 3
S_LO = 80
S_HI = 82


def srd(g, d, p, nbytes):
    g(f"s_mov_b32 s{d}, s{p}")
    g(f"s_and_b32 s{d+1}, s{p+1}, 0xffff")
    g(f"s_mov_b32 s{d+2}, {nbytes}")
    g(f"s_mov_b32 s{d+3}, 0x00020000")

def sr(d):
    return f"s[{d}:{d+3}]"


def flag_wait(g, vaddr, vtmp, thr, name):
    L = g.new(name)
    Ld = g.new(name + "d")
    g.label(L)
    g(f"ds_read_b32 v{vtmp}, v{vaddr}")
    g("s_waitcnt lgkmcnt(0)")
    g(f"v_cmp_gt_u32 vcc, {thr}, v{vtmp}")
    g("s_nop 4")
    g(f"s_cbranch_vccz {Ld}")
    g("s_sleep 1")
    g(f"s_branch {L}")
    g.label(Ld)


def stamp(g, opts, idx):
    if not opts.get("stamp"):
        return
    g("s_memrealtime s[96:97]")
    g("s_waitcnt lgkmcnt(0)")
    g(f"v_writelane_b32 v254, s96, {idx}")


def cstamp(g, opts, idx):
    if not opts.get("stamp"):
        return
    g("s_memtime s[96:97]")
    g("s_waitcnt lgkmcnt(0)")
    g(f"v_writelane_b32 v254, s96, {idx}")


def stamp_flush(g, opts):
    if not opts.get("stamp"):
        return
    stamp(g, opts, 15)
    g("s_memtime s[96:97]")
    g("s_waitcnt lgkmcnt(0)")
    g(f"v_writelane_b32 v254, s96, 14")
    base = WS_DBG + (1 << 20) + (0 if opts["tag"] == "K" else (1 << 18))
    g("s_lshl_b32 s98, s2, 3")
    g(f"s_add_u32 s98, s98, s{S_WV}")
    g("s_lshl_b32 s98, s98, 6")
    g(f"s_add_u32 s98, s98, {base}")
    g("v_lshlrev_b32 v253, 2, v1")
    g("s_mov_b64 exec, 0xffff")
    g(f"buffer_store_dword v254, v253, {sr(SRD_WS)}, s98 offen")
    g("s_mov_b64 exec, -1")
    g("s_waitcnt vmcnt(0)")


def head(g, opts):
    g("s_cmp_ge_u32 s2, 256")
    g("s_cbranch_scc1 L_end")
    if opts.get("stamp"):
        g("v_mov_b32 v254, 0")
    stamp(g, opts, 0)
    cstamp(g, opts, 13)
    g("s_load_dwordx16 s[16:31], s[0:1], 0")
    g("s_load_dwordx8 s[32:39], s[0:1], 64")
    g("s_load_dwordx2 s[40:41], s[0:1], 96")
    g("v_and_b32 v1, 63, v0")
    g("v_lshrrev_b32 v2, 6, v0")
    if opts.get("map2"):
        g("s_lshr_b32 s8, s2, 3")
        g("s_and_b32 s9, s2, 3")
        g("s_lshl_b32 s9, s9, 1")
        g("s_and_b32 s10, s8, 1")
        g(f"s_add_u32 s{S_FS}, s9, s10")
        g("s_bfe_u32 s9, s2, 0x10002")
        g("s_lshl_b32 s9, s9, 4")
        g("s_lshr_b32 s10, s8, 1")
        g(f"s_add_u32 s{S_RB}, s9, s10")
    else:
        g(f"s_lshr_b32 s{S_RB}, s2, 3")
        g(f"s_and_b32 s{S_FS}, s2, 7")
    g(f"v_readfirstlane_b32 s{S_WV}, v2")
    g(f"s_mov_b32 s{S_LO}, -1")
    g(f"s_mov_b32 s{S_LO+1}, 0")
    g(f"s_mov_b32 s{S_HI}, 0")
    g(f"s_mov_b32 s{S_HI+1}, -1")
    g(f"s_and_b32 s{S_W4}, s{S_WV}, 3")
    if opts.get("map2"):
        g(f"s_and_b32 s{S_SH}, s{S_RB}, 15")
    else:
        g(f"s_mov_b32 s{S_SH}, s{S_RB}")
    g("s_waitcnt lgkmcnt(0)")
    srd(g, SRD_X, P_X, 2359296)
    srd(g, SRD_WS, P_WS, WS_SIZE)


def touch_w1(g, opts):
    if opts.get("nopf"):
        return
    g("v_min_u32 v5, 53, v1")
    g("v_mul_u32_u24 v6, 7282, v5")
    g("v_lshrrev_b32 v6, 16, v6")
    g("v_mul_u32_u24 v7, 9, v6")
    g("v_sub_u32 v7, v5, v7")
    g(f"s_mov_b32 s10, {32*9216}")
    g("v_mul_lo_u32 v6, v6, s10")
    g("v_lshl_add_u32 v5, v7, 7, v6")
    g(f"s_min_u32 s9, s{S_W4}, 2")
    g("s_mul_i32 s9, s9, 192")
    g(f"s_add_u32 s9, s9, s{S_RB}")
    g("s_mul_i32 s9, s9, 9216")
    g(f"s_mul_i32 s10, s{S_FS}, 1152")
    g("s_add_u32 s9, s9, s10")
    g(f"buffer_load_dword v251, v5, {sr(SRD_W1)}, s9 offen")


def touches(g, opts):
    if opts.get("nopf"):
        return
    L1, Ld = g.new("tc"), g.new("tcd")
    g(f"s_cmp_ge_u32 s{S_W4}, 2")
    g(f"s_cbranch_scc1 {Ld}")
    g(f"s_cmp_lg_u32 s{S_W4}, 0")
    g(f"s_cbranch_scc1 {L1}")
    srd(g, SRD_WQ, P_WQ, 663552)
    g("v_min_u32 v5, 53, v1")
    g("v_mul_u32_u24 v6, 21846, v5")
    g("v_lshrrev_b32 v6, 16, v6")
    g("v_mul_u32_u24 v7, 3, v6")
    g("v_sub_u32 v7, v5, v7")
    g("v_mul_u32_u24 v6, 1152, v6")
    g("v_lshl_add_u32 v6, v7, 6, v6")
    g(f"s_mul_i32 s9, s{S_RB}, {18*1152}")
    g(f"s_mul_i32 s10, s{S_FS}, 144")
    g("s_add_u32 s9, s9, s10")
    g(f"buffer_load_dword v252, v6, {sr(SRD_WQ)}, s9 offen offset:12")
    g(f"s_branch {Ld}")
    g.label(L1)
    srd(g, SRD_WO, P_WO, 663552)
    g("v_min_u32 v6, 26, v1")
    g("v_lshlrev_b32 v6, 7, v6")
    g(f"s_mul_i32 s9, s{S_FS}, {72*1152}")
    g(f"s_mul_i32 s10, s{S_RB}, 3456")
    g("s_add_u32 s9, s9, s10")
    g(f"buffer_load_dword v252, v6, {sr(SRD_WO)}, s9 offen")
    g.label(Ld)


def ln_load(g, X, srow):
    g(f"s_lshl_b32 s8, s{S_RB}, 6")
    g(f"s_add_u32 s8, s8, s{srow}")
    g("s_mul_i32 s8, s8, 1152")
    for i in range(9):
        g(f"buffer_load_dwordx4 {vr(X+4*i,4)}, v4, {sr(SRD_X)}, s8 offen offset:{i*128}")


def ln_addr(g, A, srow):
    g(f"v_add_u32 v5, s{srow}, v2")
    g("v_bfe_u32 v6, v5, 1, 3")
    g("v_lshrrev_b32 v7, 2, v3")
    g("v_lshlrev_b32 v7, 2, v7")
    g(f"v_and_b32 v{A}, 1, v3")
    g(f"v_lshl_add_u32 v7, v{A}, 1, v7")
    g("v_xor_b32 v7, v7, v6")
    g(f"v_mul_u32_u24 v{A}, 1152, v5")
    g(f"v_lshl_add_u32 v{A}, v7, 4, v{A}")
    g("v_bfe_u32 v7, v3, 1, 1")
    g(f"v_lshl_add_u32 v{A}, v7, 3, v{A}")
    g(f"v_xor_b32 v{A+1}, 16, v{A}")


def ln_compute(g, X):
    for r in range(52, 56):
        g(f"v_mov_b32 v{r}, 0")
    g("s_mov_b32 s9, 0x3f803f80")
    for n in range(36):
        g(f"v_dot2c_f32_bf16 v{52 + (n&1)}, s9, v{X+n}")
        g(f"v_dot2c_f32_bf16 v{54 + (n&1)}, v{X+n}, v{X+n}")
    g("s_nop 3")
    g("v_add_f32 v52, v52, v53")
    g("v_add_f32 v54, v54, v55")
    for pat in ("quad_perm:[1,0,3,2]", "quad_perm:[2,3,0,1]", "row_half_mirror"):
        g("s_nop 1")
        g(f"v_add_f32_dpp v52, v52, v52 {pat} row_mask:0xf bank_mask:0xf")
        g(f"v_add_f32_dpp v54, v54, v54 {pat} row_mask:0xf bank_mask:0xf")
    g(f"s_mov_b32 s9, {f32bits(1.0/576.0)}")
    g("v_mul_f32 v52, s9, v52")
    g("v_mul_f32 v54, s9, v54")
    g("v_fma_f32 v54, -v52, v52, v54")
    g("v_max_f32 v54, 0, v54")
    g(f"v_add_f32 v54, {f32bits(1e-5)}, v54")
    g("v_rsq_f32 v56, v54")
    g("s_nop 0")
    g("v_mov_b32 v57, v56")
    g("v_mul_f32 v58, v52, v56")
    g("v_sub_f32 v58, 0, v58")
    g("v_mov_b32 v59, v58")
    for n in range(36):
        t = 60 + 2 * (n % 4)
        g(f"v_lshlrev_b32 v{t}, 16, v{X+n}")
        g(f"v_and_b32 v{t+1}, 0xffff0000, v{X+n}")
        g(f"v_pk_fma_f32 {vr(t,2)}, {vr(t,2)}, v[56:57], v[58:59]")
        g(f"v_cvt_pk_bf16_f32 v{X+n}, v{t}, v{t+1}")


def ln_write(g, X, A):
    for i in range(9):
        g(f"ds_write_b64 v{A}, {vr(X+4*i,2)} offset:{i*128}")
        g(f"ds_write_b64 v{A+1}, {vr(X+2+4*i,2)} offset:{i*128}")


def ln_lane_setup(g):
    g("v_lshrrev_b32 v2, 3, v1")
    g("v_and_b32 v3, 7, v1")
    g("v_mul_u32_u24 v4, 1152, v2")
    g("v_lshl_add_u32 v4, v3, 4, v4")


def a_layernorm(g, opts):
    XS = [8, 68]
    ln_lane_setup(g)
    g(f"s_lshl_b32 s11, s{S_W4}, 4")
    g("s_add_u32 s12, s11, 8")
    if opts.get("asleep"):
        g(f"s_sleep {opts['asleep']}")
    ln_load(g, XS[0], 11)
    ln_load(g, XS[1], 12)
    ln_addr(g, 44, 11)
    ln_addr(g, 46, 12)
    g("v_and_b32 v48, 3, v1")
    g("v_lshlrev_b32 v48, 2, v48")
    g(f"v_add_u32 v48, {F_P}, v48")
    g("s_waitcnt vmcnt(9)")
    stamp(g, opts, 1)
    ln_compute(g, XS[0])
    g("s_waitcnt vmcnt(0)")
    ln_compute(g, XS[1])
    flag_wait(g, 48, 49, 2, "kvw")
    ln_write(g, XS[0], 44)
    ln_write(g, XS[1], 46)
    g("s_waitcnt lgkmcnt(0)")
    stamp(g, opts, 9)
    g("s_barrier")
    stamp(g, opts, 2)


def f_kv(g, opts):
    aux = " sc1"
    ln_lane_setup(g)
    g(f"s_lshr_b32 s13, s{S_FS}, 1")
    g("s_lshl_b32 s11, s13, 4")
    g(f"s_lshl_b32 s12, s{S_W4}, 3")
    g("s_add_u32 s11, s11, s12")
    ln_load(g, 8, 11)
    ln_addr(g, 44, 11)
    g("v_and_b32 v48, 3, v1")
    g("v_lshlrev_b32 v48, 2, v48")
    g(f"v_add_u32 v48, {F_P}, v48")
    g(f"s_lshl_b32 s9, s{S_W4}, 2")
    g(f"s_add_u32 s9, s9, {F_P}")
    g("v_mov_b32 v47, s9")
    g("v_and_b32 v5, 15, v1")
    g("v_lshrrev_b32 v6, 4, v1")
    g("v_bfe_u32 v7, v5, 1, 3")
    g("v_xor_b32 v7, v7, v6")
    g("v_mul_u32_u24 v70, 1152, v5")
    g("s_mul_i32 s9, s13, 18432")
    g("v_add_u32 v70, s9, v70")
    g("v_xor_b32 v71, 4, v7")
    g("v_lshl_add_u32 v71, v71, 4, v70")
    g("v_lshl_add_u32 v70, v7, 4, v70")
    g("v_lshrrev_b32 v7, 2, v1")
    g("v_mul_u32_u24 v72, 48, v7")
    g("v_and_b32 v7, 3, v1")
    g("v_lshlrev_b32 v7, 3, v7")
    g(f"s_cmp_lg_u32 s{S_W4}, 0")
    g("s_cselect_b64 vcc, -1, 0")
    g("v_cndmask_b32 v7, v7, 40, vcc")
    g("v_add_u32 v72, v72, v7")
    g("s_cmp_lt_u32 s13, 2")
    g("s_cselect_b32 s9, 36864, 0")
    g("v_add_u32 v72, s9, v72")
    g("s_waitcnt vmcnt(0)")
    stamp(g, opts, 10)
    ln_compute(g, 8)
    ln_write(g, 8, 44)
    g("v_mov_b32 v46, 1")
    g("s_waitcnt lgkmcnt(0)")
    g("ds_write_b32 v47, v46")
    flag_wait(g, 48, 49, 1, "kvr")
    def rd(kk):
        b = 80 + 8 * (kk % 3)
        return [f"ds_read_b64_tr_b16 {vr(b,2)}, v72 offset:{kk*1536}",
                f"ds_read_b64_tr_b16 {vr(b+2,2)}, v72 offset:{kk*1536+768}",
                f"ds_read_b128 {vr(b+4,4)}, v{70+(kk&1)} offset:{XH + (kk>>1)*128}"]
    LVv, Lj = g.new("kv_v"), g.new("kv_j")
    g(f"s_bitcmp1_b32 s{S_FS}, 0")
    g(f"s_cbranch_scc1 {LVv}")
    for isv in range(2):
        if isv:
            g.label(LVv)
        for l in rd(0) + rd(1): g(l)
        for kk in range(18):
            if kk + 2 < 18:
                for l in rd(kk + 2): g(l)
                g("s_waitcnt lgkmcnt(6)")
            else:
                g(f"s_waitcnt lgkmcnt({3 if kk == 16 else 0})")
            b = 80 + 8 * (kk % 3)
            A, B = (vr(b+4,4), vr(b,4)) if isv else (vr(b,4), vr(b+4,4))
            g(f"v_mfma_f32_16x16x32_bf16 v[76:79], {A}, {B}, {'0' if kk == 0 else 'v[76:79]'}")
        if not isv:
            g(f"s_branch {Lj}")
    g.label(Lj)
    g("v_mov_b32 v46, 2")
    g("ds_write_b32 v47, v46")
    g(f"s_lshl_b32 s9, s{S_RB}, 1")
    g("s_lshr_b32 s10, s13, 1")
    g("s_add_u32 s9, s9, s10")
    g(f"s_mul_i32 s9, s9, {TILE_B}")
    g(f"s_add_u32 s9, s9, {WS_KV}")
    g("s_and_b32 s12, s13, 1")
    g("s_nop 4")
    g("v_cvt_pk_bf16_f32 v76, v76, v77")
    g("v_cvt_pk_bf16_f32 v77, v78, v79")
    Lc = [g.new("kvp") for _ in range(4)]
    g(f"s_bitcmp1_b32 s{S_FS}, 0")
    g(f"s_cbranch_scc1 {Lc[1]}")
    g("s_lshl_b32 s10, s12, 4")
    g("v_add_u32 v7, s10, v5")
    g(f"s_cmp_lg_u32 s{S_W4}, 0")
    g(f"s_cbranch_scc1 {Lc[0]}")
    g("v_lshrrev_b32 v2, 1, v6")
    g("v_lshl_add_u32 v7, v2, 5, v7")
    g("v_lshlrev_b32 v7, 4, v7")
    g("v_and_b32 v2, 1, v6")
    g("v_lshl_add_u32 v7, v2, 3, v7")
    g(f"buffer_store_dwordx2 v[76:77], v7, {sr(SRD_WS)}, s9 offen{aux}")
    g(f"s_branch {Lc[3]}")
    g.label(Lc[0])
    g("v_lshlrev_b32 v7, 2, v7")
    g("s_mov_b64 exec, 0xffff")
    g(f"buffer_store_dword v77, v7, {sr(SRD_WS)}, s9 offen offset:1024{aux}")
    g("s_mov_b64 exec, -1")
    g(f"s_branch {Lc[3]}")
    g.label(Lc[1])
    g(f"s_mul_i32 s10, s12, {VH_B}")
    g("s_add_u32 s9, s9, s10")
    g("v_and_b32 v2, 1, v6")
    g(f"v_mul_u32_u24 v7, {VG_B}, v2")
    g("v_lshl_add_u32 v7, v5, 4, v7")
    g("v_lshrrev_b32 v2, 1, v6")
    g("v_lshl_add_u32 v7, v2, 3, v7")
    g(f"s_cmp_lg_u32 s{S_W4}, 0")
    g(f"s_cbranch_scc1 {Lc[2]}")
    g(f"buffer_store_dwordx2 v[76:77], v7, {sr(SRD_WS)}, s9 offen offset:1152{aux}")
    g(f"s_branch {Lc[3]}")
    g.label(Lc[2])
    g("v_mov_b32 v2, 0x3f803f80")
    g("v_cmp_eq_u32 vcc, 4, v5")
    g("s_nop 1")
    g("v_cndmask_b32 v76, v76, v2, vcc")
    g("v_cndmask_b32 v77, v77, v2, vcc")
    g("v_cmp_eq_u32 vcc, 5, v5")
    g("s_nop 1")
    g("v_cndmask_b32 v76, v76, 0, vcc")
    g("v_cndmask_b32 v77, v77, 0, vcc")
    g("s_mov_b32 exec_lo, 0x003c003c")
    g("s_mov_b32 exec_hi, 0x003c003c")
    g(f"buffer_store_dwordx2 v[76:77], v7, {sr(SRD_WS)}, s9 offen offset:{1152+14*16}{aux}")
    g("s_mov_b64 exec, -1")
    g.label(Lc[3])
    if opts.get("fuse"):
        Lz = g.new("kvz")
        g(f"s_add_u32 s9, s{S_FS}, s{S_W4}")
        g("s_cmp_lg_u32 s9, 0")
        g(f"s_cbranch_scc1 {Lz}")
        g(f"s_lshl_b32 s9, s{S_RB}, 7")
        g(f"s_add_u32 s9, s9, {WS_FLAG}")
        g("v_mov_b32 v2, 0")
        g("s_mov_b64 exec, 1")
        g(f"buffer_store_dword v2, v2, {sr(SRD_WS)}, s9 offen sc1")
        g("s_mov_b64 exec, -1")
        g.label(Lz)
    g("s_waitcnt vmcnt(0)")
    stamp(g, opts, 11)
    Lw1, Lad = g.new("arr1"), g.new("arrd")
    g(f"s_cmp_lg_u32 s{S_W4}, 0")
    g(f"s_cbranch_scc1 {Lw1}")
    g(f"v_mov_b32 v48, {F_P + 4}")
    flag_wait(g, 48, 49, 3, "arr")
    srd(g, SRD_DBG, P_DBG, 256)
    g("v_mov_b32 v249, 0")
    g("v_mov_b32 v250, 1")
    g("s_mov_b64 exec, 1")
    g(f"buffer_atomic_add v250, v249, {sr(SRD_DBG)}, 0 offen sc0 sc1")
    g(f"s_branch {Lad}")
    g.label(Lw1)
    g("v_mov_b32 v46, 3")
    g("ds_write_b32 v47, v46")
    g.label(Lad)
    g("s_mov_b64 exec, -1")


def f_stage(g, opts):
    g(f"s_bitcmp1_b32 s{S_FS}, 0")
    g(f"s_cselect_b32 s{SRD_WK}, s{P_WV}, s{P_WK}")
    g(f"s_cselect_b32 s{SRD_WK+1}, s{P_WV+1}, s{P_WK+1}")
    g(f"s_and_b32 s{SRD_WK+1}, s{SRD_WK+1}, 0xffff")
    g(f"s_mov_b32 s{SRD_WK+2}, 20736")
    g(f"s_mov_b32 s{SRD_WK+3}, 0x00020000")
    for j in range(3):
        g(f"v_add_u32 v5, {64*j}, v1")
        g("v_mul_u32_u24 v6, 21846, v5")
        g("v_lshrrev_b32 v6, 16, v6")
        g("v_mul_u32_u24 v7, 3, v6")
        g("v_sub_u32 v7, v5, v7")
        g("v_lshlrev_b32 v7, 4, v7")
        g("v_min_u32 v7, 20, v7")
        g(f"v_mad_u32_u24 v{44+j}, v6, 36, v7")
    g(f"s_lshr_b32 s13, s{S_FS}, 1")
    g("s_cmp_lt_u32 s13, 2")
    g("s_cselect_b32 s12, 36864, 0")
    g(f"s_and_b32 s11, s{S_W4}, 1")
    for n in range(5):
        Ls = g.new("kws")
        if n == 4:
            g("s_cmp_lg_u32 s11, 0")
            g(f"s_cbranch_scc1 {Ls}")
        g(f"s_add_u32 s14, s11, {2*n}")
        g(f"s_mul_i32 s9, s14, {64*36}")
        g("s_mul_i32 s10, s14, 3072")
        g("s_add_u32 s10, s10, s12")
        for j in range(3):
            g(f"s_add_u32 m0, s10, {j*1024}")
            g("s_nop 0")
            g(f"buffer_load_dwordx4 v{44+j}, {sr(SRD_WK)}, s9 offen lds")
        g.label(Ls)
    for j in range(9):
        g(f"v_add_u32 v5, {64*j}, v1")
        g("v_mul_u32_u24 v6, 7282, v5")
        g("v_lshrrev_b32 v6, 16, v6")
        g("v_mul_u32_u24 v7, 9, v6")
        g("v_sub_u32 v7, v5, v7")
        g("v_mul_u32_u24 v6, 1152, v6")
        g(f"v_lshl_add_u32 v{50+j}, v7, 4, v6")
        if j % 4:
            g(f"v_subrev_u32 v{50+j}, {(j%4)*1024}, v{50+j}")
    g(f"s_lshl_b32 s9, s{S_W4}, 2")
    g(f"s_add_u32 s9, s9, {F_P}")
    g("v_mov_b32 v47, s9")
    g("v_mov_b32 v46, 2")
    g("s_waitcnt vmcnt(0)")
    g("ds_write_b32 v47, v46")
    stamp(g, opts, 10)
    g(f"s_mul_i32 s12, s{S_FS}, 144")
    for n in range(5):
        Ls = g.new("qs")
        if n == 4:
            g("s_cmp_lg_u32 s11, 0")
            g(f"s_cbranch_scc1 {Ls}")
        g(f"s_add_u32 s14, s11, {2*n}")
        g(f"s_mul_i32 s9, s14, {64*1152}")
        g("s_add_u32 s9, s9, s12")
        g("s_mul_i32 s10, s14, 9216")
        g(f"s_add_u32 s10, s10, {QST}")
        for j in range(9):
            if j % 4 == 0:
                g(f"s_add_u32 m0, s10, {(j//4)*4096}")
                g("s_nop 0")
            g(f"buffer_load_dwordx4 v{50+j}, {sr(SRD_WQ)}, s9 offen offset:{(j%4)*1024} lds")
        g.label(Ls)
    stamp(g, opts, 11)


A_Q1 = [16, 20]
A_Q2 = [24, 28]
A_S = [32, 48]
A_P = [64, 72]
A_O = [80, 96]
def A_KV(st, u):
    return 112 + (st * 2 + u) * 16
A_M = [176, 177]
A_AK1, A_AK2, A_AV = 178, 179, 180
A_AFL, A_FLD, A_FLW = 181, 182, 183
A_DV0, A_DV1 = 184, 185
A_T = 186
A_FV = 200
QW = 128
QX = 236


def q_phase(g, opts):
    QA = [32, 48]
    AB = [112, 120]
    BB = [128, 144]
    def reads(kk):
        b = kk & 1
        off = kk * 4608
        st = 0
        if off >= 65536 - 4608:
            off -= 13 * 4608; st = 1
        L = []
        for m in range(2):
            for jh in range(2):
                L.append(f"ds_read_b64_tr_b16 {vr(AB[b]+m*4+jh*2,2)}, v{Q_VTA+st} offset:{off + (m*8+jh*16)*144}")
            for rt in range(2):
                L.append(f"ds_read_b128 {vr(BB[b]+(rt*2+m)*4,4)}, v{Q_VBA+(kk&1)*2+m} offset:{XH + rt*36864 + (kk>>1)*128}")
        return L
    def mfmas(kk):
        b = kk & 1
        L = []
        for m in range(2):
            for rt in range(2):
                c = "0" if (kk == 0 and m == 0) else vr(QA[rt], 16)
                L.append(f"v_mfma_f32_32x32x16_bf16 {vr(QA[rt],16)}, {vr(AB[b]+m*4,4)}, {vr(BB[b]+(rt*2+m)*4,4)}, {c}")
        return L
    for l in reads(0): g(l)
    for l in reads(1): g(l)
    for kk in range(18):
        g("s_waitcnt lgkmcnt(8)" if kk < 16 else "s_waitcnt lgkmcnt(8)" if kk == 16 else "s_waitcnt lgkmcnt(0)")
        if kk == 15:
            g(f"ds_write_b32 v{A_FLW}, v{A_FV}")
        mf = mfmas(kk)
        rd = reads(kk + 2) if kk + 2 < 18 else []
        g(mf[0]); g(mf[1])
        for l in rd[:2]: g(l)
        g(mf[2])
        for l in rd[2:4]: g(l)
        g(mf[3])
        for l in rd[4:]: g(l)
    g(f"s_mov_b32 s9, {f32bits(CSCALE)}")
    g("s_nop 15")
    for rt in range(2):
        for r in range(16):
            g(f"v_mul_f32 v{QA[rt]+r}, s9, v{QA[rt]+r}")
    Lodd, Lqd = g.new("odd"), g.new("qdone")
    g(f"s_bitcmp1_b32 s{S_W4}, 0")
    g(f"s_cbranch_scc1 {Lodd}")
    for odd in range(2):
        if odd:
            g.label(Lodd)
        for rt in range(2):
            q = QA[rt] + 2 * odd
            for p in range(4):
                g(f"v_cvt_pk_bf16_f32 v{A_Q1[rt]+p}, v{q+2*p}, v{q+2*p+1}")
            t = QA[rt] + (14 if odd else 8)
            g(f"v_cvt_pk_bf16_f32 v{A_T+8}, v{t}, v{t+1}")
            g(f"v_cndmask_b32 v{A_Q2[rt]}, 0, v{A_T+8}, s[{S_LO}:{S_LO+1}]")
        if not odd:
            g(f"s_branch {Lqd}")
    g.label(Lqd)
    for rt in range(2):
        for p in range(1, 4):
            g(f"v_mov_b32 v{A_Q2[rt]+p}, 0")


Q_VBA = 160
Q_VTA = 164
def q_setup(g, opts):
    g("v_and_b32 v2, 31, v1")
    g("v_lshrrev_b32 v3, 5, v1")
    g("v_bfe_u32 v4, v2, 1, 3")
    g("v_xor_b32 v4, v4, v3")
    g("v_mul_u32_u24 v5, 1152, v2")
    for e in range(2):
        for m in range(2):
            g(f"v_xor_b32 v6, {4*e+2*m}, v4")
            g(f"v_lshl_add_u32 v{Q_VBA+e*2+m}, v6, 4, v5")
    g("v_bfe_u32 v4, v1, 2, 2")
    g("v_lshl_add_u32 v4, v3, 2, v4")
    g("v_bfe_u32 v5, v1, 4, 1")
    g("v_and_b32 v6, 3, v1")
    g("v_lshl_add_u32 v5, v5, 2, v6")
    g(f"s_mul_i32 s9, s{S_W4}, 36")
    g(f"s_and_b32 s10, s{S_W4}, 1")
    g("s_lshl_b32 s10, s10, 2")
    g("s_sub_u32 s9, s9, s10")
    g(f"s_add_u32 s9, s9, {QST}")
    tbl_e = sum(v << (4*i) for i, v in enumerate([0,2,1,3,4,4,4,4]))
    tbl_o = sum(v << (4*i) for i, v in enumerate([0,2,1,3,2,4,4,4]))
    g(f"s_mov_b32 s11, {tbl_e}")
    g("s_cmp_lg_u32 s10, 0")
    g(f"s_cselect_b32 s11, {tbl_o}, s11")
    g("v_lshlrev_b32 v5, 2, v5")
    g("v_bfe_u32 v5, s11, v5, 4")
    g("v_lshlrev_b32 v6, 3, v5")
    g("v_add_u32 v6, s9, v6")
    g("v_mul_u32_u24 v4, 144, v4")
    g(f"v_add_u32 v{Q_VTA}, v4, v6")
    g(f"v_add_u32 v{Q_VTA+1}, {13*4608}, v{Q_VTA}")
    g("v_and_b32 v4, 3, v1")
    g("v_lshlrev_b32 v4, 2, v4")
    g(f"v_add_u32 v{A_AFL}, {F_KV}, v4")
    g(f"s_lshl_b32 s9, s{S_W4}, 2")
    g(f"s_add_u32 s9, s9, {F_KV}")
    g(f"v_mov_b32 v{A_FLW}, s9")
    g(f"v_mov_b32 v{A_FV}, 1")


def global_kv_sync(g, opts):
    Ln = g.new("gsn")
    g(f"v_mov_b32 v2, {F_G}")
    g(f"s_cmp_lg_u32 s{S_W4}, 0")
    g(f"s_cbranch_scc1 {Ln}")
    srd(g, SRD_DBG, P_DBG, 256)
    g("v_mov_b32 v3, 0")
    g("v_mov_b32 v4, 1")
    Lp, Ld = g.new("gpoll"), g.new("gpolld")
    g.label(Lp)
    g(f"buffer_load_dword v5, v3, {sr(SRD_DBG)}, 0 offen offset:128 sc1")
    g("s_waitcnt vmcnt(0)")
    g("v_cmp_ne_u32 vcc, 1, v5")
    g("s_nop 4")
    g(f"s_cbranch_vccz {Ld}")
    g(f"s_sleep {opts.get('psleep', 4)}")
    g(f"s_branch {Lp}")
    g.label(Ld)
    flag_wait(g, A_AFL, A_FLD, 2, "gsa")
    g("ds_write_b32 v2, v4")
    g.label(Ln)
    flag_wait(g, 2, A_FLD, 1, "gsb")


from gen_attn import attention
from gen_ffn import ffn, ffn_setup


def main_kernel(name, opts):
    g = G()
    me = sys.modules[__name__]
    head(g, opts)
    Lfl = g.new("noflag")
    g(f"s_cmp_lg_u32 s{S_WV}, 0")
    g(f"s_cbranch_scc1 {Lfl}")
    g("v_lshlrev_b32 v5, 2, v1")
    g("v_and_b32 v5, 127, v5")
    g(f"v_add_u32 v5, {FLAGS}, v5")
    g("v_mov_b32 v6, 0")
    g("ds_write_b32 v5, v6")
    g("s_waitcnt lgkmcnt(0)")
    g.label(Lfl)
    g("s_barrier")
    Lf = g.new("fwaves")
    g(f"s_cmp_ge_u32 s{S_WV}, 4")
    g(f"s_cbranch_scc1 {Lf}")
    touches(g, opts)
    q_setup(g, opts)
    a_layernorm(g, opts)
    q_phase(g, opts)
    stamp(g, opts, 3)
    attention(g, opts, me)
    stamp_flush(g, opts)
    g("s_branch L_end")
    g.label(Lf)
    g("s_setprio 3")
    srd(g, SRD_WQ, P_WQ, 663552)
    Lst, Lfj = g.new("fstage"), g.new("fjoin")
    g(f"s_cmp_ge_u32 s{S_W4}, 2")
    g(f"s_cbranch_scc1 {Lst}")
    f_kv(g, opts)
    g(f"s_branch {Lfj}")
    g.label(Lst)
    f_stage(g, opts)
    g.label(Lfj)
    g("s_setprio 0")
    srd(g, SRD_WO, P_WO, 663552)
    srd(g, SRD_W1, P_W1, 5308416)
    srd(g, SRD_W2, P_W2, 5308416)
    srd(g, SRD_B1, P_B1, 9216)
    g(f"s_mul_i32 s9, s{S_W4}, 288")
    g(f"s_mul_i32 s10, s{S_FS}, 1152")
    g("s_add_u32 s9, s9, s10")
    g("v_lshrrev_b32 v5, 4, v1")
    g("v_lshlrev_b32 v5, 3, v5")
    for ct in range(9):
        g(f"buffer_load_dwordx2 {vr(160+2*ct,2)}, v5, {sr(SRD_B1)}, s9 offen offset:{ct*32}")
    touch_w1(g, opts)
    fill = ffn_setup(g, opts, me)
    Lnw = g.new("fnw")
    g(f"s_cmp_lt_u32 s{S_W4}, 2")
    g(f"s_cbranch_scc1 {Lnw}")
    g(f"s_waitcnt vmcnt({9 if opts.get('nopf') else 10})")
    g.label(Lnw)
    stamp(g, opts, 1)
    g("s_barrier")
    stamp(g, opts, 2)
    Lgo = g.new("fgo")
    g(f"s_cmp_lg_u32 s{S_W4}, 0")
    g(f"s_cbranch_scc1 {Lgo}")
    g(f"s_waitcnt vmcnt({9 if opts.get('nopf') else 10})")
    g("v_readfirstlane_b32 s9, v250")
    g("s_cmp_lg_u32 s9, 255")
    g(f"s_cbranch_scc1 {Lgo}")
    g("v_mov_b32 v250, 1")
    g("s_mov_b64 exec, 1")
    g(f"buffer_store_dword v250, v249, {sr(SRD_DBG)}, 0 offen offset:128 sc1")
    g("s_mov_b64 exec, -1")
    g.label(Lgo)
    stamp(g, opts, 12)
    g("v_and_b32 v5, 3, v1")
    g("v_lshlrev_b32 v5, 2, v5")
    g(f"v_add_u32 v5, {F_KV}, v5")
    flag_wait(g, 5, 6, 1, "ring")
    for o in fill:
        for l in o: g(l)
    opts["npf"] = 0
    ffn(g, opts, me)
    stamp_flush(g, opts)
    g.label("L_end")
    g("s_endpgm")
    txt = g.text().replace("L_", f"L{opts['tag']}_")
    return f"""
.globl {name}
.p2align 8
.type {name},@function
{name}:
{txt}
"""


def reduce_kernel(name, opts={}):
    g = G()
    g("s_cmp_ge_u32 s2, 576")
    g("s_cbranch_scc1 LR_end")
    if opts.get("stamp"):
        g("s_memrealtime s[40:41]")
    g("s_load_dwordx2 s[16:17], s[0:1], 0")
    g("s_load_dwordx2 s[18:19], s[0:1], 72")
    g("s_load_dwordx2 s[20:21], s[0:1], 80")
    g("s_load_dwordx2 s[22:23], s[0:1], 96")
    g("v_and_b32 v1, 63, v0")
    g("v_lshrrev_b32 v2, 6, v0")
    g("s_nop 0")
    g("v_readfirstlane_b32 s3, v2")
    g("s_lshl_b32 s4, s2, 2")
    g("s_add_u32 s4, s4, s3")
    g("s_mul_i32 s5, s4, 3641")
    g("s_lshr_b32 s5, s5, 16")
    g("s_mul_i32 s6, s5, 18")
    g("s_sub_u32 s6, s4, s6")
    g("s_lshr_b32 s7, s5, 2")
    g("s_and_b32 s8, s5, 3")
    g("s_waitcnt lgkmcnt(0)")
    srd(g, 24, 16, 2359296)
    srd(g, 28, 18, 1152)
    srd(g, 32, 20, 2359296)
    srd(g, 36, 22, WS_SIZE)
    g("s_mul_i32 s9, s7, 589824")
    g("s_mul_i32 s10, s8, 18")
    g("s_add_u32 s10, s10, s6")
    g("s_lshl_b32 s10, s10, 10")
    g("s_add_u32 s9, s9, s10")
    g(f"s_add_u32 s9, s9, {WS_PART}")
    g("v_lshlrev_b32 v2, 4, v1")
    for fs in range(8):
        g(f"buffer_load_dwordx4 {vr(8+4*fs,4)}, v2, s[36:39], s9 offen")
        if fs < 7:
            g("s_add_u32 s9, s9, 73728")
    g("s_lshr_b32 s10, s6, 1")
    g("s_and_b32 s11, s6, 1")
    g("s_mul_i32 s12, s8, 288")
    g("s_lshl_b32 s10, s10, 5")
    g("s_add_u32 s12, s12, s10")
    g("v_lshrrev_b32 v3, 4, v1")
    g("v_lshlrev_b32 v3, 3, v3")
    g("v_add_u32 v3, s12, v3")
    g("s_lshl_b32 s13, s7, 1")
    g("s_add_u32 s13, s13, s11")
    g("s_mul_i32 s13, s13, 36864")
    g("v_and_b32 v4, 15, v1")
    g("v_mul_u32_u24 v4, 1152, v4")
    g("v_add_u32 v4, v4, v3")
    g("s_add_u32 s14, s13, 18432")
    g("buffer_load_dwordx2 v[40:41], v3, s[28:31], 0 offen")
    g("buffer_load_dwordx2 v[42:43], v4, s[24:27], s13 offen")
    g("buffer_load_dwordx2 v[44:45], v4, s[24:27], s14 offen")
    g("s_waitcnt vmcnt(0)")
    def unpack(dst, src):
        g(f"v_lshlrev_b32 v{dst}, 16, v{src}")
        g(f"v_and_b32 v{dst+1}, 0xffff0000, v{src}")
    for d in range(4):
        unpack(48 + 2 * d, 8 + d)
    for fs in range(1, 8):
        for d in range(4):
            unpack(56, 8 + 4 * fs + d)
            g(f"v_pk_add_f32 {vr(48+2*d,2)}, {vr(48+2*d,2)}, v[56:57]")
    for d in range(4):
        unpack(56, 40 + (d & 1))
        g(f"v_pk_add_f32 {vr(48+2*d,2)}, {vr(48+2*d,2)}, v[56:57]")
        unpack(56, 42 + d)
        g(f"v_pk_add_f32 {vr(48+2*d,2)}, {vr(48+2*d,2)}, v[56:57]")
    for d in range(4):
        g(f"v_cvt_pk_bf16_f32 v{60+d}, v{48+2*d}, v{49+2*d}")
    g("buffer_store_dwordx2 v[60:61], v4, s[32:35], s13 offen")
    g("buffer_store_dwordx2 v[62:63], v4, s[32:35], s14 offen")
    if opts.get("stamp"):
        g("s_waitcnt vmcnt(0)")
        g("s_memrealtime s[42:43]")
        g("s_waitcnt lgkmcnt(0)")
        g("v_mov_b32 v8, s40")
        g("v_mov_b32 v9, s42")
        g("v_mov_b32 v2, 0")
        g("s_lshl_b32 s4, s4, 3")
        g(f"s_add_u32 s4, s4, {WS_DBG + (1<<20) + (2<<18)}")
        g("s_mov_b64 exec, 1")
        g("buffer_store_dwordx2 v[8:9], v2, s[36:39], s4 offen")
    g.label("LR_end")
    g("s_endpgm")
    for u in range(2304):
        assert (u * 3641) >> 16 == u // 18
    return f"""
.globl {name}
.p2align 8
.type {name},@function
{name}:
{g.text()}
"""


def kd(name, vgpr, sgpr=100):
    return f"""
.p2align 6
.amdhsa_kernel {name}
  .amdhsa_next_free_vgpr {vgpr}
  .amdhsa_next_free_sgpr {sgpr}
  .amdhsa_accum_offset {vgpr}
  .amdhsa_group_segment_fixed_size 0
  .amdhsa_kernarg_size 104
  .amdhsa_user_sgpr_count 2
  .amdhsa_user_sgpr_kernarg_segment_ptr 1
  .amdhsa_system_sgpr_workgroup_id_x 1
.end_amdhsa_kernel
"""


def build(mode):
    hdr = []
    body = []
    kds = []
    def add(name, code, grid, block, lds, vgpr):
        hdr.append(f"; @launch kernel={name} grid=({grid},1,1) block=({block},1,1) lds={lds}")
        body.append(code)
        kds.append(kd(name, vgpr))
    o = dict(tag="M", publish=True, inkernel=True)
    for m in mode.split(","):
        if "=" in m:
            k, v = m.split("="); o[k] = int(v)
        elif m: o[m] = True
    if o.get("fuse"):
        nm = KN + "_kernel"
        add(nm, main_kernel(nm, o), 256, 512, LDS_SIZE, 256)
        hdr[-1] = f"; @launch grid=(256,1,1) block=(512,1,1) lds={LDS_SIZE}"
    else:
        add("main_kernel", main_kernel("main_kernel", o), 256, 512, LDS_SIZE, 256)
    if not o.get("fuse"):
        add("reduce_kernel", reduce_kernel("reduce_kernel", o), 576, 256, 0, 64)
    out = "\n".join(hdr) + '\n.amdgcn_target "amdgcn-amd-amdhsa--gfx950"\n.text\n' + "\n".join(body) + '\n.section .rodata,"a"\n' + "\n".join(kds)
    return out


if __name__ == "__main__":
    mode = sys.argv[1]
    open(sys.argv[2], "w").write(build(mode))
```

```python
def attention(g, opts, M):
    if opts.get("noattn"):
        return
    vr, sr = M.vr, M.sr
    S_RB, S_FS, S_WV, S_W4, S_LO = M.S_RB, M.S_FS, M.S_WV, M.S_W4, M.S_LO
    Q1, Q2, S, P, O, KV = M.A_Q1, M.A_Q2, M.A_S, M.A_P, M.A_O, M.A_KV
    AM, AK1, AK2, AV = M.A_M, M.A_AK1, M.A_AK2, M.A_AV
    AFL, FLD, FLW, DV, T, FV = M.A_AFL, M.A_FLD, M.A_FLW, M.A_DV0, M.A_T, M.A_FV
    S_C, S_THR, S_DOFF, S_M0B, S_LT = 84, 85, 86, 87, 88
    S_CK = [90, 92]
    LO = f"s[{S_LO}:{S_LO+1}]"
    CH, TB = M.CHUNK_B, M.TILE_B
    ldaux = " sc1" if opts.get("inkernel") else ""

    g("v_and_b32 v2, 31, v1")
    g("v_lshrrev_b32 v3, 5, v1")
    g(f"v_lshlrev_b32 v4, 4, v1")
    g(f"v_add_u32 v{AK1}, {M.KVR}, v4")
    g(f"v_lshlrev_b32 v4, 2, v2")
    g(f"v_add_u32 v{AK2}, {M.KVR + 1024}, v4")
    g("v_min_u32 v4, 19, v2")
    g("v_cmp_eq_u32 vcc, 22, v2")
    g("s_nop 1")
    g("v_cndmask_b32 v4, v4, 18, vcc")
    g("v_lshlrev_b32 v4, 4, v4")
    g(f"v_mul_u32_u24 v5, {M.VG_B}, v3")
    g("v_add_u32 v4, v4, v5")
    g(f"v_add_u32 v{AV}, {M.KVR + 1152}, v4")
    g(f"s_mul_i32 s9, s{S_W4}, {76*16}")
    g(f"v_lshlrev_b32 v4, 4, v1")
    g(f"v_add_u32 v{DV}, s9, v4")
    g(f"s_add_u32 s{S_M0B}, s9, {M.KVR}")
    g(f"s_mov_b32 s{S_LT}, {M.f32bits(M.LTHR) if not opts.get('norare') else 0x7f800000}")
    for st in range(2):
        for u in range(2):
            b = KV(st, u)
            g(f"v_mov_b32 v{b+5}, 0x3f803f80")
            g(f"v_mov_b32 v{b+6}, 0x3f80")
            g(f"v_mov_b32 v{b+7}, 0")
    for r in range(4):
        g(f"v_mov_b32 v{KV(1,1)+12+r}, 0")
    for rt in range(2):
        for r in range(16):
            g(f"v_mov_b32 v{O[rt]+r}, 0")
        for r in range(8):
            g(f"v_mov_b32 v{P[rt]+r}, 0")

    def dma(slot):
        return [[f"s_add_u32 m0, s{S_M0B}, {slot*CH}", "s_nop 0",
                 f"buffer_load_dwordx4 v{DV}, {sr(M.SRD_WS)}, s{S_DOFF} offen{ldaux} lds"],
                ["s_mov_b64 exec, 0xfff",
                 f"buffer_load_dwordx4 v{DV}, {sr(M.SRD_WS)}, s{S_DOFF} offen offset:1024{ldaux} lds",
                 "s_mov_b64 exec, -1",
                 f"s_add_u32 s{S_DOFF}, s{S_DOFF}, {CH}"]]
    def frag_reads(slot, st):
        ops = []
        for u in range(2):
            b = KV(st, u)
            off = slot * CH + u * TB
            ops.append([f"ds_read_b128 {vr(b,4)}, v{AK1} offset:{off}"])
            ops.append([f"ds_read_b32 v{b+4}, v{AK2} offset:{off}"])
            ops.append([f"ds_read_b128 {vr(b+8,4)}, v{AV} offset:{off}"])
            ops.append([f"ds_read_b128 {vr(b+12,4)}, v{AV} offset:{off+M.VH_B}"])
        return ops
    def emit(ops):
        for o in ops:
            for l in o:
                g(l)
    def set_mref(rt):
        g(f"v_sub_f32 v{T}, 0, v{AM[rt]}")
        g(f"v_and_b32 v{T+1}, 0xffff0000, v{T}")
        g(f"v_sub_f32 v{T}, v{T}, v{T+1}")
        g(f"v_and_b32 v{T+2}, 0xffff0000, v{T}")
        g(f"v_sub_f32 v{T}, v{T}, v{T+2}")
        g(f"v_lshrrev_b32 v{T+1}, 16, v{T+1}")
        g(f"v_or_b32 v{T+1}, v{T+1}, v{T+2}")
        g(f"v_lshrrev_b32 v{T}, 16, v{T}")
        g(f"v_cndmask_b32 v{Q2[rt]+1}, 0, v{T+1}, {LO}")
        g(f"v_cndmask_b32 v{Q2[rt]+2}, 0, v{T}, {LO}")
    def qk1(rt, kb):
        return f"v_mfma_f32_32x32x16_bf16 {vr(S[rt],16)}, {vr(kb,4)}, {vr(Q1[rt],4)}, 0"
    def qk2(rt, kb):
        return f"v_mfma_f32_32x32x16_bf16 {vr(S[rt],16)}, {vr(kb+4,4)}, {vr(Q2[rt],4)}, {vr(S[rt],16)}"
    def pva(rt, kb):
        return f"v_mfma_f32_32x32x16_bf16 {vr(O[rt],16)}, {vr(kb+8,4)}, {vr(P[rt],4)}, {vr(O[rt],16)}"
    def pvb(rt, kb):
        return f"v_mfma_f32_32x32x16_bf16 {vr(O[rt],16)}, {vr(kb+12,4)}, {vr(P[rt]+4,4)}, {vr(O[rt],16)}"

    g(f"v_mov_b32 v{FV}, 2")
    g("s_waitcnt vmcnt(0)")
    M.stamp(g, opts, 8)
    g(f"ds_write_b32 v{FLW}, v{FV}")
    if opts.get("inkernel"):
        M.global_kv_sync(g, opts)
    else:
        M.flag_wait(g, AFL, FLD, 2, "ka")
    M.stamp(g, opts, 7)
    g("s_setprio 2")
    g(f"s_mov_b32 s{S_DOFF}, {M.WS_KV}")
    for c in range(3):
        emit(dma(c))
    g("s_waitcnt vmcnt(4)")
    g(f"v_mov_b32 v{FV}, 3")
    g(f"ds_write_b32 v{FLW}, v{FV}")
    M.flag_wait(g, AFL, FLD, 3, "kb")
    emit(frag_reads(0, 0))
    g("s_waitcnt lgkmcnt(0)")
    M.stamp(g, opts, 4)
    for u in range(2):
        for rt in range(2):
            g(qk1(rt, KV(0, u)))
            g(qk2(rt, KV(0, u)))
        g("s_nop 15")
        g("s_nop 3")
        for rt in range(2):
            s = S[rt]
            t = T + 10 + rt
            if u == 0:
                g(f"v_max_f32 v{t}, v{s}, v{s+15}")
            else:
                g(f"v_max3_f32 v{t}, v{t}, v{s}, v{s+15}")
            for r in range(1, 15, 2):
                g(f"v_max3_f32 v{t}, v{t}, v{s+r}, v{s+r+1}")
    for rt in range(2):
        t = T + 10 + rt
        g(f"v_mov_b32 v{T+1}, v{t}")
        g("s_nop 1")
        g(f"v_permlane32_swap_b32 v{t}, v{T+1}")
        g("s_nop 1")
        g(f"v_max_f32 v{T}, v{t}, v{T+1}")
        g(f"v_ceil_f32 v{T}, v{T}")
        g(f"v_add_f32 v{AM[rt]}, {M.f32bits(float(M.HEAD))}, v{T}")
        set_mref(rt)
    g("s_nop 1")
    g(qk1(0, KV(0, 0)))
    g(qk2(0, KV(0, 0)))
    g("s_nop 15")
    M.stamp(g, opts, 5)
    M.cstamp(g, opts, 11)
    g("s_mov_b32 s94, 0")
    g(f"s_mov_b32 s{S_C}, 0")
    g(f"s_mov_b32 s{S_THR}, 4")

    rare = []

    def half_iter(pos6, q, extra, shadow=()):
        st = pos6 & 1
        rt = q & 1
        u = q >> 1
        if q < 3:
            nst, nu, nrt = st, (q + 1) >> 1, (q + 1) & 1
        else:
            nst, nu, nrt = st ^ 1, 0, 0
        if q > 0:
            pst, pu, prt = st, (q - 1) >> 1, (q - 1) & 1
        else:
            pst, pu, prt = st ^ 1, 1, 1
        s, p = S[rt], P[rt]
        valu = []
        for grp in range(4):
            for r in range(4):
                valu.append(f"v_exp_f32 v{s+4*grp+r}, v{s+4*grp+r}")
            valu.append(f"v_cvt_pk_bf16_f32 v{p+2*grp}, v{s+4*grp}, v{s+4*grp+1}")
            valu.append(f"v_cvt_pk_bf16_f32 v{p+2*grp+1}, v{s+4*grp+2}, v{s+4*grp+3}")
        mf = {0: qk1(nrt, KV(nst, nu)), 6: qk2(nrt, KV(nst, nu)), 12: pvb(prt, KV(pst, pu)), 18: pva(rt, KV(st, u))}
        sh = list(shadow)
        for i in range(24):
            for l in extra.get(i, []):
                g(l)
            if i in mf:
                g(mf[i])
            g(valu[i])
            if valu[i].startswith("v_exp") and sh and sh[0][0] <= i:
                x = sh.pop(0)[1]
                for l in (x if isinstance(x, list) else [x]):
                    g(l)
        assert not sh, sh

    def rare_block(rt, kb, Lr, Lback):
        b = []
        b.append(f"{Lr}:")
        L = M.G()
        L(pvb(rt, kb))
        L("s_nop 15")
        L("s_nop 3")
        L(f"v_frexp_exp_i32_f32 v{T+3}, v{O[rt]+10}")
        L(f"v_add_u32 v{T+3}, {M.HEAD}, v{T+3}")
        L(f"v_max_i32 v{T+3}, 0, v{T+3}")
        L(f"v_cvt_f32_i32 v{T+4}, v{T+3}")
        L(f"v_sub_u32 v{T+3}, 0, v{T+3}")
        L(f"v_add_f32 v{AM[rt]}, v{AM[rt]}, v{T+4}")
        for r in range(11):
            L(f"v_ldexp_f32 v{O[rt]+r}, v{O[rt]+r}, v{T+3}")
        for r in range(4):
            L(f"v_mov_b32 v{P[rt]+4+r}, 0")
        old = g.lines
        g.lines = L.lines
        set_mref(rt)
        if opts.get("dbgrare"):
            g(f"s_add_u32 s95, s95, 1")
        g("s_nop 1")
        g(f"s_branch {Lback}")
        g.lines = old
        rare.append("\n".join(b + L.lines))

    Lloop, Lexit = g.new("aloop"), g.new("aexit")
    if opts.get("dbgrare"):
        g("s_mov_b32 s95, 0")
    g.label(Lloop)
    for pos6 in range(6):
        st = pos6 & 1
        g.c(f"==== chunk pos {pos6}")
        Lspin, Lback = g.new("aspin"), g.new("aback")
        ex = {}
        sh = [(1, "s_waitcnt vmcnt(2)"), (2, f"v_mov_b32 v{FV}, s{S_THR}"), (3, f"ds_write_b32 v{FLW}, v{FV}"),
              (19, f"ds_read_b32 v{FLD}, v{AFL}")]
        if opts.get("nosync") or opts.get("noflag"): sh = []
        half_iter(pos6, 0, ex, sh)
        fr = [x[0] for x in frag_reads((pos6 + 1) % 3, st ^ 1)]
        sh = [(6, "s_waitcnt lgkmcnt(0)"), (7, f"v_cmp_gt_u32 vcc, s{S_THR}, v{FLD}"),
              (12, [f"s_cbranch_vccnz {Lspin}", f"{Lback}:"]),
              (13, fr[0]), (14, fr[1]), (15, fr[4]), (18, fr[5]), (19, fr[2]), (20, fr[3]), (21, fr[6])]
        if opts.get("nosync"): sh = [(12, f"{Lback}:")]
        if opts.get("noflag"): sh = [(12, f"{Lback}:")] + sh[3:]
        if opts.get("noreads"): sh = sh[:3]
        ex = {}
        if st == 0:
            ex[17] = [f"v_cmp_lt_f32 s[{S_CK[1]}:{S_CK[1]+1}], s{S_LT}, v{O[1]+10}"]
        half_iter(pos6, 1, ex, sh)
        rare.append("\n".join([f"{Lspin}:", f"    ds_read_b32 v{FLD}, v{AFL}", "    s_waitcnt lgkmcnt(0)",
                               f"    v_cmp_gt_u32 vcc, s{S_THR}, v{FLD}", "    s_nop 4",
                               "    s_add_u32 s94, s94, 1", f"    s_cbranch_vccz {Lback}", "    s_sleep 1", f"    s_branch {Lspin}"]))
        ex = {}
        if st == 0:
            Lr, Lb = g.new("rare1"), g.new("rback1")
            ex[0] = [f"s_cmp_lg_u64 s[{S_CK[1]}:{S_CK[1]+1}], 0", f"s_cbranch_scc1 {Lr}", f"{Lb}:"]
            rare_block(1, KV(0, 0), Lr, Lb)
            ex[17] = [f"v_cmp_lt_f32 s[{S_CK[0]}:{S_CK[0]+1}], s{S_LT}, v{O[0]+10}"]
        slot = pos6 % 3
        sh = [(0, fr[7]), (1, f"s_add_u32 m0, s{S_M0B}, {slot*CH}"),
              (2, f"buffer_load_dwordx4 v{DV}, {sr(M.SRD_WS)}, s{S_DOFF} offen{ldaux} lds"),
              (7, ["s_mov_b64 exec, 0xfff",
                   f"buffer_load_dwordx4 v{DV}, {sr(M.SRD_WS)}, s{S_DOFF} offen offset:1024{ldaux} lds",
                   "s_mov_b64 exec, -1"]),
              (9, f"s_add_u32 s{S_DOFF}, s{S_DOFF}, {CH}")]
        if opts.get("nosync"): sh = []
        if opts.get("nodma"): sh = sh[:1]
        if opts.get("nodma2"): sh = sh[:3] + sh[4:]
        if opts.get("noreads"): sh = sh[1:]
        half_iter(pos6, 2, ex, sh)
        ex = {0: ["s_waitcnt lgkmcnt(0)"]}
        if st == 0:
            Lr, Lb = g.new("rare0"), g.new("rback0")
            ex[0] = ex[0] + [f"s_cmp_lg_u64 s[{S_CK[0]}:{S_CK[0]+1}], 0", f"s_cbranch_scc1 {Lr}", f"{Lb}:"]
            rare_block(0, KV(0, 1), Lr, Lb)
        sh = [(13, f"s_add_u32 s{S_THR}, s{S_THR}, 1")]
        if pos6 == 1:
            sh.append((14, f"s_cmp_eq_u32 s{S_THR}, 36"))
        half_iter(pos6, 3, ex, sh)
        if pos6 == 1:
            g(f"s_cbranch_scc1 {Lexit}")
    g(f"s_branch {Lloop}")
    for r in rare:
        g.lines.append(r)
    g.label(Lexit)
    g("s_nop 1")
    g(pvb(1, KV(1, 1)))
    g("s_setprio 0")
    M.stamp(g, opts, 6)
    M.cstamp(g, opts, 12)
    if opts.get("stamp"):
        g("v_writelane_b32 v254, s94, 10")
    g("s_waitcnt vmcnt(0) lgkmcnt(0)")
    g(f"v_mov_b32 v{FV}, 100")
    g(f"ds_write_b32 v{FLW}, v{FV}")
    g("s_nop 7")
    g("s_nop 7")
    if opts.get("dbgrare"):
        g("s_lshl_b32 s9, s2, 2")
        g(f"s_add_u32 s9, s9, s{S_W4}")
        g("s_lshl_b32 s9, s9, 2")
        g(f"s_add_u32 s9, s9, {M.WS_DBG}")
        g("v_mov_b32 v2, 0")
        g("v_mov_b32 v3, s95")
        g(f"buffer_store_dword v3, v2, {sr(M.SRD_WS)}, s9 offen")
    g("s_movk_i32 s9, 0x207")
    g("s_mov_b64 s[90:91], 0")
    the_slow = opts.get("slow", True)
    for rt in range(2):
        Lok = g.new("fin_ok")
        g("s_mov_b64 s[90:91], 0")
        for r in range(11):
            g(f"v_cmp_class_f32 vcc, v{O[rt]+r}, s9")
            g("s_or_b64 s[90:91], s[90:91], vcc")
        if opts.get("forceslow"):
            g("s_mov_b64 s[90:91], -1")
        g("s_cmp_eq_u64 s[90:91], 0")
        g(f"s_cbranch_scc1 {Lok}")
        slow_path(g, opts, M, rt, set_mref, qk1, qk2, pva, pvb)
        g.label(Lok)
    g("v_and_b32 v2, 31, v1")
    g("v_lshrrev_b32 v3, 5, v1")
    g(f"v_mul_u32_u24 v4, {M.OSTR}, v2")
    g(f"v_add_u32 v4, {M.OREG}, v4")
    g(f"s_mul_i32 s9, s{S_W4}, 18")
    g("v_lshlrev_b32 v5, 2, v3")
    g("v_add_u32 v5, s9, v5")
    AD = 8
    for p, dd in enumerate((0, 2, 8, 10, 16)):
        g(f"v_add_u32 v6, {dd}, v5")
        g("v_lshrrev_b32 v7, 5, v6")
        g(f"v_lshl_add_u32 v{AD+p}, v7, 6, v4")
        g("v_bfe_u32 v7, v6, 2, 2")
        g(f"v_lshl_add_u32 v{AD+p}, v7, 4, v{AD+p}")
        g("v_bfe_u32 v7, v6, 4, 1")
        g(f"v_lshl_add_u32 v{AD+p}, v7, 3, v{AD+p}")
        g("v_and_b32 v7, 3, v6")
        g(f"v_lshl_add_u32 v{AD+p}, v7, 1, v{AD+p}")
    g("v_and_b32 v6, 15, v1")
    g(f"s_lshl_b32 s9, s{S_W4}, 4")
    g("v_add_u32 v6, s9, v6")
    g(f"v_mul_u32_u24 v6, {M.OSTR}, v6")
    g(f"v_add_u32 v6, {M.OREG + 128}, v6")
    g("v_lshrrev_b32 v7, 4, v1")
    g("v_lshl_add_u32 v13, v7, 4, 16")
    g("v_add_u32 v14, 8, v13")
    g("v_cmp_eq_u32 vcc, 0, v7")
    g("v_cmp_eq_u32 s[92:93], 3, v7")
    g("s_nop 1")
    g("s_or_b64 vcc, vcc, s[92:93]")
    g("s_nop 1")
    g("v_cndmask_b32 v13, v13, 8, vcc")
    g("v_cndmask_b32 v14, v14, 24, vcc")
    g("v_add_u32 v13, v13, v6")
    g("v_add_u32 v14, v14, v6")
    g("v_mov_b32 v6, 0")
    g("v_mov_b32 v7, 0")
    for rt in range(2):
        o = O[rt]
        g(f"v_rcp_f32 v{T}, v{o+10}")
        g("s_nop 0")
        for r in range(10):
            g(f"v_mul_f32 v{o+r}, v{o+r}, v{T}")
        for p in range(5):
            g(f"v_cvt_pk_bf16_f32 v{o+p}, v{o+2*p}, v{o+2*p+1}")
    M.flag_wait(g, AFL, FLD, 100, "kend")
    g("ds_write_b64 v13, v[6:7]")
    g("ds_write_b64 v14, v[6:7]")
    for rt in range(2):
        o = O[rt]
        for p in range(4):
            g(f"ds_write_b32 v{AD+p}, v{o+p} offset:{rt*32*M.OSTR}")
        g(f"s_mov_b64 exec, {LO}")
        g(f"ds_write_b32 v{AD+4}, v{o+4} offset:{rt*32*M.OSTR}")
        g("s_mov_b64 exec, -1")
    g("s_waitcnt lgkmcnt(0)")
    g(f"v_add_u32 v{FLW}, {M.F_O - M.F_KV}, v{FLW}")
    g(f"v_mov_b32 v{FV}, 1")
    g(f"ds_write_b32 v{FLW}, v{FV}")
    g("s_waitcnt lgkmcnt(0)")


def slow_path(g, opts, M, rt, set_mref, qk1, qk2, pva, pvb):
    vr, sr = M.vr, M.sr
    Q1, Q2, S, P, O, KV = M.A_Q1, M.A_Q2, M.A_S, M.A_P, M.A_O, M.A_KV
    AM, AK1, AK2, AV, T = M.A_M, M.A_AK1, M.A_AK2, M.A_AV, M.A_T
    ldaux = " sc1" if opts.get("inkernel") else ""
    kb = KV(0, 0)
    s, p, o = S[rt], P[rt], O[rt]
    G1, G2, G3 = T + 6, T + 7, T + 8
    g(f"v_subrev_u32 v{G1}, {M.KVR}, v{AK1}")
    g(f"v_subrev_u32 v{G2}, {M.KVR}, v{AK2}")
    g(f"v_subrev_u32 v{G3}, {M.KVR}, v{AV}")
    for r in range(16):
        g(f"v_mov_b32 v{o+r}, 0")
    g(f"v_mov_b32 v{AM[rt]}, {M.f32bits(-8388608.0)}")
    g(f"s_mov_b32 s10, {M.WS_KV}")
    g("s_mov_b32 s11, 0")
    L, Lno = g.new("slow"), g.new("slownors")
    g.label(L)
    g(f"buffer_load_dwordx4 {vr(kb,4)}, v{G1}, {sr(M.SRD_WS)}, s10 offen{ldaux}")
    g(f"buffer_load_dword v{kb+4}, v{G2}, {sr(M.SRD_WS)}, s10 offen{ldaux}")
    g(f"buffer_load_dwordx4 {vr(kb+8,4)}, v{G3}, {sr(M.SRD_WS)}, s10 offen{ldaux}")
    g(f"buffer_load_dwordx4 {vr(kb+12,4)}, v{G3}, {sr(M.SRD_WS)}, s10 offen offset:{M.VH_B}{ldaux}")
    g(f"v_mov_b32 v{Q2[rt]+1}, 0")
    g(f"v_mov_b32 v{Q2[rt]+2}, 0")
    g("s_waitcnt vmcnt(0)")
    g("s_nop 1")
    g(qk1(rt, kb))
    g(qk2(rt, kb))
    g("s_nop 15")
    g("s_nop 3")
    g(f"v_max3_f32 v{T}, v{s}, v{s+1}, v{s+2}")
    for r in range(3, 15, 2):
        g(f"v_max3_f32 v{T}, v{T}, v{s+r}, v{s+r+1}")
    g(f"v_max_f32 v{T}, v{T}, v{s+15}")
    g(f"v_mov_b32 v{T+1}, v{T}")
    g("s_nop 1")
    g(f"v_permlane32_swap_b32 v{T}, v{T+1}")
    g("s_nop 1")
    g(f"v_max_f32 v{T}, v{T}, v{T+1}")
    g(f"v_ceil_f32 v{T}, v{T}")
    g(f"v_max_f32 v{T}, v{T}, v{AM[rt]}")
    g(f"v_sub_f32 v{T+1}, v{AM[rt]}, v{T}")
    g(f"v_max_f32 v{T+1}, {M.f32bits(-1000.0)}, v{T+1}")
    g(f"v_cvt_i32_f32 v{T+1}, v{T+1}")
    g(f"v_mov_b32 v{AM[rt]}, v{T}")
    for r in range(16):
        g(f"v_ldexp_f32 v{o+r}, v{o+r}, v{T+1}")
    for r in range(16):
        g(f"v_sub_f32 v{s+r}, v{s+r}, v{AM[rt]}")
        g(f"v_exp_f32 v{s+r}, v{s+r}")
    g("s_nop 0")
    for r in range(8):
        g(f"v_cvt_pk_bf16_f32 v{p+r}, v{s+2*r}, v{s+2*r+1}")
    g("s_nop 1")
    g(pva(rt, kb))
    g(pvb(rt, kb))
    g("s_nop 15")
    g("s_nop 3")
    g(f"s_add_u32 s10, s10, {M.TILE_B}")
    g("s_add_u32 s11, s11, 1")
    g("s_cmp_lt_u32 s11, 64")
    g(f"s_cbranch_scc1 {L}")
```

```python
import sys, struct, math

KN = "parallel_sum__grouped_kv_mqa__dense_activation_squared_relu__prompt"

XH = 0
WR = 73728
KVR = 147456
OREG = 147456
OSTR = 224
FLAGS = 163712
LDS_SIZE = 163840
QST = 73728
F_KV = FLAGS
F_X = FLAGS + 16
F_O = FLAGS + 32
F_G = FLAGS + 48
F_P = FLAGS + 64
F_A = FLAGS + 112
F_R = FLAGS + 80
TILE_B = 2432
VH_B = 640
VG_B = 320
VSCR = 160768
PQ_B = 3584
CHUNK_B = 2 * TILE_B
WS_KV = 0
WS_FLAG = 512 << 10
WS_PART = 1 << 20
WS_DBG = 24 << 20
WS_SIZE = 32 << 20

def f32bits(x):
    return struct.unpack("<I", struct.pack("<f", x))[0]

CSCALE = math.log2(math.e) / math.sqrt(18.0)
HEAD = 40
LTHR = 2.0 ** 60


class G:
    def __init__(s):
        s.lines = []
        s.uid = 0
    def __call__(s, t):
        s.lines.append("    " + t)
    def label(s, l):
        s.lines.append(l + ":")
    def c(s, t):
        s.lines.append("    ; " + t)
    def new(s, p):
        s.uid += 1
        return f"L_{p}_{s.uid}"
    def text(s):
        return "\n".join(s.lines)


def vr(a, n):
    return f"v[{a}:{a+n-1}]"

S_RB, S_FS, S_WV, S_W4 = 4, 5, 6, 7
P_X, P_WQ, P_WK, P_WV, P_WO, P_BX, P_W1, P_B1, P_W2, P_B2, P_OUT, P_DBG, P_WS = [16 + 2 * i for i in range(13)]
SRD_X, SRD_WQ, SRD_W1, SRD_W2, SRD_WO, SRD_B1, SRD_WS, SRD_WK, SRD_WVV = 44, 48, 52, 56, 60, 64, 68, 72, 76
SRD_DBG = 12
S_SH = 3
S_LO = 80
S_HI = 82


def srd(g, d, p, nbytes):
    g(f"s_mov_b32 s{d}, s{p}")
    g(f"s_and_b32 s{d+1}, s{p+1}, 0xffff")
    g(f"s_mov_b32 s{d+2}, {nbytes}")
    g(f"s_mov_b32 s{d+3}, 0x00020000")

def sr(d):
    return f"s[{d}:{d+3}]"


def flag_wait(g, vaddr, vtmp, thr, name):
    L = g.new(name)
    Ld = g.new(name + "d")
    g.label(L)
    g(f"ds_read_b32 v{vtmp}, v{vaddr}")
    g("s_waitcnt lgkmcnt(0)")
    g(f"v_cmp_gt_u32 vcc, {thr}, v{vtmp}")
    g("s_nop 4")
    g(f"s_cbranch_vccz {Ld}")
    g("s_sleep 1")
    g(f"s_branch {L}")
    g.label(Ld)


def stamp(g, opts, idx):
    if not opts.get("stamp"):
        return
    g("s_memrealtime s[96:97]")
    g("s_waitcnt lgkmcnt(0)")
    g(f"v_writelane_b32 v254, s96, {idx}")


def cstamp(g, opts, idx):
    if not opts.get("stamp"):
        return
    g("s_memtime s[96:97]")
    g("s_waitcnt lgkmcnt(0)")
    g(f"v_writelane_b32 v254, s96, {idx}")


def stamp_flush(g, opts):
    if not opts.get("stamp"):
        return
    stamp(g, opts, 15)
    g("s_memtime s[96:97]")
    g("s_waitcnt lgkmcnt(0)")
    g(f"v_writelane_b32 v254, s96, 14")
    base = WS_DBG + (1 << 20) + (0 if opts["tag"] == "K" else (1 << 18))
    g("s_lshl_b32 s98, s2, 3")
    g(f"s_add_u32 s98, s98, s{S_WV}")
    g("s_lshl_b32 s98, s98, 6")
    g(f"s_add_u32 s98, s98, {base}")
    g("v_lshlrev_b32 v253, 2, v1")
    g("s_mov_b64 exec, 0xffff")
    g(f"buffer_store_dword v254, v253, {sr(SRD_WS)}, s98 offen")
    g("s_mov_b64 exec, -1")
    g("s_waitcnt vmcnt(0)")
    if opts.get("dbgt"):
        Lx = g.new("dbgt")
        g("s_cmp_lg_u32 s2, 8")
        g(f"s_cbranch_scc1 {Lx}")
        g(f"s_cmp_lg_u32 s{S_WV}, 4")
        g(f"s_cbranch_scc1 {Lx}")
        srd(g, SRD_DBG, P_DBG, 256)
        g("v_readlane_b32 s96, v254, 0")
        g("s_nop 3")
        g("v_subrev_u32 v254, s96, v254")
        g("s_mov_b64 exec, 0x8ee8")
        g(f"buffer_store_dword v254, v253, {sr(SRD_DBG)}, 0 offen")
        g("s_mov_b64 exec, -1")
        g("s_waitcnt vmcnt(0)")
        g.label(Lx)


def head(g, opts):
    g("s_cmp_ge_u32 s2, 256")
    g("s_cbranch_scc1 L_end")
    if opts.get("stamp"):
        g("v_mov_b32 v254, 0")
    stamp(g, opts, 0)
    cstamp(g, opts, 13)
    g("s_load_dwordx16 s[16:31], s[0:1], 0")
    g("s_load_dwordx8 s[32:39], s[0:1], 64")
    g("s_load_dwordx2 s[40:41], s[0:1], 96")
    g("v_and_b32 v1, 63, v0")
    g("v_lshrrev_b32 v2, 6, v0")
    if opts.get("map2"):
        g("s_lshr_b32 s8, s2, 3")
        g("s_and_b32 s9, s2, 3")
        g("s_lshl_b32 s9, s9, 1")
        g("s_and_b32 s10, s8, 1")
        g(f"s_add_u32 s{S_FS}, s9, s10")
        g("s_bfe_u32 s9, s2, 0x10002")
        g("s_lshl_b32 s9, s9, 4")
        g("s_lshr_b32 s10, s8, 1")
        g(f"s_add_u32 s{S_RB}, s9, s10")
    else:
        g(f"s_lshr_b32 s{S_RB}, s2, 3")
        g(f"s_and_b32 s{S_FS}, s2, 7")
    g(f"v_readfirstlane_b32 s{S_WV}, v2")
    g(f"s_mov_b32 s{S_LO}, -1")
    g(f"s_mov_b32 s{S_LO+1}, 0")
    g(f"s_mov_b32 s{S_HI}, 0")
    g(f"s_mov_b32 s{S_HI+1}, -1")
    g(f"s_and_b32 s{S_W4}, s{S_WV}, 3")
    if opts.get("map2"):
        g(f"s_and_b32 s{S_SH}, s{S_RB}, 15")
    else:
        g(f"s_mov_b32 s{S_SH}, s{S_RB}")
    g("s_waitcnt lgkmcnt(0)")
    srd(g, SRD_X, P_X, 2359296)
    srd(g, SRD_WS, P_WS, WS_SIZE)


def touch_w1(g, opts):
    if opts.get("nopf"):
        return
    g("v_min_u32 v5, 53, v1")
    g("v_mul_u32_u24 v6, 7282, v5")
    g("v_lshrrev_b32 v6, 16, v6")
    g("v_mul_u32_u24 v7, 9, v6")
    g("v_sub_u32 v7, v5, v7")
    g(f"s_mov_b32 s10, {32*9216}")
    g("v_mul_lo_u32 v6, v6, s10")
    g("v_lshl_add_u32 v5, v7, 7, v6")
    g(f"s_min_u32 s9, s{S_W4}, 2")
    g("s_mul_i32 s9, s9, 192")
    g(f"s_add_u32 s9, s9, s{S_RB}")
    g("s_mul_i32 s9, s9, 9216")
    g(f"s_mul_i32 s10, s{S_FS}, 1152")
    g("s_add_u32 s9, s9, s10")
    g(f"buffer_load_dword v251, v5, {sr(SRD_W1)}, s9 offen")


def touches(g, opts):
    if opts.get("nopf"):
        return
    L1, Ld = g.new("tc"), g.new("tcd")
    g(f"s_cmp_ge_u32 s{S_W4}, 2")
    g(f"s_cbranch_scc1 {Ld}")
    g(f"s_cmp_lg_u32 s{S_W4}, 0")
    g(f"s_cbranch_scc1 {L1}")
    srd(g, SRD_WQ, P_WQ, 663552)
    g("v_min_u32 v5, 53, v1")
    g("v_mul_u32_u24 v6, 21846, v5")
    g("v_lshrrev_b32 v6, 16, v6")
    g("v_mul_u32_u24 v7, 3, v6")
    g("v_sub_u32 v7, v5, v7")
    g("v_mul_u32_u24 v6, 1152, v6")
    g("v_lshl_add_u32 v6, v7, 6, v6")
    g(f"s_mul_i32 s9, s{S_RB}, {18*1152}")
    g(f"s_mul_i32 s10, s{S_FS}, 144")
    g("s_add_u32 s9, s9, s10")
    g(f"buffer_load_dword v252, v6, {sr(SRD_WQ)}, s9 offen offset:12")
    g(f"s_branch {Ld}")
    g.label(L1)
    srd(g, SRD_WO, P_WO, 663552)
    g("v_min_u32 v6, 26, v1")
    g("v_lshlrev_b32 v6, 7, v6")
    g(f"s_mul_i32 s9, s{S_FS}, {72*1152}")
    g(f"s_mul_i32 s10, s{S_RB}, 3456")
    g("s_add_u32 s9, s9, s10")
    g(f"buffer_load_dword v252, v6, {sr(SRD_WO)}, s9 offen")
    g.label(Ld)


def ln_load(g, X, srow):
    g(f"s_lshl_b32 s8, s{S_RB}, 6")
    g(f"s_add_u32 s8, s8, s{srow}")
    g("s_mul_i32 s8, s8, 1152")
    for i in range(9):
        g(f"buffer_load_dwordx4 {vr(X+4*i,4)}, v4, {sr(SRD_X)}, s8 offen offset:{i*128}")


def ln_addr(g, A, srow):
    g(f"v_add_u32 v5, s{srow}, v2")
    g("v_bfe_u32 v6, v5, 1, 3")
    g("v_lshrrev_b32 v7, 2, v3")
    g("v_lshlrev_b32 v7, 2, v7")
    g(f"v_and_b32 v{A}, 1, v3")
    g(f"v_lshl_add_u32 v7, v{A}, 1, v7")
    g("v_xor_b32 v7, v7, v6")
    g(f"v_mul_u32_u24 v{A}, 1152, v5")
    g(f"v_lshl_add_u32 v{A}, v7, 4, v{A}")
    g("v_bfe_u32 v7, v3, 1, 1")
    g(f"v_lshl_add_u32 v{A}, v7, 3, v{A}")
    g(f"v_xor_b32 v{A+1}, 16, v{A}")


def ln_compute(g, X):
    for r in range(52, 56):
        g(f"v_mov_b32 v{r}, 0")
    g("s_mov_b32 s9, 0x3f803f80")
    for n in range(36):
        g(f"v_dot2c_f32_bf16 v{52 + (n&1)}, s9, v{X+n}")
        g(f"v_dot2c_f32_bf16 v{54 + (n&1)}, v{X+n}, v{X+n}")
    g("s_nop 3")
    g("v_add_f32 v52, v52, v53")
    g("v_add_f32 v54, v54, v55")
    for pat in ("quad_perm:[1,0,3,2]", "quad_perm:[2,3,0,1]", "row_half_mirror"):
        g("s_nop 1")
        g(f"v_add_f32_dpp v52, v52, v52 {pat} row_mask:0xf bank_mask:0xf")
        g(f"v_add_f32_dpp v54, v54, v54 {pat} row_mask:0xf bank_mask:0xf")
    g(f"s_mov_b32 s9, {f32bits(1.0/576.0)}")
    g("v_mul_f32 v52, s9, v52")
    g("v_mul_f32 v54, s9, v54")
    g("v_fma_f32 v54, -v52, v52, v54")
    g("v_max_f32 v54, 0, v54")
    g(f"v_add_f32 v54, {f32bits(1e-5)}, v54")
    g("v_rsq_f32 v56, v54")
    g("s_nop 0")
    g("v_mov_b32 v57, v56")
    g("v_mul_f32 v58, v52, v56")
    g("v_sub_f32 v58, 0, v58")
    g("v_mov_b32 v59, v58")
    for n in range(36):
        t = 60 + 2 * (n % 4)
        g(f"v_lshlrev_b32 v{t}, 16, v{X+n}")
        g(f"v_and_b32 v{t+1}, 0xffff0000, v{X+n}")
        g(f"v_pk_fma_f32 {vr(t,2)}, {vr(t,2)}, v[56:57], v[58:59]")
        g(f"v_cvt_pk_bf16_f32 v{X+n}, v{t}, v{t+1}")


def ln_write(g, X, A):
    for i in range(9):
        g(f"ds_write_b64 v{A}, {vr(X+4*i,2)} offset:{i*128}")
        g(f"ds_write_b64 v{A+1}, {vr(X+2+4*i,2)} offset:{i*128}")


def ln_lane_setup(g):
    g("v_lshrrev_b32 v2, 3, v1")
    g("v_and_b32 v3, 7, v1")
    g("v_mul_u32_u24 v4, 1152, v2")
    g("v_lshl_add_u32 v4, v3, 4, v4")


def a_layernorm(g, opts):
    XS = [8, 68]
    ln_lane_setup(g)
    g(f"s_lshl_b32 s11, s{S_W4}, 4")
    g("s_add_u32 s12, s11, 8")
    g("v_and_b32 v48, 3, v1")
    g("v_lshlrev_b32 v48, 2, v48")
    g(f"v_add_u32 v48, {F_P}, v48")
    Lsk = g.new("lnskip")
    g(f"s_lshr_b32 s9, s{S_FS}, 1")
    g(f"s_cmp_eq_u32 s9, s{S_W4}")
    g(f"s_cbranch_scc1 {Lsk}")
    if opts.get("asleep"):
        g(f"s_sleep {opts['asleep']}")
    ln_load(g, XS[0], 11)
    ln_load(g, XS[1], 12)
    ln_addr(g, 44, 11)
    ln_addr(g, 46, 12)
    g("s_waitcnt vmcnt(9)")
    stamp(g, opts, 1)
    ln_compute(g, XS[0])
    g("s_waitcnt vmcnt(0)")
    ln_compute(g, XS[1])
    flag_wait(g, 48, 49, 2, "kvw")
    ln_write(g, XS[0], 44)
    ln_write(g, XS[1], 46)
    g.label(Lsk)
    flag_wait(g, 48, 49, 2, "kvw2")
    g(f"s_lshl_b32 s9, s{S_W4}, 2")
    g(f"s_add_u32 s9, s9, {F_A}")
    g("v_mov_b32 v50, s9")
    g("v_mov_b32 v51, 1")
    g("s_waitcnt lgkmcnt(0)")
    g("ds_write_b32 v50, v51")
    stamp(g, opts, 9)
    g("v_and_b32 v50, 1, v1")
    g("v_lshlrev_b32 v50, 2, v50")
    g(f"v_add_u32 v50, {F_P + 8}, v50")
    flag_wait(g, 50, 49, 4, "qst")
    g(f"v_add_u32 v48, {F_A - F_P}, v48")
    flag_wait(g, 48, 49, 1, "xn")
    stamp(g, opts, 2)


def f_kv(g, opts):
    aux = " sc1"
    ln_lane_setup(g)
    g(f"s_lshr_b32 s13, s{S_FS}, 1")
    g("s_lshl_b32 s11, s13, 4")
    g(f"s_lshl_b32 s12, s{S_W4}, 3")
    g("s_add_u32 s11, s11, s12")
    ln_load(g, 8, 11)
    ln_addr(g, 44, 11)
    g("v_and_b32 v48, 3, v1")
    g("v_lshlrev_b32 v48, 2, v48")
    g(f"v_add_u32 v48, {F_P}, v48")
    g(f"s_lshl_b32 s9, s{S_W4}, 2")
    g(f"s_add_u32 s9, s9, {F_P}")
    g("v_mov_b32 v47, s9")
    g("v_and_b32 v5, 15, v1")
    g("v_lshrrev_b32 v6, 4, v1")
    g("v_bfe_u32 v7, v5, 1, 3")
    g("v_xor_b32 v7, v7, v6")
    g("v_mul_u32_u24 v70, 1152, v5")
    g("s_mul_i32 s9, s13, 18432")
    g("v_add_u32 v70, s9, v70")
    g("v_xor_b32 v71, 4, v7")
    g("v_lshl_add_u32 v71, v71, 4, v70")
    g("v_lshl_add_u32 v70, v7, 4, v70")
    g("v_lshrrev_b32 v7, 2, v1")
    g("v_mul_u32_u24 v72, 48, v7")
    g("v_and_b32 v7, 3, v1")
    g("v_lshlrev_b32 v7, 3, v7")
    g(f"s_cmp_lg_u32 s{S_W4}, 0")
    g("s_cselect_b64 vcc, -1, 0")
    g("v_cndmask_b32 v7, v7, 40, vcc")
    g("v_add_u32 v72, v72, v7")
    g("s_cmp_lt_u32 s13, 2")
    g("s_cselect_b32 s9, 36864, 0")
    g("v_add_u32 v72, s9, v72")
    g("s_waitcnt vmcnt(0)")
    stamp(g, opts, 10)
    ln_compute(g, 8)
    ln_write(g, 8, 44)
    g("v_mov_b32 v46, 1")
    g("s_waitcnt lgkmcnt(0)")
    g("ds_write_b32 v47, v46")
    flag_wait(g, 48, 49, 1, "kvr")
    def rd(kk):
        b = 80 + 8 * (kk % 3)
        return [f"ds_read_b64_tr_b16 {vr(b,2)}, v72 offset:{kk*1536}",
                f"ds_read_b64_tr_b16 {vr(b+2,2)}, v72 offset:{kk*1536+768}",
                f"ds_read_b128 {vr(b+4,4)}, v{70+(kk&1)} offset:{XH + (kk>>1)*128}"]
    LVv, Lj = g.new("kv_v"), g.new("kv_j")
    g(f"s_bitcmp1_b32 s{S_FS}, 0")
    g(f"s_cbranch_scc1 {LVv}")
    for isv in range(2):
        if isv:
            g.label(LVv)
        for l in rd(0) + rd(1): g(l)
        for kk in range(18):
            if kk + 2 < 18:
                for l in rd(kk + 2): g(l)
                g("s_waitcnt lgkmcnt(6)")
            else:
                g(f"s_waitcnt lgkmcnt({3 if kk == 16 else 0})")
            b = 80 + 8 * (kk % 3)
            A, B = (vr(b+4,4), vr(b,4)) if isv else (vr(b,4), vr(b+4,4))
            g(f"v_mfma_f32_16x16x32_bf16 v[76:79], {A}, {B}, {'0' if kk == 0 else 'v[76:79]'}")
        if not isv:
            g(f"s_branch {Lj}")
    g.label(Lj)
    g("v_mov_b32 v46, 2")
    g("ds_write_b32 v47, v46")
    g(f"s_lshl_b32 s9, s{S_RB}, 1")
    g("s_lshr_b32 s10, s13, 1")
    g("s_add_u32 s9, s9, s10")
    g(f"s_mul_i32 s9, s9, {TILE_B}")
    g(f"s_add_u32 s9, s9, {WS_KV}")
    g("s_and_b32 s12, s13, 1")
    g("s_nop 4")
    g("v_cvt_pk_bf16_f32 v76, v76, v77")
    g("v_cvt_pk_bf16_f32 v77, v78, v79")
    Lc = [g.new("kvp") for _ in range(4)]
    g(f"s_bitcmp1_b32 s{S_FS}, 0")
    g(f"s_cbranch_scc1 {Lc[1]}")
    g("s_lshl_b32 s10, s12, 4")
    g("v_add_u32 v7, s10, v5")
    g(f"s_cmp_lg_u32 s{S_W4}, 0")
    g(f"s_cbranch_scc1 {Lc[0]}")
    g("v_lshrrev_b32 v2, 1, v6")
    g("v_lshl_add_u32 v7, v2, 5, v7")
    g("v_lshlrev_b32 v7, 4, v7")
    g("v_and_b32 v2, 1, v6")
    g("v_lshl_add_u32 v7, v2, 3, v7")
    g(f"buffer_store_dwordx2 v[76:77], v7, {sr(SRD_WS)}, s9 offen{aux}")
    g(f"s_branch {Lc[3]}")
    g.label(Lc[0])
    g("v_lshlrev_b32 v7, 2, v7")
    g("s_mov_b64 exec, 0xffff")
    g(f"buffer_store_dword v77, v7, {sr(SRD_WS)}, s9 offen offset:1024{aux}")
    g("s_mov_b64 exec, -1")
    g(f"s_branch {Lc[3]}")
    g.label(Lc[1])
    g(f"s_mul_i32 s10, s12, {VH_B}")
    g("s_add_u32 s9, s9, s10")
    g("v_and_b32 v2, 1, v6")
    g(f"v_mul_u32_u24 v7, {VG_B}, v2")
    g("v_lshl_add_u32 v7, v5, 4, v7")
    g("v_lshrrev_b32 v2, 1, v6")
    g("v_lshl_add_u32 v7, v2, 3, v7")
    g(f"s_cmp_lg_u32 s{S_W4}, 0")
    g(f"s_cbranch_scc1 {Lc[2]}")
    g(f"buffer_store_dwordx2 v[76:77], v7, {sr(SRD_WS)}, s9 offen offset:1152{aux}")
    g(f"s_branch {Lc[3]}")
    g.label(Lc[2])
    g("v_mov_b32 v2, 0x3f803f80")
    g("v_cmp_eq_u32 vcc, 4, v5")
    g("s_nop 1")
    g("v_cndmask_b32 v76, v76, v2, vcc")
    g("v_cndmask_b32 v77, v77, v2, vcc")
    g("v_cmp_eq_u32 vcc, 5, v5")
    g("s_nop 1")
    g("v_cndmask_b32 v76, v76, 0, vcc")
    g("v_cndmask_b32 v77, v77, 0, vcc")
    g("s_mov_b32 exec_lo, 0x003c003c")
    g("s_mov_b32 exec_hi, 0x003c003c")
    g(f"buffer_store_dwordx2 v[76:77], v7, {sr(SRD_WS)}, s9 offen offset:{1152+14*16}{aux}")
    g("s_mov_b64 exec, -1")
    g.label(Lc[3])
    if opts.get("fuse"):
        Lz = g.new("kvz")
        g(f"s_add_u32 s9, s{S_FS}, s{S_W4}")
        g("s_cmp_lg_u32 s9, 0")
        g(f"s_cbranch_scc1 {Lz}")
        g(f"s_lshl_b32 s9, s{S_RB}, 7")
        g(f"s_add_u32 s9, s9, {WS_FLAG}")
        g("v_mov_b32 v2, 0")
        g("s_mov_b64 exec, 1")
        g(f"buffer_store_dword v2, v2, {sr(SRD_WS)}, s9 offen sc1")
        g("s_mov_b64 exec, -1")
        g.label(Lz)
    g("s_waitcnt vmcnt(0)")
    stamp(g, opts, 11)
    Lw1, Lad = g.new("arr1"), g.new("arrd")
    g(f"s_cmp_lg_u32 s{S_W4}, 0")
    g(f"s_cbranch_scc1 {Lw1}")
    g(f"v_mov_b32 v48, {F_P + 4}")
    flag_wait(g, 48, 49, 3, "arr")
    srd(g, SRD_DBG, P_DBG, 256)
    NSHD = opts.get("shards", 8)
    g(f"s_and_b32 s9, s2, {NSHD-1}")
    g(f"s_mul_i32 s9, s9, {128 // NSHD if NSHD > 1 else 0}")
    g("v_mov_b32 v3, s9")
    g("v_mov_b32 v4, 1")
    g("s_mov_b64 exec, 1")
    g(f"buffer_atomic_add v4, v3, {sr(SRD_DBG)}, 0 offen sc0 sc1")
    g("s_waitcnt vmcnt(0)")
    g("v_readfirstlane_b32 s9, v4")
    g(f"s_cmp_lg_u32 s9, {256 // NSHD - 1}")
    g(f"s_cbranch_scc1 {Lad}")
    g("v_mov_b32 v4, 1")
    g("v_mov_b32 v3, 0")
    if NSHD > 1:
        g(f"buffer_atomic_add v4, v3, {sr(SRD_DBG)}, 0 offen offset:4 sc0 sc1")
        g("s_waitcnt vmcnt(0)")
        g("v_readfirstlane_b32 s9, v4")
        g(f"s_cmp_lg_u32 s9, {NSHD - 1}")
        g(f"s_cbranch_scc1 {Lad}")
        g("v_mov_b32 v4, 1")
    g(f"buffer_store_dword v4, v3, {sr(SRD_DBG)}, 0 offen offset:128 sc1")
    g(f"s_branch {Lad}")
    g.label(Lw1)
    g("v_mov_b32 v46, 3")
    g("ds_write_b32 v47, v46")
    g.label(Lad)
    g("s_mov_b64 exec, -1")


def f_poll_go(g, opts):
    Ln = g.new("gsn")
    g(f"s_cmp_lg_u32 s{S_W4}, 1")
    g(f"s_cbranch_scc1 {Ln}")
    srd(g, SRD_DBG, P_DBG, 256)
    g("v_mov_b32 v3, 0")
    g("v_mov_b32 v4, 1")
    Lp, Ld = g.new("gpoll"), g.new("gpolld")
    g.label(Lp)
    g(f"buffer_load_dword v5, v3, {sr(SRD_DBG)}, 0 offen offset:128 sc1")
    g("s_waitcnt vmcnt(0)")
    g("v_cmp_ne_u32 vcc, 1, v5")
    g("s_nop 4")
    g(f"s_cbranch_vccz {Ld}")
    g(f"s_sleep {opts.get('psleep', 4)}")
    g(f"s_branch {Lp}")
    g.label(Ld)
    g(f"v_mov_b32 v2, {F_G}")
    g("ds_write_b32 v2, v4")
    if not opts.get("nopf"):
        g("s_lshr_b32 s9, s2, 3")
        g(f"s_mul_i32 s9, s9, {CHUNK_B}")
        g(f"s_add_u32 s9, s9, {WS_KV}")
        g("v_min_u32 v5, 38, v1")
        g("v_lshlrev_b32 v5, 7, v5")
        g(f"buffer_load_dword v250, v5, {sr(SRD_WS)}, s9 offen sc1")
    g.label(Ln)


def f_stage(g, opts):
    g(f"s_bitcmp1_b32 s{S_FS}, 0")
    g(f"s_cselect_b32 s{SRD_WK}, s{P_WV}, s{P_WK}")
    g(f"s_cselect_b32 s{SRD_WK+1}, s{P_WV+1}, s{P_WK+1}")
    g(f"s_and_b32 s{SRD_WK+1}, s{SRD_WK+1}, 0xffff")
    g(f"s_mov_b32 s{SRD_WK+2}, 20736")
    g(f"s_mov_b32 s{SRD_WK+3}, 0x00020000")
    for j in range(3):
        g(f"v_add_u32 v5, {64*j}, v1")
        g("v_mul_u32_u24 v6, 21846, v5")
        g("v_lshrrev_b32 v6, 16, v6")
        g("v_mul_u32_u24 v7, 3, v6")
        g("v_sub_u32 v7, v5, v7")
        g("v_lshlrev_b32 v7, 4, v7")
        g("v_min_u32 v7, 20, v7")
        g(f"v_mad_u32_u24 v{44+j}, v6, 36, v7")
    g(f"s_lshr_b32 s13, s{S_FS}, 1")
    g("s_cmp_lt_u32 s13, 2")
    g("s_cselect_b32 s12, 36864, 0")
    g(f"s_and_b32 s11, s{S_W4}, 1")
    for n in range(5):
        Ls = g.new("kws")
        if n == 4:
            g("s_cmp_lg_u32 s11, 0")
            g(f"s_cbranch_scc1 {Ls}")
        g(f"s_add_u32 s14, s11, {2*n}")
        g(f"s_mul_i32 s9, s14, {64*36}")
        g("s_mul_i32 s10, s14, 3072")
        g("s_add_u32 s10, s10, s12")
        for j in range(3):
            g(f"s_add_u32 m0, s10, {j*1024}")
            g("s_nop 0")
            g(f"buffer_load_dwordx4 v{44+j}, {sr(SRD_WK)}, s9 offen lds")
        g.label(Ls)
    for j in range(9):
        g(f"v_add_u32 v5, {64*j}, v1")
        g("v_mul_u32_u24 v6, 7282, v5")
        g("v_lshrrev_b32 v6, 16, v6")
        g("v_mul_u32_u24 v7, 9, v6")
        g("v_sub_u32 v7, v5, v7")
        g("v_mul_u32_u24 v6, 1152, v6")
        g(f"v_lshl_add_u32 v{50+j}, v7, 4, v6")
        if j % 4:
            g(f"v_subrev_u32 v{50+j}, {(j%4)*1024}, v{50+j}")
    g(f"s_lshl_b32 s9, s{S_W4}, 2")
    g(f"s_add_u32 s9, s9, {F_P}")
    g("v_mov_b32 v47, s9")
    g("v_mov_b32 v46, 2")
    g(f"s_mul_i32 s12, s{S_FS}, 144")
    NE = opts.get("qearly", 0)
    for n in range(5):
        if n == NE:
            g(f"s_waitcnt vmcnt({9*NE})")
            g("ds_write_b32 v47, v46")
            stamp(g, opts, 10)
        Ls = g.new("qs")
        if n == 4:
            g("s_cmp_lg_u32 s11, 0")
            g(f"s_cbranch_scc1 {Ls}")
        g(f"s_add_u32 s14, s11, {2*n}")
        g(f"s_mul_i32 s9, s14, {64*1152}")
        g("s_add_u32 s9, s9, s12")
        g("s_mul_i32 s10, s14, 9216")
        g(f"s_add_u32 s10, s10, {QST}")
        for j in range(9):
            if j % 4 == 0:
                g(f"s_add_u32 m0, s10, {(j//4)*4096}")
                g("s_nop 0")
            g(f"buffer_load_dwordx4 v{50+j}, {sr(SRD_WQ)}, s9 offen offset:{(j%4)*1024} lds")
        g.label(Ls)
    stamp(g, opts, 11)


A_Q1 = [16, 20]
A_Q2 = [24, 28]
A_S = [32, 48]
A_P = [64, 72]
A_O = [80, 96]
def A_KV(st, u):
    return 112 + (st * 2 + u) * 16
A_M = [176, 177]
A_AK1, A_AK2, A_AV = 178, 179, 180
A_AFL, A_FLD, A_FLW = 181, 182, 183
A_DV0, A_DV1 = 184, 185
A_T = 186
A_FV = 200
QW = 128
QX = 236


def q_phase(g, opts):
    QA = [32, 48]
    AB = [112, 120]
    BB = [128, 144]
    def reads(kk):
        b = kk & 1
        off = kk * 4608
        st = 0
        if off >= 65536 - 4608:
            off -= 13 * 4608; st = 1
        L = []
        for m in range(2):
            for jh in range(2):
                L.append(f"ds_read_b64_tr_b16 {vr(AB[b]+m*4+jh*2,2)}, v{Q_VTA+st} offset:{off + (m*8+jh*16)*144}")
            for rt in range(2):
                L.append(f"ds_read_b128 {vr(BB[b]+(rt*2+m)*4,4)}, v{Q_VBA+(kk&1)*2+m} offset:{XH + rt*36864 + (kk>>1)*128}")
        return L
    def mfmas(kk):
        b = kk & 1
        L = []
        for m in range(2):
            for rt in range(2):
                c = "0" if (kk == 0 and m == 0) else vr(QA[rt], 16)
                L.append(f"v_mfma_f32_32x32x16_bf16 {vr(QA[rt],16)}, {vr(AB[b]+m*4,4)}, {vr(BB[b]+(rt*2+m)*4,4)}, {c}")
        return L
    for l in reads(0): g(l)
    for l in reads(1): g(l)
    for kk in range(18):
        g("s_waitcnt lgkmcnt(8)" if kk < 16 else "s_waitcnt lgkmcnt(8)" if kk == 16 else "s_waitcnt lgkmcnt(0)")
        if kk == 15:
            g(f"ds_write_b32 v{A_FLW}, v{A_FV}")
        mf = mfmas(kk)
        rd = reads(kk + 2) if kk + 2 < 18 else []
        g(mf[0]); g(mf[1])
        for l in rd[:2]: g(l)
        g(mf[2])
        for l in rd[2:4]: g(l)
        g(mf[3])
        for l in rd[4:]: g(l)
    g(f"s_mov_b32 s9, {f32bits(CSCALE)}")
    g("s_nop 15")
    for rt in range(2):
        for r in range(16):
            g(f"v_mul_f32 v{QA[rt]+r}, s9, v{QA[rt]+r}")
    Lodd, Lqd = g.new("odd"), g.new("qdone")
    g(f"s_bitcmp1_b32 s{S_W4}, 0")
    g(f"s_cbranch_scc1 {Lodd}")
    for odd in range(2):
        if odd:
            g.label(Lodd)
        for rt in range(2):
            q = QA[rt] + 2 * odd
            for p in range(4):
                g(f"v_cvt_pk_bf16_f32 v{A_Q1[rt]+p}, v{q+2*p}, v{q+2*p+1}")
            t = QA[rt] + (14 if odd else 8)
            g(f"v_cvt_pk_bf16_f32 v{A_T+8}, v{t}, v{t+1}")
            g(f"v_cndmask_b32 v{A_Q2[rt]}, 0, v{A_T+8}, s[{S_LO}:{S_LO+1}]")
        if not odd:
            g(f"s_branch {Lqd}")
    g.label(Lqd)
    for rt in range(2):
        for p in range(1, 4):
            g(f"v_mov_b32 v{A_Q2[rt]+p}, 0")


Q_VBA = 160
Q_VTA = 164
def q_setup(g, opts):
    g("v_and_b32 v2, 31, v1")
    g("v_lshrrev_b32 v3, 5, v1")
    g("v_bfe_u32 v4, v2, 1, 3")
    g("v_xor_b32 v4, v4, v3")
    g("v_mul_u32_u24 v5, 1152, v2")
    for e in range(2):
        for m in range(2):
            g(f"v_xor_b32 v6, {4*e+2*m}, v4")
            g(f"v_lshl_add_u32 v{Q_VBA+e*2+m}, v6, 4, v5")
    g("v_bfe_u32 v4, v1, 2, 2")
    g("v_lshl_add_u32 v4, v3, 2, v4")
    g("v_bfe_u32 v5, v1, 4, 1")
    g("v_and_b32 v6, 3, v1")
    g("v_lshl_add_u32 v5, v5, 2, v6")
    g(f"s_mul_i32 s9, s{S_W4}, 36")
    g(f"s_and_b32 s10, s{S_W4}, 1")
    g("s_lshl_b32 s10, s10, 2")
    g("s_sub_u32 s9, s9, s10")
    g(f"s_add_u32 s9, s9, {QST}")
    tbl_e = sum(v << (4*i) for i, v in enumerate([0,2,1,3,4,4,4,4]))
    tbl_o = sum(v << (4*i) for i, v in enumerate([0,2,1,3,2,4,4,4]))
    g(f"s_mov_b32 s11, {tbl_e}")
    g("s_cmp_lg_u32 s10, 0")
    g(f"s_cselect_b32 s11, {tbl_o}, s11")
    g("v_lshlrev_b32 v5, 2, v5")
    g("v_bfe_u32 v5, s11, v5, 4")
    g("v_lshlrev_b32 v6, 3, v5")
    g("v_add_u32 v6, s9, v6")
    g("v_mul_u32_u24 v4, 144, v4")
    g(f"v_add_u32 v{Q_VTA}, v4, v6")
    g(f"v_add_u32 v{Q_VTA+1}, {13*4608}, v{Q_VTA}")
    g("v_and_b32 v4, 3, v1")
    g("v_lshlrev_b32 v4, 2, v4")
    g(f"v_add_u32 v{A_AFL}, {F_KV}, v4")
    g(f"s_lshl_b32 s9, s{S_W4}, 2")
    g(f"s_add_u32 s9, s9, {F_KV}")
    g(f"v_mov_b32 v{A_FLW}, s9")
    g(f"v_mov_b32 v{A_FV}, 1")


def global_kv_sync(g, opts):
    g(f"v_mov_b32 v2, {F_G}")
    flag_wait(g, 2, A_FLD, 1, "gsb")
    flag_wait(g, A_AFL, A_FLD, 2, "gsa")


from gen_attn import attention
from gen_ffn import ffn, ffn_setup


def main_kernel(name, opts):
    g = G()
    me = sys.modules[__name__]
    head(g, opts)
    Lfl = g.new("noflag")
    g(f"s_cmp_lg_u32 s{S_WV}, 0")
    g(f"s_cbranch_scc1 {Lfl}")
    g("v_lshlrev_b32 v5, 2, v1")
    g("v_and_b32 v5, 127, v5")
    g(f"v_add_u32 v5, {FLAGS}, v5")
    g("v_mov_b32 v6, 0")
    g("ds_write_b32 v5, v6")
    g("s_waitcnt lgkmcnt(0)")
    g.label(Lfl)
    g("s_barrier")
    Lf = g.new("fwaves")
    g(f"s_cmp_ge_u32 s{S_WV}, 4")
    g(f"s_cbranch_scc1 {Lf}")
    touches(g, opts)
    q_setup(g, opts)
    a_layernorm(g, opts)
    q_phase(g, opts)
    stamp(g, opts, 3)
    attention(g, opts, me)
    stamp_flush(g, opts)
    g("s_branch L_end")
    g.label(Lf)
    g("s_setprio 3")
    srd(g, SRD_WQ, P_WQ, 663552)
    Lst, Lfj = g.new("fstage"), g.new("fjoin")
    g(f"s_cmp_ge_u32 s{S_W4}, 2")
    g(f"s_cbranch_scc1 {Lst}")
    f_kv(g, opts)
    g(f"s_branch {Lfj}")
    g.label(Lst)
    f_stage(g, opts)
    g.label(Lfj)
    g("s_setprio 0")
    srd(g, SRD_WO, P_WO, 663552)
    srd(g, SRD_W1, P_W1, 5308416)
    srd(g, SRD_W2, P_W2, 5308416)
    srd(g, SRD_B1, P_B1, 9216)
    g(f"s_mul_i32 s9, s{S_W4}, 288")
    g(f"s_mul_i32 s10, s{S_FS}, 1152")
    g("s_add_u32 s9, s9, s10")
    g("v_lshrrev_b32 v5, 4, v1")
    g("v_lshlrev_b32 v5, 3, v5")
    for ct in range(9):
        g(f"buffer_load_dwordx2 {vr(160+2*ct,2)}, v5, {sr(SRD_B1)}, s9 offen offset:{ct*32}")
    touch_w1(g, opts)
    fill = ffn_setup(g, opts, me)
    Lnw = g.new("fnw")
    g(f"s_cmp_lt_u32 s{S_W4}, 2")
    g(f"s_cbranch_scc1 {Lnw}")
    g(f"s_lshl_b32 s9, s{S_W4}, 2")
    g(f"s_add_u32 s9, s9, {F_P}")
    g("v_mov_b32 v5, s9")
    g("v_mov_b32 v6, 4")
    g(f"s_waitcnt vmcnt({9 if opts.get('nopf') else 10})")
    g("ds_write_b32 v5, v6")
    g.label(Lnw)
    stamp(g, opts, 1)
    f_poll_go(g, opts)
    stamp(g, opts, 12)
    g("v_and_b32 v5, 3, v1")
    g("v_lshlrev_b32 v5, 2, v5")
    g(f"v_add_u32 v5, {F_KV}, v5")
    flag_wait(g, 5, 6, 1, "ring")
    for o in fill:
        for l in o: g(l)
    opts["npf"] = 0
    ffn(g, opts, me)
    stamp_flush(g, opts)
    g.label("L_end")
    g("s_endpgm")
    txt = g.text().replace("L_", f"L{opts['tag']}_")
    return f"""
.globl {name}
.p2align 8
.type {name},@function
{name}:
{txt}
"""


def reduce_kernel(name, opts={}):
    g = G()
    g("s_cmp_ge_u32 s2, 576")
    g("s_cbranch_scc1 LR_end")
    if opts.get("stamp"):
        g("s_memrealtime s[40:41]")
    g("s_load_dwordx2 s[16:17], s[0:1], 0")
    g("s_load_dwordx2 s[18:19], s[0:1], 72")
    g("s_load_dwordx2 s[20:21], s[0:1], 80")
    g("s_load_dwordx2 s[22:23], s[0:1], 96")
    g("v_and_b32 v1, 63, v0")
    g("v_lshrrev_b32 v2, 6, v0")
    g("s_nop 0")
    g("v_readfirstlane_b32 s3, v2")
    g("s_lshl_b32 s4, s2, 2")
    g("s_add_u32 s4, s4, s3")
    g("s_mul_i32 s5, s4, 3641")
    g("s_lshr_b32 s5, s5, 16")
    g("s_mul_i32 s6, s5, 18")
    g("s_sub_u32 s6, s4, s6")
    g("s_lshr_b32 s7, s5, 2")
    g("s_and_b32 s8, s5, 3")
    g("s_waitcnt lgkmcnt(0)")
    srd(g, 24, 16, 2359296)
    srd(g, 28, 18, 1152)
    srd(g, 32, 20, 2359296)
    srd(g, 36, 22, WS_SIZE)
    g("s_mul_i32 s9, s7, 589824")
    g("s_mul_i32 s10, s8, 18")
    g("s_add_u32 s10, s10, s6")
    g("s_lshl_b32 s10, s10, 10")
    g("s_add_u32 s9, s9, s10")
    g(f"s_add_u32 s9, s9, {WS_PART}")
    g("v_lshlrev_b32 v2, 4, v1")
    for fs in range(8):
        g(f"buffer_load_dwordx4 {vr(8+4*fs,4)}, v2, s[36:39], s9 offen")
        if fs < 7:
            g("s_add_u32 s9, s9, 73728")
    g("s_lshr_b32 s10, s6, 1")
    g("s_and_b32 s11, s6, 1")
    g("s_mul_i32 s12, s8, 288")
    g("s_lshl_b32 s10, s10, 5")
    g("s_add_u32 s12, s12, s10")
    g("v_lshrrev_b32 v3, 4, v1")
    g("v_lshlrev_b32 v3, 3, v3")
    g("v_add_u32 v3, s12, v3")
    g("s_lshl_b32 s13, s7, 1")
    g("s_add_u32 s13, s13, s11")
    g("s_mul_i32 s13, s13, 36864")
    g("v_and_b32 v4, 15, v1")
    g("v_mul_u32_u24 v4, 1152, v4")
    g("v_add_u32 v4, v4, v3")
    g("s_add_u32 s14, s13, 18432")
    g("buffer_load_dwordx2 v[40:41], v3, s[28:31], 0 offen")
    g("buffer_load_dwordx2 v[42:43], v4, s[24:27], s13 offen")
    g("buffer_load_dwordx2 v[44:45], v4, s[24:27], s14 offen")
    g("s_waitcnt vmcnt(0)")
    def unpack(dst, src):
        g(f"v_lshlrev_b32 v{dst}, 16, v{src}")
        g(f"v_and_b32 v{dst+1}, 0xffff0000, v{src}")
    for d in range(4):
        unpack(48 + 2 * d, 8 + d)
    for fs in range(1, 8):
        for d in range(4):
            unpack(56, 8 + 4 * fs + d)
            g(f"v_pk_add_f32 {vr(48+2*d,2)}, {vr(48+2*d,2)}, v[56:57]")
    for d in range(4):
        unpack(56, 40 + (d & 1))
        g(f"v_pk_add_f32 {vr(48+2*d,2)}, {vr(48+2*d,2)}, v[56:57]")
        unpack(56, 42 + d)
        g(f"v_pk_add_f32 {vr(48+2*d,2)}, {vr(48+2*d,2)}, v[56:57]")
    for d in range(4):
        g(f"v_cvt_pk_bf16_f32 v{60+d}, v{48+2*d}, v{49+2*d}")
    g("buffer_store_dwordx2 v[60:61], v4, s[32:35], s13 offen")
    g("buffer_store_dwordx2 v[62:63], v4, s[32:35], s14 offen")
    if opts.get("stamp"):
        g("s_waitcnt vmcnt(0)")
        g("s_memrealtime s[42:43]")
        g("s_waitcnt lgkmcnt(0)")
        g("v_mov_b32 v8, s40")
        g("v_mov_b32 v9, s42")
        g("v_mov_b32 v2, 0")
        g("s_lshl_b32 s4, s4, 3")
        g(f"s_add_u32 s4, s4, {WS_DBG + (1<<20) + (2<<18)}")
        g("s_mov_b64 exec, 1")
        g("buffer_store_dwordx2 v[8:9], v2, s[36:39], s4 offen")
    g.label("LR_end")
    g("s_endpgm")
    for u in range(2304):
        assert (u * 3641) >> 16 == u // 18
    return f"""
.globl {name}
.p2align 8
.type {name},@function
{name}:
{g.text()}
"""


def kd(name, vgpr, sgpr=100):
    return f"""
.p2align 6
.amdhsa_kernel {name}
  .amdhsa_next_free_vgpr {vgpr}
  .amdhsa_next_free_sgpr {sgpr}
  .amdhsa_accum_offset {vgpr}
  .amdhsa_group_segment_fixed_size 0
  .amdhsa_kernarg_size 104
  .amdhsa_user_sgpr_count 2
  .amdhsa_user_sgpr_kernarg_segment_ptr 1
  .amdhsa_system_sgpr_workgroup_id_x 1
.end_amdhsa_kernel
"""


def build(mode):
    hdr = []
    body = []
    kds = []
    def add(name, code, grid, block, lds, vgpr):
        hdr.append(f"; @launch kernel={name} grid=({grid},1,1) block=({block},1,1) lds={lds}")
        body.append(code)
        kds.append(kd(name, vgpr))
    o = dict(tag="M", publish=True, inkernel=True)
    for m in mode.split(","):
        if "=" in m:
            k, v = m.split("="); o[k] = int(v)
        elif m: o[m] = True
    if o.get("fuse"):
        nm = KN + "_kernel"
        add(nm, main_kernel(nm, o), 256, 512, LDS_SIZE, 256)
        hdr[-1] = f"; @launch grid=(256,1,1) block=(512,1,1) lds={LDS_SIZE}"
    else:
        add("main_kernel", main_kernel("main_kernel", o), 256, 512, LDS_SIZE, 256)
    if not o.get("fuse"):
        add("reduce_kernel", reduce_kernel("reduce_kernel", o), 576, 256, 0, 64)
    out = "\n".join(hdr) + '\n.amdgcn_target "amdgcn-amd-amdhsa--gfx950"\n.text\n' + "\n".join(body) + '\n.section .rodata,"a"\n' + "\n".join(kds)
    return out


if __name__ == "__main__":
    mode = sys.argv[1]
    open(sys.argv[2], "w").write(build(mode))
```

```python
def attention(g, opts, M):
    if opts.get("noattn"):
        return
    vr, sr = M.vr, M.sr
    S_RB, S_FS, S_WV, S_W4, S_LO = M.S_RB, M.S_FS, M.S_WV, M.S_W4, M.S_LO
    Q1, Q2, S, P, O, KV = M.A_Q1, M.A_Q2, M.A_S, M.A_P, M.A_O, M.A_KV
    AM, AK1, AK2, AV = M.A_M, M.A_AK1, M.A_AK2, M.A_AV
    AFL, FLD, FLW, DV, T, FV = M.A_AFL, M.A_FLD, M.A_FLW, M.A_DV0, M.A_T, M.A_FV
    S_C, S_THR, S_DOFF, S_M0B, S_LT = 84, 85, 86, 87, 88
    S_CK = [90, 92]
    LO = f"s[{S_LO}:{S_LO+1}]"
    CH, TB = M.CHUNK_B, M.TILE_B
    ldaux = " sc1" if opts.get("inkernel") else ""

    g("v_and_b32 v2, 31, v1")
    g("v_lshrrev_b32 v3, 5, v1")
    g(f"v_lshlrev_b32 v4, 4, v1")
    g(f"v_add_u32 v{AK1}, {M.KVR}, v4")
    g(f"v_lshlrev_b32 v4, 2, v2")
    g(f"v_add_u32 v{AK2}, {M.KVR + 1024}, v4")
    g("v_min_u32 v4, 19, v2")
    g("v_cmp_eq_u32 vcc, 22, v2")
    g("s_nop 1")
    g("v_cndmask_b32 v4, v4, 18, vcc")
    g("v_lshlrev_b32 v4, 4, v4")
    g(f"v_mul_u32_u24 v5, {M.VG_B}, v3")
    g("v_add_u32 v4, v4, v5")
    g(f"v_add_u32 v{AV}, {M.KVR + 1152}, v4")
    g(f"s_mul_i32 s9, s{S_W4}, {76*16}")
    g(f"v_lshlrev_b32 v4, 4, v1")
    g(f"v_add_u32 v{DV}, s9, v4")
    g(f"s_add_u32 s{S_M0B}, s9, {M.KVR}")
    g(f"s_mov_b32 s{S_LT}, {M.f32bits(M.LTHR) if not opts.get('norare') else 0x7f800000}")
    for st in range(2):
        for u in range(2):
            b = KV(st, u)
            g(f"v_mov_b32 v{b+5}, 0x3f803f80")
            g(f"v_mov_b32 v{b+6}, 0x3f80")
            g(f"v_mov_b32 v{b+7}, 0")
    for r in range(4):
        g(f"v_mov_b32 v{KV(1,1)+12+r}, 0")
    for rt in range(2):
        for r in range(16):
            g(f"v_mov_b32 v{O[rt]+r}, 0")
        for r in range(8):
            g(f"v_mov_b32 v{P[rt]+r}, 0")

    AD = 204
    g("v_and_b32 v2, 31, v1")
    g("v_lshrrev_b32 v3, 5, v1")
    g(f"v_mul_u32_u24 v4, {M.OSTR}, v2")
    g(f"v_add_u32 v4, {M.OREG}, v4")
    g(f"s_mul_i32 s9, s{S_W4}, 18")
    g("v_lshlrev_b32 v5, 2, v3")
    g("v_add_u32 v5, s9, v5")

    for p, dd in enumerate((0, 2, 8, 10, 16)):
        g(f"v_add_u32 v6, {dd}, v5")
        g("v_lshrrev_b32 v7, 5, v6")
        g(f"v_lshl_add_u32 v{AD+p}, v7, 6, v4")
        g("v_bfe_u32 v7, v6, 2, 2")
        g(f"v_lshl_add_u32 v{AD+p}, v7, 4, v{AD+p}")
        g("v_bfe_u32 v7, v6, 4, 1")
        g(f"v_lshl_add_u32 v{AD+p}, v7, 3, v{AD+p}")
        g("v_and_b32 v7, 3, v6")
        g(f"v_lshl_add_u32 v{AD+p}, v7, 1, v{AD+p}")
    g("v_and_b32 v6, 15, v1")
    g(f"s_lshl_b32 s9, s{S_W4}, 4")
    g("v_add_u32 v6, s9, v6")
    g(f"v_mul_u32_u24 v6, {M.OSTR}, v6")
    g(f"v_add_u32 v6, {M.OREG + 128}, v6")
    g("v_lshrrev_b32 v7, 4, v1")
    g("v_lshl_add_u32 v209, v7, 4, 16")
    g("v_add_u32 v210, 8, v209")
    g("v_cmp_eq_u32 vcc, 0, v7")
    g("v_cmp_eq_u32 s[92:93], 3, v7")
    g("s_nop 1")
    g("s_or_b64 vcc, vcc, s[92:93]")
    g("s_nop 1")
    g("v_cndmask_b32 v209, v209, 8, vcc")
    g("v_cndmask_b32 v210, v210, 24, vcc")
    g("v_add_u32 v209, v209, v6")
    g("v_add_u32 v210, v210, v6")

    def dma(slot):
        return [[f"s_add_u32 m0, s{S_M0B}, {slot*CH}", "s_nop 0",
                 f"buffer_load_dwordx4 v{DV}, {sr(M.SRD_WS)}, s{S_DOFF} offen{ldaux} lds"],
                ["s_mov_b64 exec, 0xfff",
                 f"buffer_load_dwordx4 v{DV}, {sr(M.SRD_WS)}, s{S_DOFF} offen offset:1024{ldaux} lds",
                 "s_mov_b64 exec, -1",
                 f"s_add_u32 s{S_DOFF}, s{S_DOFF}, {CH}"]]
    def frag_reads(slot, st):
        ops = []
        for u in range(2):
            b = KV(st, u)
            off = slot * CH + u * TB
            ops.append([f"ds_read_b128 {vr(b,4)}, v{AK1} offset:{off}"])
            ops.append([f"ds_read_b32 v{b+4}, v{AK2} offset:{off}"])
            ops.append([f"ds_read_b128 {vr(b+8,4)}, v{AV} offset:{off}"])
            ops.append([f"ds_read_b128 {vr(b+12,4)}, v{AV} offset:{off+M.VH_B}"])
        return ops
    def emit(ops):
        for o in ops:
            for l in o:
                g(l)
    def set_mref(rt):
        g(f"v_sub_f32 v{T}, 0, v{AM[rt]}")
        g(f"v_and_b32 v{T+1}, 0xffff0000, v{T}")
        g(f"v_sub_f32 v{T}, v{T}, v{T+1}")
        g(f"v_and_b32 v{T+2}, 0xffff0000, v{T}")
        g(f"v_sub_f32 v{T}, v{T}, v{T+2}")
        g(f"v_lshrrev_b32 v{T+1}, 16, v{T+1}")
        g(f"v_or_b32 v{T+1}, v{T+1}, v{T+2}")
        g(f"v_lshrrev_b32 v{T}, 16, v{T}")
        g(f"v_cndmask_b32 v{Q2[rt]+1}, 0, v{T+1}, {LO}")
        g(f"v_cndmask_b32 v{Q2[rt]+2}, 0, v{T}, {LO}")
    def qk1(rt, kb):
        return f"v_mfma_f32_32x32x16_bf16 {vr(S[rt],16)}, {vr(kb,4)}, {vr(Q1[rt],4)}, 0"
    def qk2(rt, kb):
        return f"v_mfma_f32_32x32x16_bf16 {vr(S[rt],16)}, {vr(kb+4,4)}, {vr(Q2[rt],4)}, {vr(S[rt],16)}"
    def pva(rt, kb):
        return f"v_mfma_f32_32x32x16_bf16 {vr(O[rt],16)}, {vr(kb+8,4)}, {vr(P[rt],4)}, {vr(O[rt],16)}"
    def pvb(rt, kb):
        return f"v_mfma_f32_32x32x16_bf16 {vr(O[rt],16)}, {vr(kb+12,4)}, {vr(P[rt]+4,4)}, {vr(O[rt],16)}"

    g(f"v_mov_b32 v{FV}, 2")
    g("s_waitcnt vmcnt(0)")
    M.stamp(g, opts, 8)
    g(f"ds_write_b32 v{FLW}, v{FV}")
    if opts.get("inkernel"):
        M.global_kv_sync(g, opts)
    else:
        M.flag_wait(g, AFL, FLD, 2, "ka")
    M.stamp(g, opts, 7)
    g("s_setprio 2")
    g(f"s_mov_b32 s{S_DOFF}, {M.WS_KV}")
    for c in range(3):
        emit(dma(c))
    g("s_waitcnt vmcnt(4)")
    g(f"v_mov_b32 v{FV}, 3")
    g(f"ds_write_b32 v{FLW}, v{FV}")
    M.flag_wait(g, AFL, FLD, 3, "kb")
    emit(frag_reads(0, 0))
    g("s_waitcnt lgkmcnt(0)")
    M.stamp(g, opts, 4)
    for u in range(2):
        for rt in range(2):
            g(qk1(rt, KV(0, u)))
            g(qk2(rt, KV(0, u)))
        g("s_nop 15")
        g("s_nop 3")
        for rt in range(2):
            s = S[rt]
            t = T + 10 + rt
            if u == 0:
                g(f"v_max_f32 v{t}, v{s}, v{s+15}")
            else:
                g(f"v_max3_f32 v{t}, v{t}, v{s}, v{s+15}")
            for r in range(1, 15, 2):
                g(f"v_max3_f32 v{t}, v{t}, v{s+r}, v{s+r+1}")
    for rt in range(2):
        t = T + 10 + rt
        g(f"v_mov_b32 v{T+1}, v{t}")
        g("s_nop 1")
        g(f"v_permlane32_swap_b32 v{t}, v{T+1}")
        g("s_nop 1")
        g(f"v_max_f32 v{T}, v{t}, v{T+1}")
        g(f"v_ceil_f32 v{T}, v{T}")
        g(f"v_add_f32 v{AM[rt]}, {M.f32bits(float(M.HEAD))}, v{T}")
        set_mref(rt)
    g("s_nop 1")
    g(qk1(0, KV(0, 0)))
    g(qk2(0, KV(0, 0)))
    g("s_nop 15")
    M.stamp(g, opts, 5)
    M.cstamp(g, opts, 11)
    g("s_mov_b32 s94, 0")
    g(f"s_mov_b32 s{S_C}, 0")
    g(f"s_mov_b32 s{S_THR}, 4")

    rare = []

    def half_iter(pos6, q, extra, shadow=()):
        st = pos6 & 1
        rt = q & 1
        u = q >> 1
        if q < 3:
            nst, nu, nrt = st, (q + 1) >> 1, (q + 1) & 1
        else:
            nst, nu, nrt = st ^ 1, 0, 0
        if q > 0:
            pst, pu, prt = st, (q - 1) >> 1, (q - 1) & 1
        else:
            pst, pu, prt = st ^ 1, 1, 1
        s, p = S[rt], P[rt]
        valu = []
        for grp in range(4):
            for r in range(4):
                valu.append(f"v_exp_f32 v{s+4*grp+r}, v{s+4*grp+r}")
            valu.append(f"v_cvt_pk_bf16_f32 v{p+2*grp}, v{s+4*grp}, v{s+4*grp+1}")
            valu.append(f"v_cvt_pk_bf16_f32 v{p+2*grp+1}, v{s+4*grp+2}, v{s+4*grp+3}")
        mf = {0: qk1(nrt, KV(nst, nu)), 6: qk2(nrt, KV(nst, nu)), 12: pvb(prt, KV(pst, pu)), 18: pva(rt, KV(st, u))}
        sh = list(shadow)
        for i in range(24):
            for l in extra.get(i, []):
                g(l)
            if i in mf:
                g(mf[i])
            g(valu[i])
            if valu[i].startswith("v_exp") and sh and sh[0][0] <= i:
                x = sh.pop(0)[1]
                for l in (x if isinstance(x, list) else [x]):
                    g(l)
        assert not sh, sh

    def rare_block(rt, kb, Lr, Lback):
        b = []
        b.append(f"{Lr}:")
        L = M.G()
        L(pvb(rt, kb))
        L("s_nop 15")
        L("s_nop 3")
        L(f"v_frexp_exp_i32_f32 v{T+3}, v{O[rt]+10}")
        L(f"v_add_u32 v{T+3}, {M.HEAD}, v{T+3}")
        L(f"v_max_i32 v{T+3}, 0, v{T+3}")
        L(f"v_cvt_f32_i32 v{T+4}, v{T+3}")
        L(f"v_sub_u32 v{T+3}, 0, v{T+3}")
        L(f"v_add_f32 v{AM[rt]}, v{AM[rt]}, v{T+4}")
        for r in range(11):
            L(f"v_ldexp_f32 v{O[rt]+r}, v{O[rt]+r}, v{T+3}")
        for r in range(4):
            L(f"v_mov_b32 v{P[rt]+4+r}, 0")
        old = g.lines
        g.lines = L.lines
        set_mref(rt)
        if opts.get("dbgrare"):
            g(f"s_add_u32 s95, s95, 1")
        g("s_nop 1")
        g(f"s_branch {Lback}")
        g.lines = old
        rare.append("\n".join(b + L.lines))

    Lloop, Lexit = g.new("aloop"), g.new("aexit")
    if opts.get("dbgrare"):
        g("s_mov_b32 s95, 0")
    g.label(Lloop)
    for pos6 in range(6):
        st = pos6 & 1
        g.c(f"==== chunk pos {pos6}")
        Lspin, Lback = g.new("aspin"), g.new("aback")
        ex = {}
        sh = [(1, "s_waitcnt vmcnt(2)"), (2, f"v_mov_b32 v{FV}, s{S_THR}"), (3, f"ds_write_b32 v{FLW}, v{FV}"),
              (19, f"ds_read_b32 v{FLD}, v{AFL}")]
        if opts.get("nosync") or opts.get("noflag"): sh = []
        half_iter(pos6, 0, ex, sh)
        fr = [x[0] for x in frag_reads((pos6 + 1) % 3, st ^ 1)]
        sh = [(6, "s_waitcnt lgkmcnt(0)"), (7, f"v_cmp_gt_u32 vcc, s{S_THR}, v{FLD}"),
              (12, [f"s_cbranch_vccnz {Lspin}", f"{Lback}:"]),
              (13, fr[0]), (14, fr[1]), (15, fr[4]), (18, fr[5]), (19, fr[2]), (20, fr[3]), (21, fr[6])]
        if opts.get("nosync"): sh = [(12, f"{Lback}:")]
        if opts.get("noflag"): sh = [(12, f"{Lback}:")] + sh[3:]
        if opts.get("noreads"): sh = sh[:3]
        ex = {}
        if st == 0:
            ex[17] = [f"v_cmp_lt_f32 s[{S_CK[1]}:{S_CK[1]+1}], s{S_LT}, v{O[1]+10}"]
        half_iter(pos6, 1, ex, sh)
        rare.append("\n".join([f"{Lspin}:", f"    ds_read_b32 v{FLD}, v{AFL}", "    s_waitcnt lgkmcnt(0)",
                               f"    v_cmp_gt_u32 vcc, s{S_THR}, v{FLD}", "    s_nop 4",
                               "    s_add_u32 s94, s94, 1", f"    s_cbranch_vccz {Lback}", "    s_sleep 1", f"    s_branch {Lspin}"]))
        ex = {}
        if st == 0:
            Lr, Lb = g.new("rare1"), g.new("rback1")
            ex[0] = [f"s_cmp_lg_u64 s[{S_CK[1]}:{S_CK[1]+1}], 0", f"s_cbranch_scc1 {Lr}", f"{Lb}:"]
            rare_block(1, KV(0, 0), Lr, Lb)
            ex[17] = [f"v_cmp_lt_f32 s[{S_CK[0]}:{S_CK[0]+1}], s{S_LT}, v{O[0]+10}"]
        slot = pos6 % 3
        sh = [(0, fr[7]), (1, f"s_add_u32 m0, s{S_M0B}, {slot*CH}"),
              (2, f"buffer_load_dwordx4 v{DV}, {sr(M.SRD_WS)}, s{S_DOFF} offen{ldaux} lds"),
              (7, ["s_mov_b64 exec, 0xfff",
                   f"buffer_load_dwordx4 v{DV}, {sr(M.SRD_WS)}, s{S_DOFF} offen offset:1024{ldaux} lds",
                   "s_mov_b64 exec, -1"]),
              (9, f"s_add_u32 s{S_DOFF}, s{S_DOFF}, {CH}")]
        if opts.get("nosync"): sh = []
        if opts.get("nodma"): sh = sh[:1]
        if opts.get("nodma2"): sh = sh[:3] + sh[4:]
        if opts.get("noreads"): sh = sh[1:]
        half_iter(pos6, 2, ex, sh)
        ex = {0: ["s_waitcnt lgkmcnt(0)"]}
        if st == 0:
            Lr, Lb = g.new("rare0"), g.new("rback0")
            ex[0] = ex[0] + [f"s_cmp_lg_u64 s[{S_CK[0]}:{S_CK[0]+1}], 0", f"s_cbranch_scc1 {Lr}", f"{Lb}:"]
            rare_block(0, KV(0, 1), Lr, Lb)
        sh = [(13, f"s_add_u32 s{S_THR}, s{S_THR}, 1")]
        if pos6 == 1:
            sh.append((14, f"s_cmp_eq_u32 s{S_THR}, 36"))
        half_iter(pos6, 3, ex, sh)
        if pos6 == 1:
            g(f"s_cbranch_scc1 {Lexit}")
    g(f"s_branch {Lloop}")
    for r in rare:
        g.lines.append(r)
    g.label(Lexit)
    g("s_nop 1")
    g(pvb(1, KV(1, 1)))
    g("s_setprio 0")
    M.stamp(g, opts, 6)
    M.cstamp(g, opts, 12)
    if opts.get("stamp"):
        g("v_writelane_b32 v254, s94, 10")
    g("s_waitcnt vmcnt(0) lgkmcnt(0)")
    g(f"v_mov_b32 v{FV}, 100")
    g(f"ds_write_b32 v{FLW}, v{FV}")
    g("s_nop 7")
    g("s_nop 7")
    if opts.get("dbgrare"):
        g("s_lshl_b32 s9, s2, 2")
        g(f"s_add_u32 s9, s9, s{S_W4}")
        g("s_lshl_b32 s9, s9, 2")
        g(f"s_add_u32 s9, s9, {M.WS_DBG}")
        g("v_mov_b32 v2, 0")
        g("v_mov_b32 v3, s95")
        g(f"buffer_store_dword v3, v2, {sr(M.SRD_WS)}, s9 offen")
    g("s_movk_i32 s9, 0x207")
    g("s_mov_b64 s[90:91], 0")
    the_slow = opts.get("slow", True)
    for rt in range(2):
        Lok = g.new("fin_ok")
        g(f"v_mul_f32 v{T}, 0, v{O[rt]}")
        g(f"v_mul_f32 v{T+1}, 0, v{O[rt]+1}")
        for r in range(2, 11):
            g(f"v_fma_f32 v{T+(r&1)}, v{O[rt]+r}, 0, v{T+(r&1)}")
        g(f"v_cmp_u_f32 s[90:91], v{T}, v{T+1}")
        g("s_nop 1")
        if opts.get("forceslow"):
            g("s_mov_b64 s[90:91], -1")
        g("s_cmp_eq_u64 s[90:91], 0")
        g(f"s_cbranch_scc1 {Lok}")
        slow_path(g, opts, M, rt, set_mref, qk1, qk2, pva, pvb)
        g.label(Lok)
    g("v_mov_b32 v6, 0")
    g("v_mov_b32 v7, 0")
    for rt in range(2):
        o = O[rt]
        g(f"v_rcp_f32 v{T}, v{o+10}")
        g("s_nop 0")
        for r in range(10):
            g(f"v_mul_f32 v{o+r}, v{o+r}, v{T}")
        for p in range(5):
            g(f"v_cvt_pk_bf16_f32 v{o+p}, v{o+2*p}, v{o+2*p+1}")
    M.flag_wait(g, AFL, FLD, 100, "kend")
    g("ds_write_b64 v209, v[6:7]")
    g("ds_write_b64 v210, v[6:7]")
    for rt in range(2):
        o = O[rt]
        for p in range(4):
            g(f"ds_write_b32 v{AD+p}, v{o+p} offset:{rt*32*M.OSTR}")
        g(f"s_mov_b64 exec, {LO}")
        g(f"ds_write_b32 v{AD+4}, v{o+4} offset:{rt*32*M.OSTR}")
        g("s_mov_b64 exec, -1")
    g("s_waitcnt lgkmcnt(0)")
    g(f"v_add_u32 v{FLW}, {M.F_O - M.F_KV}, v{FLW}")
    g(f"v_mov_b32 v{FV}, 1")
    g(f"ds_write_b32 v{FLW}, v{FV}")
    M.reduce_setup(g, S_WV)
    M.reduce_xb(g, 112, 0)
    M.reduce_xb(g, 118, 256)
    g(f"v_mov_b32 v8, {M.F_R + 16}")
    M.flag_wait(g, 8, 9, 1, "rsc")
    g("s_waitcnt vmcnt(0)")
    M.reduce_loads(g, S_WV, 16, 0)
    Lx = g.new("red8")
    Ly = g.new("red8j")
    g(f"s_cmp_lg_u32 s{S_WV}, 0")
    g(f"s_cbranch_scc1 {Lx}")
    M.reduce_loads(g, S_WV, 48, 8)
    M.reduce_sum(g, 48, 118, 128, 136, 256)
    g("s_waitcnt vmcnt(0)")
    g.label(Lx)
    M.reduce_sum(g, 16, 112, 144, 152, 0)
    g("s_waitcnt vmcnt(0)")


def slow_path(g, opts, M, rt, set_mref, qk1, qk2, pva, pvb):
    vr, sr = M.vr, M.sr
    Q1, Q2, S, P, O, KV = M.A_Q1, M.A_Q2, M.A_S, M.A_P, M.A_O, M.A_KV
    AM, AK1, AK2, AV, T = M.A_M, M.A_AK1, M.A_AK2, M.A_AV, M.A_T
    ldaux = " sc1" if opts.get("inkernel") else ""
    kb = KV(0, 0)
    s, p, o = S[rt], P[rt], O[rt]
    G1, G2, G3 = T + 6, T + 7, T + 8
    g(f"v_subrev_u32 v{G1}, {M.KVR}, v{AK1}")
    g(f"v_subrev_u32 v{G2}, {M.KVR}, v{AK2}")
    g(f"v_subrev_u32 v{G3}, {M.KVR}, v{AV}")
    for r in range(16):
        g(f"v_mov_b32 v{o+r}, 0")
    g(f"v_mov_b32 v{AM[rt]}, {M.f32bits(-8388608.0)}")
    g(f"s_mov_b32 s10, {M.WS_KV}")
    g("s_mov_b32 s11, 0")
    L, Lno = g.new("slow"), g.new("slownors")
    g.label(L)
    g(f"buffer_load_dwordx4 {vr(kb,4)}, v{G1}, {sr(M.SRD_WS)}, s10 offen{ldaux}")
    g(f"buffer_load_dword v{kb+4}, v{G2}, {sr(M.SRD_WS)}, s10 offen{ldaux}")
    g(f"buffer_load_dwordx4 {vr(kb+8,4)}, v{G3}, {sr(M.SRD_WS)}, s10 offen{ldaux}")
    g(f"buffer_load_dwordx4 {vr(kb+12,4)}, v{G3}, {sr(M.SRD_WS)}, s10 offen offset:{M.VH_B}{ldaux}")
    g(f"v_mov_b32 v{Q2[rt]+1}, 0")
    g(f"v_mov_b32 v{Q2[rt]+2}, 0")
    g("s_waitcnt vmcnt(0)")
    g("s_nop 1")
    g(qk1(rt, kb))
    g(qk2(rt, kb))
    g("s_nop 15")
    g("s_nop 3")
    g(f"v_max3_f32 v{T}, v{s}, v{s+1}, v{s+2}")
    for r in range(3, 15, 2):
        g(f"v_max3_f32 v{T}, v{T}, v{s+r}, v{s+r+1}")
    g(f"v_max_f32 v{T}, v{T}, v{s+15}")
    g(f"v_mov_b32 v{T+1}, v{T}")
    g("s_nop 1")
    g(f"v_permlane32_swap_b32 v{T}, v{T+1}")
    g("s_nop 1")
    g(f"v_max_f32 v{T}, v{T}, v{T+1}")
    g(f"v_ceil_f32 v{T}, v{T}")
    g(f"v_max_f32 v{T}, v{T}, v{AM[rt]}")
    g(f"v_sub_f32 v{T+1}, v{AM[rt]}, v{T}")
    g(f"v_max_f32 v{T+1}, {M.f32bits(-1000.0)}, v{T+1}")
    g(f"v_cvt_i32_f32 v{T+1}, v{T+1}")
    g(f"v_mov_b32 v{AM[rt]}, v{T}")
    for r in range(16):
        g(f"v_ldexp_f32 v{o+r}, v{o+r}, v{T+1}")
    for r in range(16):
        g(f"v_sub_f32 v{s+r}, v{s+r}, v{AM[rt]}")
        g(f"v_exp_f32 v{s+r}, v{s+r}")
    g("s_nop 0")
    for r in range(8):
        g(f"v_cvt_pk_bf16_f32 v{p+r}, v{s+2*r}, v{s+2*r+1}")
    g("s_nop 1")
    g(pva(rt, kb))
    g(pvb(rt, kb))
    g("s_nop 15")
    g("s_nop 3")
    g(f"s_add_u32 s10, s10, {M.TILE_B}")
    g("s_add_u32 s11, s11, 1")
    g("s_cmp_lt_u32 s11, 64")
    g(f"s_cbranch_scc1 {L}")
```

```python
def ffn_setup(g, opts, M):
    vr, sr = M.vr, M.sr
    S_RB, S_FS, S_WV, S_W4 = M.S_RB, M.S_FS, M.S_WV, M.S_W4
    ACC = lambda ct, rt: 16 + (ct * 4 + rt) * 4
    AB = [160, 172]
    BB = [184, 200]
    VO1, VO2 = 216, 225
    VBE = [234, 235]
    VTA, VBO, VFL, VFW = 236, 237, 238, 239
    VH = 240
    VT = 244
    S_WR, S_O1, S_O2, S_O3 = 84, 85, 86, 87
    noattn = opts.get("noattn")
    for j in range(9):
        g(f"v_add_u32 v5, {64*j}, v1")
        g("v_mul_u32_u24 v6, 3641, v5")
        g("v_lshrrev_b32 v6, 16, v6")
        g("v_mul_u32_u24 v7, 18, v6")
        g("v_sub_u32 v7, v5, v7")
        g("v_lshlrev_b32 v7, 4, v7")
        if j % 4:
            g(f"v_subrev_u32 v7, {(j%4)*1024}, v7")
        g("v_mul_u32_u24 v5, 9216, v6")
        g(f"v_add_u32 v{VO1+j}, v5, v7")
        g("v_mul_u32_u24 v5, 1152, v6")
        g(f"v_add_u32 v{VO2+j}, v5, v7")
    g(f"s_mul_i32 s{S_WR}, s{S_W4}, 18432")
    g(f"s_add_u32 s{S_WR}, s{S_WR}, {M.WR}")
    g(f"s_mul_i32 s9, s{S_W4}, 288")
    g(f"s_mul_i32 s{S_O1}, s{S_FS}, 1152")
    g(f"s_add_u32 s{S_O1}, s{S_O1}, s9")
    g(f"s_mul_i32 s{S_O2}, s{S_FS}, {576*1152}")
    g(f"s_add_u32 s{S_O2}, s{S_O2}, s9")
    g(f"s_mul_i32 s{S_O3}, s{S_FS}, {72*1152}")
    g(f"s_add_u32 s{S_O3}, s{S_O3}, s9")
    g("v_and_b32 v2, 15, v1")
    g("v_lshrrev_b32 v3, 4, v1")
    g("v_bfe_u32 v4, v2, 1, 3")
    g("v_xor_b32 v5, v4, v3")
    g("v_mul_u32_u24 v6, 1152, v2")
    g(f"v_lshl_add_u32 v{VBE[0]}, v5, 4, v6")
    g("v_xor_b32 v5, 4, v5")
    g(f"v_lshl_add_u32 v{VBE[1]}, v5, 4, v6")
    g(f"v_mul_u32_u24 v5, {M.OSTR}, v2")
    g("v_lshl_add_u32 v5, v3, 4, v5")
    g(f"v_add_u32 v{VBO}, {M.OREG}, v5")
    g("v_lshrrev_b32 v5, 2, v1")
    g("v_mul_u32_u24 v5, 288, v5")
    g("v_and_b32 v7, 3, v1")
    g("v_lshl_add_u32 v5, v7, 3, v5")
    g(f"v_add_u32 v{VTA}, s{S_WR}, v5")
    g("v_lshlrev_b32 v5, 2, v7")
    g(f"v_add_u32 v{VFL}, {M.F_X}, v5")
    g(f"s_lshl_b32 s9, s{S_W4}, 2")
    g(f"s_add_u32 s9, s9, {M.F_X}")
    g(f"v_mov_b32 v{VFW}, s9")
    for c in range(4):
        g(f"s_mul_i32 s9, s{S_W4}, 9")
        g(f"s_add_u32 s9, s9, {c}")
        g("s_lshr_b32 s10, s9, 2")
        g("s_lshl_b32 s10, s10, 7")
        g("s_and_b32 s11, s9, 1")
        g("s_lshl_b32 s11, s11, 3")
        g("s_add_u32 s10, s10, s11")
        g("s_and_b32 s11, s9, 2")
        g("s_lshl_b32 s11, s11, 1")
        g("v_xor_b32 v5, v4, v3")
        g("v_xor_b32 v5, s11, v5")
        g("v_lshl_add_u32 v5, v5, 4, v6")
        g(f"v_add_u32 v{VH+c}, s10, v5")
    steps = [("w1", k) for k in range(18)] + [("w2", k) for k in range(18)]
    if not noattn:
        steps += [("wo", k) for k in range(3)]
    NS = len(steps)

    def dma_ops(gs):
        kind, kk = steps[gs]
        st = gs & 1
        if kind == "w1":
            srd, vo, sb, inc = M.SRD_W1, VO1, S_O1, kk * 32 * 9216
        elif kind == "w2":
            srd, vo, sb, inc = M.SRD_W2, VO2, S_O2, kk * 32 * 1152
        else:
            srd, vo, sb, inc = M.SRD_WO, VO2, S_O3, kk * 32 * 1152
        ops = []
        for j in range(9):
            pre = []
            if j == 0:
                pre.append(f"s_add_u32 s88, s{sb}, {inc}")
            if j % 4 == 0:
                pre.append(f"s_add_u32 m0, s{S_WR}, {st*9216 + (j//4)*4096}")
                pre.append("s_nop 0")
            ops.append(pre + [f"buffer_load_dwordx4 v{vo+j}, {sr(srd)}, s88 offen offset:{(j%4)*1024} lds"])
        return ops
    return dma_ops(0) + dma_ops(1)


def ffn(g, opts, M):
    vr, sr = M.vr, M.sr
    S_RB, S_FS, S_WV, S_W4 = M.S_RB, M.S_FS, M.S_WV, M.S_W4
    ACC = lambda ct, rt: 16 + (ct * 4 + rt) * 4
    AB = [160, 172]
    BB = [184, 200]
    VO1, VO2 = 216, 225
    VBE = [234, 235]
    VTA, VBO, VFL, VFW = 236, 237, 238, 239
    VH = 240
    VT = 244
    S_WR, S_O1, S_O2, S_O3 = 84, 85, 86, 87
    noattn = opts.get("noattn")
    g(f"s_waitcnt vmcnt({18 + opts['npf']})")
    for ct in range(9):
        a, b = ACC(ct, 0), 160 + 2 * ct
        g(f"v_lshlrev_b32 v{a}, 16, v{b}")
        g(f"v_and_b32 v{a+1}, 0xffff0000, v{b}")
        g(f"v_lshlrev_b32 v{a+2}, 16, v{b+1}")
        g(f"v_and_b32 v{a+3}, 0xffff0000, v{b+1}")
    M.stamp(g, opts, 3)
    if opts.get("noffn"):
        return

    steps = [("w1", k) for k in range(18)] + [("w2", k) for k in range(18)]
    if not noattn:
        steps += [("wo", k) for k in range(3)]
    NS = len(steps)

    def dma_ops(gs):
        kind, kk = steps[gs]
        st = gs & 1
        if kind == "w1":
            srd, vo, sb, inc = M.SRD_W1, VO1, S_O1, kk * 32 * 9216
        elif kind == "w2":
            srd, vo, sb, inc = M.SRD_W2, VO2, S_O2, kk * 32 * 1152
        else:
            srd, vo, sb, inc = M.SRD_WO, VO2, S_O3, kk * 32 * 1152
        ops = []
        for j in range(9):
            pre = []
            if j == 0:
                pre.append(f"s_add_u32 s88, s{sb}, {inc}")
            if j % 4 == 0:
                pre.append(f"s_add_u32 m0, s{S_WR}, {st*9216 + (j//4)*4096}")
                pre.append("s_nop 0")
            ops.append(pre + [f"buffer_load_dwordx4 v{vo+j}, {sr(srd)}, s88 offen offset:{(j%4)*1024} lds"])
        return ops
    def tr_ops(gs, c):
        st = gs & 1
        ab = AB[(3 * gs + c) & 1]
        ops = []
        for i in range(3):
            ct = 3 * c + i
            for jh in range(2):
                ops.append([f"ds_read_b64_tr_b16 {vr(ab+i*4+jh*2,2)}, v{VTA} offset:{st*9216 + ct*32 + jh*4608}"])
        return ops
    def b_ops(gs):
        kind, kk = steps[gs]
        bb = BB[gs & 1]
        ops = []
        for rt in range(4):
            if kind == "wo":
                ops.append([f"ds_read_b128 {vr(bb+rt*4,4)}, v{VBO} offset:{rt*16*M.OSTR + kk*64}"])
            else:
                ops.append([f"ds_read_b128 {vr(bb+rt*4,4)}, v{VBE[kk&1]} offset:{M.XH + rt*18432 + (kk>>1)*128}"])
        return ops
    def emit(ops):
        for o in ops:
            for l in o:
                g(l)

    def part_store(c):
        ops = []
        for ct in range(3 * c, 3 * c + 3):
            for u in range(2):
                b = ACC(ct, 2 * u)
                tp = ct * 2 + u
                o = [f"v_cvt_pk_bf16_f32 v{b+d}, v{b+2*d}, v{b+2*d+1}" for d in range(4)]
                if tp % 4 == 0 and tp:
                    o.append("s_add_u32 s9, s9, 4096")
                o.append(f"buffer_store_dwordx4 {vr(b,4)}, v2, {sr(M.SRD_WS)}, s9 offen offset:{(tp%4)*1024} sc1")
                ops.append(o)
        return ops
    emit(b_ops(0))
    npf = opts["npf"]
    g(f"s_waitcnt vmcnt({9 + npf})")
    emit(tr_ops(0, 0))
    deferred = []
    for gs in range(NS):
        kind, kk = steps[gs]
        g.c(f"---- step {gs} {kind} {kk}")
        if gs == 1: M.stamp(g, opts, 4)
        if not opts.get("fst"):
            if gs == 5: M.stamp(g, opts, 10)
            if gs == 9: M.stamp(g, opts, 11)
            if gs == 13: M.stamp(g, opts, 12)
        first = (kk == 0 and kind in ("w1", "w2"))
        bpre = gs + 1 < NS and not (steps[gs + 1][1] == 0 and steps[gs + 1][0] in ("w2", "wo"))
        for c in range(3):
            fill = []
            if c == 2 and bpre:
                g("s_waitcnt lgkmcnt(4)")
            else:
                g("s_waitcnt lgkmcnt(0)")
            if c < 2:
                fill += tr_ops(gs, c + 1)
                if c == 1 and bpre:
                    fill += b_ops(gs + 1)
                if c == 0 and gs == 2 and not opts.get("nopf"):
                    fill += [[f"s_min_u32 s9, s{S_W4}, 2", "s_mul_i32 s9, s9, 6912", f"s_mul_i32 s10, s{S_RB}, 20736", "s_add_u32 s9, s9, s10",
                              f"s_mul_i32 s10, s{S_FS}, {576*1152}", "s_add_u32 s9, s9, s10"],
                             [f"v_min_u32 v{VT+2}, 53, v1", f"v_lshlrev_b32 v{VT+2}, 7, v{VT+2}"],
                             [f"buffer_load_dword v{VT+3}, v{VT+2}, {sr(M.SRD_W2)}, s9 offen"]]
                if c == 0 and kind == "w1" and kk == 17:
                    fill += [[f"v_mov_b32 v{VT}, 1", f"ds_write_b32 v{VFW}, v{VT}"]]
            else:
                if gs + 1 < NS:
                    g(f"s_waitcnt vmcnt({1 if (gs == 2 and not opts.get('nopf') and opts.get('dspread', 9) == 9) else 0})")
                    fill += tr_ops(gs + 1, 0)
                if gs + 2 < NS:
                    d = dma_ops(gs + 2)
                    nsp = opts.get("dspread", 9)
                    fill += d[:nsp]
                    deferred = d[nsp:]
            if c == 0 and deferred:
                fill += deferred
                deferred = []
            if gs == NS - 1:
                if c == 0:
                    fill += [[f"s_lshl_b32 s9, s{S_RB}, 3", f"s_add_u32 s9, s9, s{S_FS}", "s_mul_i32 s9, s9, 73728"],
                             [f"s_mul_i32 s10, s{S_W4}, 18432", "s_add_u32 s9, s9, s10", f"s_add_u32 s9, s9, {M.WS_PART}"],
                             ["v_lshlrev_b32 v2, 4, v1"]]
                else:
                    fill = [["s_nop 1"]] * 2 + fill + part_store(c - 1)
            ab = AB[(3 * gs + c) & 1]
            bb = BB[gs & 1]
            mf = []
            for i in range(3):
                ct = 3 * c + i
                order = (1, 2, 3, 0) if (first and kind == "w1") else (0, 1, 2, 3)
                for rt in order:
                    if first and kind == "w1":
                        cc = vr(ACC(ct, 0), 4)
                    elif first:
                        cc = "0"
                    else:
                        cc = vr(ACC(ct, rt), 4)
                    mf.append(f"v_mfma_f32_16x16x32_bf16 {vr(ACC(ct,rt),4)}, {vr(ab+i*4,4)}, {vr(bb+rt*4,4)}, {cc}")
            nf = len(fill)
            fi = 0
            for mi, m in enumerate(mf):
                g(m)
                want = ((mi + 1) * nf + 11) // 12
                while fi < want:
                    for l in fill[fi]:
                        g(l)
                    fi += 1
        if kind == "w1" and kk == 17:
            g.c("---- GEMM1 epilogue")
            M.stamp(g, opts, 5)
            M.flag_wait(g, VFL, VT, 1, "fx1")
            g(f"v_subrev_u32 v{VT+1}, {M.F_X - M.F_KV}, v{VFL}")
            if not noattn:
                M.flag_wait(g, VT + 1, VT, 2, "fxa")
            g(f"s_setprio {opts.get('eprio', 3)}")
            for ct in range(9):
                for rt in range(4):
                    a = ACC(ct, rt)
                    for r in range(4):
                        g(f"v_max_f32 v{a+r}, 0, v{a+r}")
                    g(f"v_pk_mul_f32 {vr(a,2)}, {vr(a,2)}, {vr(a,2)}")
                    g(f"v_pk_mul_f32 {vr(a+2,2)}, {vr(a+2,2)}, {vr(a+2,2)}")
                    g(f"v_cvt_pk_bf16_f32 v{a}, v{a}, v{a+1}")
                    g(f"v_cvt_pk_bf16_f32 v{a+1}, v{a+2}, v{a+3}")
                    g(f"ds_write_b64 v{VH + (ct & 3)}, {vr(a,2)} offset:{M.XH + rt*18432 + (ct>>2)*128}")
            g("s_waitcnt lgkmcnt(0)")
            g(f"v_mov_b32 v{VT}, 2")
            g(f"ds_write_b32 v{VFW}, v{VT}")
            g("s_setprio 0")
            M.flag_wait(g, VFL, VT, 2, "fx2")
            M.stamp(g, opts, 6)
            emit(b_ops(gs + 1))
        if kind == "w2" and kk == 17 and not noattn:
            g.c("---- wait for O")
            M.stamp(g, opts, 7)
            g(f"v_add_u32 v{VFL}, {M.F_O - M.F_X}, v{VFL}")
            M.flag_wait(g, VFL, VT, 1, "fo")
            M.stamp(g, opts, 8)
            emit(b_ops(gs + 1))
    g.c("---- GEMM2 epilogue: partial store")
    M.stamp(g, opts, 9)
    g("s_nop 7")
    emit(part_store(2))
    M.reduce_setup(g, S_WV)
    M.reduce_xb(g, 176, 0)
    g("v_and_b32 v5, 3, v1")
    g("v_lshlrev_b32 v5, 2, v5")
    g(f"v_add_u32 v5, {M.F_R}, v5")
    g(f"s_lshl_b32 s9, s{S_W4}, 2")
    g(f"s_add_u32 s9, s9, {M.F_R}")
    g("v_mov_b32 v6, s9")
    g("v_mov_b32 v7, 1")
    g(f"v_mov_b32 v8, {M.F_R + 16}")
    g("s_waitcnt vmcnt(3)")
    g("ds_write_b32 v6, v7")
    M.stamp(g, opts, 10)
    Ln = g.new("rsn")
    g(f"s_cmp_lg_u32 s{S_W4}, 0")
    g(f"s_cbranch_scc1 {Ln}")
    M.flag_wait(g, 5, 9, 1, "rsa")
    g(f"s_lshl_b32 s9, s{S_RB}, 7")
    g(f"s_add_u32 s9, s9, {M.WS_FLAG}")
    g("v_mov_b32 v10, 0")
    g("s_mov_b64 exec, 1")
    g(f"buffer_atomic_add v7, v10, {sr(M.SRD_WS)}, s9 offen sc1")
    g("s_mov_b64 exec, -1")
    Lp, Ld = g.new("rpoll"), g.new("rpolld")
    g.label(Lp)
    g(f"buffer_load_dword v11, v10, {sr(M.SRD_WS)}, s9 offen sc1")
    g("s_waitcnt vmcnt(0)")
    g("v_cmp_ne_u32 vcc, 8, v11")
    g("s_nop 4")
    g(f"s_cbranch_vccz {Ld}")
    g("s_sleep 1")
    g(f"s_branch {Lp}")
    g.label(Ld)
    g("ds_write_b32 v8, v7")
    g.label(Ln)
    M.flag_wait(g, 8, 9, 1, "rsb")
    M.stamp(g, opts, 11)
    g("s_waitcnt vmcnt(0)")
    M.reduce_loads(g, S_WV, 16, 0)
    M.reduce_sum(g, 16, 176, 200, 208, 0)
    g("s_waitcnt vmcnt(0)")
```

```python
import sys, struct, math

KN = "parallel_sum__grouped_kv_mqa__dense_activation_squared_relu__prompt"

XH = 0
WR = 73728
KVR = 147456
OREG = 147456
OSTR = 224
FLAGS = 163712
LDS_SIZE = 163840
QST = 73728
F_KV = FLAGS
F_X = FLAGS + 16
F_O = FLAGS + 32
F_G = FLAGS + 48
F_P = FLAGS + 64
F_A = FLAGS + 112
F_R = FLAGS + 80
TILE_B = 2432
VH_B = 640
VG_B = 320
VSCR = 160768
PQ_B = 3584
CHUNK_B = 2 * TILE_B
WS_KV = 0
WS_FLAG = 512 << 10
WS_PART = 1 << 20
WS_DBG = 24 << 20
WS_SIZE = 32 << 20

def f32bits(x):
    return struct.unpack("<I", struct.pack("<f", x))[0]

CSCALE = math.log2(math.e) / math.sqrt(18.0)
HEAD = 72
LTHR = 2.0 ** 28


class G:
    def __init__(s):
        s.lines = []
        s.uid = 0
    def __call__(s, t):
        s.lines.append("    " + t)
    def label(s, l):
        s.lines.append(l + ":")
    def c(s, t):
        s.lines.append("    ; " + t)
    def new(s, p):
        s.uid += 1
        return f"L_{p}_{s.uid}"
    def text(s):
        return "\n".join(s.lines)


def vr(a, n):
    return f"v[{a}:{a+n-1}]"

S_RB, S_FS, S_WV, S_W4 = 4, 5, 6, 7
P_X, P_WQ, P_WK, P_WV, P_WO, P_BX, P_W1, P_B1, P_W2, P_B2, P_OUT, P_DBG, P_WS = [16 + 2 * i for i in range(13)]
SRD_X, SRD_WQ, SRD_W1, SRD_W2, SRD_WO, SRD_B1, SRD_WS, SRD_WK, SRD_WVV = 44, 48, 52, 56, 60, 64, 68, 72, 76
SRD_DBG = 12
S_SH = 3
S_LO = 80
S_HI = 82


def srd(g, d, p, nbytes):
    g(f"s_mov_b32 s{d}, s{p}")
    g(f"s_and_b32 s{d+1}, s{p+1}, 0xffff")
    g(f"s_mov_b32 s{d+2}, {nbytes}")
    g(f"s_mov_b32 s{d+3}, 0x00020000")

def sr(d):
    return f"s[{d}:{d+3}]"


def flag_wait(g, vaddr, vtmp, thr, name):
    L = g.new(name)
    Ld = g.new(name + "d")
    g.label(L)
    g(f"ds_read_b32 v{vtmp}, v{vaddr}")
    g("s_waitcnt lgkmcnt(0)")
    g(f"v_cmp_gt_u32 vcc, {thr}, v{vtmp}")
    g("s_nop 4")
    g(f"s_cbranch_vccz {Ld}")
    g("s_sleep 1")
    g(f"s_branch {L}")
    g.label(Ld)


def stamp(g, opts, idx):
    if not opts.get("stamp"):
        return
    g("s_memrealtime s[96:97]")
    g("s_waitcnt lgkmcnt(0)")
    g(f"v_writelane_b32 v254, s96, {idx}")


def cstamp(g, opts, idx):
    if not opts.get("stamp"):
        return
    g("s_memtime s[96:97]")
    g("s_waitcnt lgkmcnt(0)")
    g(f"v_writelane_b32 v254, s96, {idx}")


def stamp_flush(g, opts):
    if not opts.get("stamp"):
        return
    stamp(g, opts, 15)
    g("s_memtime s[96:97]")
    g("s_waitcnt lgkmcnt(0)")
    g(f"v_writelane_b32 v254, s96, 14")
    base = WS_DBG + (1 << 20) + (0 if opts["tag"] == "K" else (1 << 18))
    g("s_lshl_b32 s98, s2, 3")
    g(f"s_add_u32 s98, s98, s{S_WV}")
    g("s_lshl_b32 s98, s98, 6")
    g(f"s_add_u32 s98, s98, {base}")
    g("v_lshlrev_b32 v253, 2, v1")
    g("s_mov_b64 exec, 0xffff")
    g(f"buffer_store_dword v254, v253, {sr(SRD_WS)}, s98 offen")
    g("s_mov_b64 exec, -1")
    g("s_waitcnt vmcnt(0)")
    if opts.get("dbgt"):
        Lx = g.new("dbgt")
        g("s_cmp_lg_u32 s2, 8")
        g(f"s_cbranch_scc1 {Lx}")
        g(f"s_cmp_lg_u32 s{S_WV}, 4")
        g(f"s_cbranch_scc1 {Lx}")
        srd(g, SRD_DBG, P_DBG, 256)
        g("v_readlane_b32 s96, v254, 0")
        g("s_nop 3")
        g("v_subrev_u32 v254, s96, v254")
        g("s_mov_b64 exec, 0x8ee8")
        g(f"buffer_store_dword v254, v253, {sr(SRD_DBG)}, 0 offen")
        g("s_mov_b64 exec, -1")
        g("s_waitcnt vmcnt(0)")
        g.label(Lx)


def head(g, opts):
    g("s_cmp_ge_u32 s2, 256")
    g("s_cbranch_scc1 L_end")
    if opts.get("stamp"):
        g("v_mov_b32 v254, 0")
    stamp(g, opts, 0)
    cstamp(g, opts, 13)
    g("s_load_dwordx16 s[16:31], s[0:1], 0")
    g("s_load_dwordx8 s[32:39], s[0:1], 64")
    g("s_load_dwordx2 s[40:41], s[0:1], 96")
    g("v_and_b32 v1, 63, v0")
    g("v_lshrrev_b32 v2, 6, v0")
    if opts.get("map2"):
        g("s_lshr_b32 s8, s2, 3")
        g("s_and_b32 s9, s2, 3")
        g("s_lshl_b32 s9, s9, 1")
        g("s_and_b32 s10, s8, 1")
        g(f"s_add_u32 s{S_FS}, s9, s10")
        g("s_bfe_u32 s9, s2, 0x10002")
        g("s_lshl_b32 s9, s9, 4")
        g("s_lshr_b32 s10, s8, 1")
        g(f"s_add_u32 s{S_RB}, s9, s10")
    else:
        g(f"s_lshr_b32 s{S_RB}, s2, 3")
        g(f"s_and_b32 s{S_FS}, s2, 7")
    g(f"v_readfirstlane_b32 s{S_WV}, v2")
    g(f"s_mov_b32 s{S_LO}, -1")
    g(f"s_mov_b32 s{S_LO+1}, 0")
    g(f"s_mov_b32 s{S_HI}, 0")
    g(f"s_mov_b32 s{S_HI+1}, -1")
    g(f"s_and_b32 s{S_W4}, s{S_WV}, 3")
    if opts.get("map2"):
        g(f"s_and_b32 s{S_SH}, s{S_RB}, 15")
    else:
        g(f"s_mov_b32 s{S_SH}, s{S_RB}")
    g("s_waitcnt lgkmcnt(0)")
    srd(g, SRD_X, P_X, 2359296)
    srd(g, SRD_WS, P_WS, WS_SIZE)


def touch_w1(g, opts):
    if opts.get("nopf"):
        return
    g("v_min_u32 v5, 53, v1")
    g("v_mul_u32_u24 v6, 7282, v5")
    g("v_lshrrev_b32 v6, 16, v6")
    g("v_mul_u32_u24 v7, 9, v6")
    g("v_sub_u32 v7, v5, v7")
    g(f"s_mov_b32 s10, {32*9216}")
    g("v_mul_lo_u32 v6, v6, s10")
    g("v_lshl_add_u32 v5, v7, 7, v6")
    g(f"s_min_u32 s9, s{S_W4}, 2")
    g("s_mul_i32 s9, s9, 192")
    g(f"s_add_u32 s9, s9, s{S_RB}")
    g("s_mul_i32 s9, s9, 9216")
    g(f"s_mul_i32 s10, s{S_FS}, 1152")
    g("s_add_u32 s9, s9, s10")
    g(f"buffer_load_dword v251, v5, {sr(SRD_W1)}, s9 offen")


def touches(g, opts):
    if opts.get("nopf"):
        return
    L1, Ld = g.new("tc"), g.new("tcd")
    g(f"s_cmp_ge_u32 s{S_W4}, 2")
    g(f"s_cbranch_scc1 {Ld}")
    g(f"s_cmp_lg_u32 s{S_W4}, 0")
    g(f"s_cbranch_scc1 {L1}")
    srd(g, SRD_WQ, P_WQ, 663552)
    g("v_min_u32 v5, 53, v1")
    g("v_mul_u32_u24 v6, 21846, v5")
    g("v_lshrrev_b32 v6, 16, v6")
    g("v_mul_u32_u24 v7, 3, v6")
    g("v_sub_u32 v7, v5, v7")
    g("v_mul_u32_u24 v6, 1152, v6")
    g("v_lshl_add_u32 v6, v7, 6, v6")
    g(f"s_mul_i32 s9, s{S_RB}, {18*1152}")
    g(f"s_mul_i32 s10, s{S_FS}, 144")
    g("s_add_u32 s9, s9, s10")
    g(f"buffer_load_dword v252, v6, {sr(SRD_WQ)}, s9 offen offset:12")
    g(f"s_branch {Ld}")
    g.label(L1)
    srd(g, SRD_WO, P_WO, 663552)
    g("v_min_u32 v6, 26, v1")
    g("v_lshlrev_b32 v6, 7, v6")
    g(f"s_mul_i32 s9, s{S_FS}, {72*1152}")
    g(f"s_mul_i32 s10, s{S_RB}, 3456")
    g("s_add_u32 s9, s9, s10")
    g(f"buffer_load_dword v252, v6, {sr(SRD_WO)}, s9 offen")
    g.label(Ld)


def ln_load(g, X, srow):
    g(f"s_lshl_b32 s8, s{S_RB}, 6")
    g(f"s_add_u32 s8, s8, s{srow}")
    g("s_mul_i32 s8, s8, 1152")
    for i in range(9):
        g(f"buffer_load_dwordx4 {vr(X+4*i,4)}, v4, {sr(SRD_X)}, s8 offen offset:{i*128}")


def ln_addr(g, A, srow):
    g(f"v_add_u32 v5, s{srow}, v2")
    g("v_bfe_u32 v6, v5, 1, 3")
    g("v_lshrrev_b32 v7, 2, v3")
    g("v_lshlrev_b32 v7, 2, v7")
    g(f"v_and_b32 v{A}, 1, v3")
    g(f"v_lshl_add_u32 v7, v{A}, 1, v7")
    g("v_xor_b32 v7, v7, v6")
    g(f"v_mul_u32_u24 v{A}, 1152, v5")
    g(f"v_lshl_add_u32 v{A}, v7, 4, v{A}")
    g("v_bfe_u32 v7, v3, 1, 1")
    g(f"v_lshl_add_u32 v{A}, v7, 3, v{A}")
    g(f"v_xor_b32 v{A+1}, 16, v{A}")


def ln_compute(g, X):
    for r in range(52, 56):
        g(f"v_mov_b32 v{r}, 0")
    g("s_mov_b32 s9, 0x3f803f80")
    for n in range(36):
        g(f"v_dot2c_f32_bf16 v{52 + (n&1)}, s9, v{X+n}")
        g(f"v_dot2c_f32_bf16 v{54 + (n&1)}, v{X+n}, v{X+n}")
    g("s_nop 3")
    g("v_add_f32 v52, v52, v53")
    g("v_add_f32 v54, v54, v55")
    for pat in ("quad_perm:[1,0,3,2]", "quad_perm:[2,3,0,1]", "row_half_mirror"):
        g("s_nop 1")
        g(f"v_add_f32_dpp v52, v52, v52 {pat} row_mask:0xf bank_mask:0xf")
        g(f"v_add_f32_dpp v54, v54, v54 {pat} row_mask:0xf bank_mask:0xf")
    g(f"s_mov_b32 s9, {f32bits(1.0/576.0)}")
    g("v_mul_f32 v52, s9, v52")
    g("v_mul_f32 v54, s9, v54")
    g("v_fma_f32 v54, -v52, v52, v54")
    g("v_max_f32 v54, 0, v54")
    g(f"v_add_f32 v54, {f32bits(1e-5)}, v54")
    g("v_rsq_f32 v56, v54")
    g("s_nop 0")
    g("v_mov_b32 v57, v56")
    g("v_mul_f32 v58, v52, v56")
    g("v_sub_f32 v58, 0, v58")
    g("v_mov_b32 v59, v58")
    for n in range(36):
        t = 60 + 2 * (n % 4)
        g(f"v_lshlrev_b32 v{t}, 16, v{X+n}")
        g(f"v_and_b32 v{t+1}, 0xffff0000, v{X+n}")
        g(f"v_pk_fma_f32 {vr(t,2)}, {vr(t,2)}, v[56:57], v[58:59]")
        g(f"v_cvt_pk_bf16_f32 v{X+n}, v{t}, v{t+1}")


def ln_write(g, X, A):
    for i in range(9):
        g(f"ds_write_b64 v{A}, {vr(X+4*i,2)} offset:{i*128}")
        g(f"ds_write_b64 v{A+1}, {vr(X+2+4*i,2)} offset:{i*128}")


def ln_lane_setup(g):
    g("v_lshrrev_b32 v2, 3, v1")
    g("v_and_b32 v3, 7, v1")
    g("v_mul_u32_u24 v4, 1152, v2")
    g("v_lshl_add_u32 v4, v3, 4, v4")


def a_layernorm(g, opts):
    XS = [8, 68]
    ln_lane_setup(g)
    g(f"s_lshl_b32 s11, s{S_W4}, 4")
    g("s_add_u32 s12, s11, 8")
    g("v_and_b32 v48, 3, v1")
    g("v_lshlrev_b32 v48, 2, v48")
    g(f"v_add_u32 v48, {F_P}, v48")
    Lsk = g.new("lnskip")
    g(f"s_lshr_b32 s9, s{S_FS}, 1")
    g(f"s_cmp_eq_u32 s9, s{S_W4}")
    g(f"s_cbranch_scc1 {Lsk}")
    if opts.get("asleep"):
        g(f"s_sleep {opts['asleep']}")
    ln_load(g, XS[0], 11)
    ln_load(g, XS[1], 12)
    ln_addr(g, 44, 11)
    ln_addr(g, 46, 12)
    g("s_waitcnt vmcnt(9)")
    stamp(g, opts, 1)
    ln_compute(g, XS[0])
    g("s_waitcnt vmcnt(0)")
    ln_compute(g, XS[1])
    flag_wait(g, 48, 49, 2, "kvw")
    ln_write(g, XS[0], 44)
    ln_write(g, XS[1], 46)
    g.label(Lsk)
    flag_wait(g, 48, 49, 2, "kvw2")
    g(f"s_lshl_b32 s9, s{S_W4}, 2")
    g(f"s_add_u32 s9, s9, {F_A}")
    g("v_mov_b32 v50, s9")
    g("v_mov_b32 v51, 1")
    g("s_waitcnt lgkmcnt(0)")
    g("ds_write_b32 v50, v51")
    stamp(g, opts, 9)
    g("v_and_b32 v50, 1, v1")
    g("v_lshlrev_b32 v50, 2, v50")
    g(f"v_add_u32 v50, {F_P + 8}, v50")
    flag_wait(g, 50, 49, 4, "qst")
    g(f"v_add_u32 v48, {F_A - F_P}, v48")
    flag_wait(g, 48, 49, 1, "xn")
    stamp(g, opts, 2)


def f_kv(g, opts):
    aux = " sc1"
    ln_lane_setup(g)
    g(f"s_lshr_b32 s13, s{S_FS}, 1")
    g("s_lshl_b32 s11, s13, 4")
    g(f"s_lshl_b32 s12, s{S_W4}, 3")
    g("s_add_u32 s11, s11, s12")
    ln_load(g, 8, 11)
    ln_addr(g, 44, 11)
    g("v_and_b32 v48, 3, v1")
    g("v_lshlrev_b32 v48, 2, v48")
    g(f"v_add_u32 v48, {F_P}, v48")
    g(f"s_lshl_b32 s9, s{S_W4}, 2")
    g(f"s_add_u32 s9, s9, {F_P}")
    g("v_mov_b32 v47, s9")
    g("v_and_b32 v5, 15, v1")
    g("v_lshrrev_b32 v6, 4, v1")
    g("v_bfe_u32 v7, v5, 1, 3")
    g("v_xor_b32 v7, v7, v6")
    g("v_mul_u32_u24 v70, 1152, v5")
    g("s_mul_i32 s9, s13, 18432")
    g("v_add_u32 v70, s9, v70")
    g("v_xor_b32 v71, 4, v7")
    g("v_lshl_add_u32 v71, v71, 4, v70")
    g("v_lshl_add_u32 v70, v7, 4, v70")
    g("v_lshrrev_b32 v7, 2, v1")
    g("v_mul_u32_u24 v72, 48, v7")
    g("v_and_b32 v7, 3, v1")
    g("v_lshlrev_b32 v7, 3, v7")
    g(f"s_cmp_lg_u32 s{S_W4}, 0")
    g("s_cselect_b64 vcc, -1, 0")
    g("v_cndmask_b32 v7, v7, 40, vcc")
    g("v_add_u32 v72, v72, v7")
    g("s_cmp_lt_u32 s13, 2")
    g("s_cselect_b32 s9, 36864, 0")
    g("v_add_u32 v72, s9, v72")
    g("s_waitcnt vmcnt(0)")
    stamp(g, opts, 10)
    ln_compute(g, 8)
    ln_write(g, 8, 44)
    g("v_mov_b32 v46, 1")
    g("s_waitcnt lgkmcnt(0)")
    g("ds_write_b32 v47, v46")
    flag_wait(g, 48, 49, 1, "kvr")
    def rd(kk):
        b = 80 + 8 * (kk % 3)
        return [f"ds_read_b64_tr_b16 {vr(b,2)}, v72 offset:{kk*1536}",
                f"ds_read_b64_tr_b16 {vr(b+2,2)}, v72 offset:{kk*1536+768}",
                f"ds_read_b128 {vr(b+4,4)}, v{70+(kk&1)} offset:{XH + (kk>>1)*128}"]
    LVv, Lj = g.new("kv_v"), g.new("kv_j")
    g(f"s_bitcmp1_b32 s{S_FS}, 0")
    g(f"s_cbranch_scc1 {LVv}")
    for isv in range(2):
        if isv:
            g.label(LVv)
        for l in rd(0) + rd(1): g(l)
        for kk in range(18):
            if kk + 2 < 18:
                for l in rd(kk + 2): g(l)
                g("s_waitcnt lgkmcnt(6)")
            else:
                g(f"s_waitcnt lgkmcnt({3 if kk == 16 else 0})")
            b = 80 + 8 * (kk % 3)
            A, B = (vr(b+4,4), vr(b,4)) if isv else (vr(b,4), vr(b+4,4))
            g(f"v_mfma_f32_16x16x32_bf16 v[76:79], {A}, {B}, {'0' if kk == 0 else 'v[76:79]'}")
        if not isv:
            g(f"s_branch {Lj}")
    g.label(Lj)
    g("v_mov_b32 v46, 2")
    g("ds_write_b32 v47, v46")
    g(f"s_lshl_b32 s9, s{S_RB}, 1")
    g("s_lshr_b32 s10, s13, 1")
    g("s_add_u32 s9, s9, s10")
    g(f"s_mul_i32 s9, s9, {TILE_B}")
    g(f"s_add_u32 s9, s9, {WS_KV}")
    g("s_and_b32 s12, s13, 1")
    g("s_nop 4")
    g("v_cvt_pk_bf16_f32 v76, v76, v77")
    g("v_cvt_pk_bf16_f32 v77, v78, v79")
    Lc = [g.new("kvp") for _ in range(4)]
    g(f"s_bitcmp1_b32 s{S_FS}, 0")
    g(f"s_cbranch_scc1 {Lc[1]}")
    g("s_lshl_b32 s10, s12, 4")
    g("v_add_u32 v7, s10, v5")
    g(f"s_cmp_lg_u32 s{S_W4}, 0")
    g(f"s_cbranch_scc1 {Lc[0]}")
    g("v_lshrrev_b32 v2, 1, v6")
    g("v_lshl_add_u32 v7, v2, 5, v7")
    g("v_lshlrev_b32 v7, 4, v7")
    g("v_and_b32 v2, 1, v6")
    g("v_lshl_add_u32 v7, v2, 3, v7")
    g(f"buffer_store_dwordx2 v[76:77], v7, {sr(SRD_WS)}, s9 offen{aux}")
    g(f"s_branch {Lc[3]}")
    g.label(Lc[0])
    g("v_lshlrev_b32 v7, 2, v7")
    g("s_mov_b64 exec, 0xffff")
    g(f"buffer_store_dword v77, v7, {sr(SRD_WS)}, s9 offen offset:1024{aux}")
    g("s_mov_b64 exec, -1")
    g(f"s_branch {Lc[3]}")
    g.label(Lc[1])
    g(f"s_mul_i32 s10, s12, {VH_B}")
    g("s_add_u32 s9, s9, s10")
    g("v_and_b32 v2, 1, v6")
    g(f"v_mul_u32_u24 v7, {VG_B}, v2")
    g("v_lshl_add_u32 v7, v5, 4, v7")
    g("v_lshrrev_b32 v2, 1, v6")
    g("v_lshl_add_u32 v7, v2, 3, v7")
    g(f"s_cmp_lg_u32 s{S_W4}, 0")
    g(f"s_cbranch_scc1 {Lc[2]}")
    g(f"buffer_store_dwordx2 v[76:77], v7, {sr(SRD_WS)}, s9 offen offset:1152{aux}")
    g(f"s_branch {Lc[3]}")
    g.label(Lc[2])
    g("v_mov_b32 v2, 0x3f803f80")
    g("v_cmp_eq_u32 vcc, 4, v5")
    g("s_nop 1")
    g("v_cndmask_b32 v76, v76, v2, vcc")
    g("v_cndmask_b32 v77, v77, v2, vcc")
    g("v_cmp_eq_u32 vcc, 5, v5")
    g("s_nop 1")
    g("v_cndmask_b32 v76, v76, 0, vcc")
    g("v_cndmask_b32 v77, v77, 0, vcc")
    g("s_mov_b32 exec_lo, 0x003c003c")
    g("s_mov_b32 exec_hi, 0x003c003c")
    g(f"buffer_store_dwordx2 v[76:77], v7, {sr(SRD_WS)}, s9 offen offset:{1152+14*16}{aux}")
    g("s_mov_b64 exec, -1")
    g.label(Lc[3])
    if opts.get("fuse"):
        Lz = g.new("kvz")
        g(f"s_add_u32 s9, s{S_FS}, s{S_W4}")
        g("s_cmp_lg_u32 s9, 0")
        g(f"s_cbranch_scc1 {Lz}")
        g(f"s_lshl_b32 s9, s{S_RB}, 7")
        g(f"s_add_u32 s9, s9, {WS_FLAG}")
        g("v_mov_b32 v2, 0")
        g("s_mov_b64 exec, 1")
        g(f"buffer_store_dword v2, v2, {sr(SRD_WS)}, s9 offen sc1")
        g("s_mov_b64 exec, -1")
        g.label(Lz)
    g("s_waitcnt vmcnt(0)")
    stamp(g, opts, 11)
    Lw1, Lad = g.new("arr1"), g.new("arrd")
    g(f"s_cmp_lg_u32 s{S_W4}, 0")
    g(f"s_cbranch_scc1 {Lw1}")
    g(f"v_mov_b32 v48, {F_P + 4}")
    flag_wait(g, 48, 49, 3, "arr")
    srd(g, SRD_DBG, P_DBG, 256)
    NSHD = opts.get("shards", 8)
    g(f"s_and_b32 s9, s2, {NSHD-1}")
    g(f"s_mul_i32 s9, s9, {128 // NSHD if NSHD > 1 else 0}")
    g("v_mov_b32 v3, s9")
    g("v_mov_b32 v4, 1")
    g("s_mov_b64 exec, 1")
    g(f"buffer_atomic_add v4, v3, {sr(SRD_DBG)}, 0 offen sc0 sc1")
    g("s_waitcnt vmcnt(0)")
    g("v_readfirstlane_b32 s9, v4")
    g(f"s_cmp_lg_u32 s9, {256 // NSHD - 1}")
    g(f"s_cbranch_scc1 {Lad}")
    g("v_mov_b32 v4, 1")
    g("v_mov_b32 v3, 0")
    if NSHD > 1:
        g(f"buffer_atomic_add v4, v3, {sr(SRD_DBG)}, 0 offen offset:4 sc0 sc1")
        g("s_waitcnt vmcnt(0)")
        g("v_readfirstlane_b32 s9, v4")
        g(f"s_cmp_lg_u32 s9, {NSHD - 1}")
        g(f"s_cbranch_scc1 {Lad}")
        g("v_mov_b32 v4, 1")
    g(f"buffer_store_dword v4, v3, {sr(SRD_DBG)}, 0 offen offset:128 sc1")
    g(f"s_branch {Lad}")
    g.label(Lw1)
    g("v_mov_b32 v46, 3")
    g("ds_write_b32 v47, v46")
    g.label(Lad)
    g("s_mov_b64 exec, -1")


def f_poll_go(g, opts):
    Ln = g.new("gsn")
    g(f"s_cmp_lg_u32 s{S_W4}, 1")
    g(f"s_cbranch_scc1 {Ln}")
    srd(g, SRD_DBG, P_DBG, 256)
    g("v_mov_b32 v3, 0")
    g("v_mov_b32 v4, 1")
    Lp, Ld = g.new("gpoll"), g.new("gpolld")
    g.label(Lp)
    g(f"buffer_load_dword v5, v3, {sr(SRD_DBG)}, 0 offen offset:128 sc1")
    g("s_waitcnt vmcnt(0)")
    g("v_cmp_ne_u32 vcc, 1, v5")
    g("s_nop 4")
    g(f"s_cbranch_vccz {Ld}")
    g(f"s_sleep {opts.get('psleep', 4)}")
    g(f"s_branch {Lp}")
    g.label(Ld)
    g(f"v_mov_b32 v2, {F_G}")
    g("ds_write_b32 v2, v4")
    if not opts.get("nopf"):
        g("s_lshr_b32 s9, s2, 3")
        g(f"s_mul_i32 s9, s9, {CHUNK_B}")
        g(f"s_add_u32 s9, s9, {WS_KV}")
        g("v_min_u32 v5, 38, v1")
        g("v_lshlrev_b32 v5, 7, v5")
        g(f"buffer_load_dword v250, v5, {sr(SRD_WS)}, s9 offen sc1")
    g.label(Ln)


def f_stage(g, opts):
    g(f"s_bitcmp1_b32 s{S_FS}, 0")
    g(f"s_cselect_b32 s{SRD_WK}, s{P_WV}, s{P_WK}")
    g(f"s_cselect_b32 s{SRD_WK+1}, s{P_WV+1}, s{P_WK+1}")
    g(f"s_and_b32 s{SRD_WK+1}, s{SRD_WK+1}, 0xffff")
    g(f"s_mov_b32 s{SRD_WK+2}, 20736")
    g(f"s_mov_b32 s{SRD_WK+3}, 0x00020000")
    for j in range(3):
        g(f"v_add_u32 v5, {64*j}, v1")
        g("v_mul_u32_u24 v6, 21846, v5")
        g("v_lshrrev_b32 v6, 16, v6")
        g("v_mul_u32_u24 v7, 3, v6")
        g("v_sub_u32 v7, v5, v7")
        g("v_lshlrev_b32 v7, 4, v7")
        g("v_min_u32 v7, 20, v7")
        g(f"v_mad_u32_u24 v{44+j}, v6, 36, v7")
    g(f"s_lshr_b32 s13, s{S_FS}, 1")
    g("s_cmp_lt_u32 s13, 2")
    g("s_cselect_b32 s12, 36864, 0")
    g(f"s_and_b32 s11, s{S_W4}, 1")
    for n in range(5):
        Ls = g.new("kws")
        if n == 4:
            g("s_cmp_lg_u32 s11, 0")
            g(f"s_cbranch_scc1 {Ls}")
        g(f"s_add_u32 s14, s11, {2*n}")
        g(f"s_mul_i32 s9, s14, {64*36}")
        g("s_mul_i32 s10, s14, 3072")
        g("s_add_u32 s10, s10, s12")
        for j in range(3):
            g(f"s_add_u32 m0, s10, {j*1024}")
            g("s_nop 0")
            g(f"buffer_load_dwordx4 v{44+j}, {sr(SRD_WK)}, s9 offen lds")
        g.label(Ls)
    for j in range(9):
        g(f"v_add_u32 v5, {64*j}, v1")
        g("v_mul_u32_u24 v6, 7282, v5")
        g("v_lshrrev_b32 v6, 16, v6")
        g("v_mul_u32_u24 v7, 9, v6")
        g("v_sub_u32 v7, v5, v7")
        g("v_mul_u32_u24 v6, 1152, v6")
        g(f"v_lshl_add_u32 v{50+j}, v7, 4, v6")
        if j % 4:
            g(f"v_subrev_u32 v{50+j}, {(j%4)*1024}, v{50+j}")
    g(f"s_lshl_b32 s9, s{S_W4}, 2")
    g(f"s_add_u32 s9, s9, {F_P}")
    g("v_mov_b32 v47, s9")
    g("v_mov_b32 v46, 2")
    g(f"s_mul_i32 s12, s{S_FS}, 144")
    NE = opts.get("qearly", 0)
    for n in range(5):
        if n == NE:
            g(f"s_waitcnt vmcnt({9*NE})")
            g("ds_write_b32 v47, v46")
            stamp(g, opts, 10)
        Ls = g.new("qs")
        if n == 4:
            g("s_cmp_lg_u32 s11, 0")
            g(f"s_cbranch_scc1 {Ls}")
        g(f"s_add_u32 s14, s11, {2*n}")
        g(f"s_mul_i32 s9, s14, {64*1152}")
        g("s_add_u32 s9, s9, s12")
        g("s_mul_i32 s10, s14, 9216")
        g(f"s_add_u32 s10, s10, {QST}")
        for j in range(9):
            if j % 4 == 0:
                g(f"s_add_u32 m0, s10, {(j//4)*4096}")
                g("s_nop 0")
            g(f"buffer_load_dwordx4 v{50+j}, {sr(SRD_WQ)}, s9 offen offset:{(j%4)*1024} lds")
        g.label(Ls)
    stamp(g, opts, 11)


A_Q1 = [16, 20]
A_Q2 = [24, 28]
A_S = [32, 48]
A_P = [64, 72]
A_O = [80, 96]
def A_KV(st, u):
    return 112 + (st * 2 + u) * 16
A_M = [176, 177]
A_AK1, A_AK2, A_AV = 178, 179, 180
A_AFL, A_FLD, A_FLW = 181, 182, 183
A_DV0, A_DV1 = 184, 185
A_T = 186
A_FV = 200
QW = 128
QX = 236


def q_phase(g, opts):
    QA = [32, 48]
    AB = [112, 120]
    BB = [128, 144]
    def reads(kk):
        b = kk & 1
        off = kk * 4608
        st = 0
        if off >= 65536 - 4608:
            off -= 13 * 4608; st = 1
        L = []
        for m in range(2):
            for jh in range(2):
                L.append(f"ds_read_b64_tr_b16 {vr(AB[b]+m*4+jh*2,2)}, v{Q_VTA+st} offset:{off + (m*8+jh*16)*144}")
            for rt in range(2):
                L.append(f"ds_read_b128 {vr(BB[b]+(rt*2+m)*4,4)}, v{Q_VBA+(kk&1)*2+m} offset:{XH + rt*36864 + (kk>>1)*128}")
        return L
    def mfmas(kk):
        b = kk & 1
        L = []
        for m in range(2):
            for rt in range(2):
                c = "0" if (kk == 0 and m == 0) else vr(QA[rt], 16)
                L.append(f"v_mfma_f32_32x32x16_bf16 {vr(QA[rt],16)}, {vr(AB[b]+m*4,4)}, {vr(BB[b]+(rt*2+m)*4,4)}, {c}")
        return L
    for l in reads(0): g(l)
    for l in reads(1): g(l)
    for kk in range(18):
        g("s_waitcnt lgkmcnt(8)" if kk < 16 else "s_waitcnt lgkmcnt(8)" if kk == 16 else "s_waitcnt lgkmcnt(0)")
        if kk == 15:
            g(f"ds_write_b32 v{A_FLW}, v{A_FV}")
        mf = mfmas(kk)
        rd = reads(kk + 2) if kk + 2 < 18 else []
        g(mf[0]); g(mf[1])
        for l in rd[:2]: g(l)
        g(mf[2])
        for l in rd[2:4]: g(l)
        g(mf[3])
        for l in rd[4:]: g(l)
    g(f"s_mov_b32 s9, {f32bits(CSCALE)}")
    g("s_nop 15")
    for rt in range(2):
        for r in range(16):
            g(f"v_mul_f32 v{QA[rt]+r}, s9, v{QA[rt]+r}")
    Lodd, Lqd = g.new("odd"), g.new("qdone")
    g(f"s_bitcmp1_b32 s{S_W4}, 0")
    g(f"s_cbranch_scc1 {Lodd}")
    for odd in range(2):
        if odd:
            g.label(Lodd)
        for rt in range(2):
            q = QA[rt] + 2 * odd
            for p in range(4):
                g(f"v_cvt_pk_bf16_f32 v{A_Q1[rt]+p}, v{q+2*p}, v{q+2*p+1}")
            t = QA[rt] + (14 if odd else 8)
            g(f"v_cvt_pk_bf16_f32 v{A_T+8}, v{t}, v{t+1}")
            g(f"v_cndmask_b32 v{A_Q2[rt]}, 0, v{A_T+8}, s[{S_LO}:{S_LO+1}]")
        if not odd:
            g(f"s_branch {Lqd}")
    g.label(Lqd)
    for rt in range(2):
        for p in range(1, 4):
            g(f"v_mov_b32 v{A_Q2[rt]+p}, 0")


Q_VBA = 160
Q_VTA = 164
def q_setup(g, opts):
    g("v_and_b32 v2, 31, v1")
    g("v_lshrrev_b32 v3, 5, v1")
    g("v_bfe_u32 v4, v2, 1, 3")
    g("v_xor_b32 v4, v4, v3")
    g("v_mul_u32_u24 v5, 1152, v2")
    for e in range(2):
        for m in range(2):
            g(f"v_xor_b32 v6, {4*e+2*m}, v4")
            g(f"v_lshl_add_u32 v{Q_VBA+e*2+m}, v6, 4, v5")
    g("v_bfe_u32 v4, v1, 2, 2")
    g("v_lshl_add_u32 v4, v3, 2, v4")
    g("v_bfe_u32 v5, v1, 4, 1")
    g("v_and_b32 v6, 3, v1")
    g("v_lshl_add_u32 v5, v5, 2, v6")
    g(f"s_mul_i32 s9, s{S_W4}, 36")
    g(f"s_and_b32 s10, s{S_W4}, 1")
    g("s_lshl_b32 s10, s10, 2")
    g("s_sub_u32 s9, s9, s10")
    g(f"s_add_u32 s9, s9, {QST}")
    tbl_e = sum(v << (4*i) for i, v in enumerate([0,2,1,3,4,4,4,4]))
    tbl_o = sum(v << (4*i) for i, v in enumerate([0,2,1,3,2,4,4,4]))
    g(f"s_mov_b32 s11, {tbl_e}")
    g("s_cmp_lg_u32 s10, 0")
    g(f"s_cselect_b32 s11, {tbl_o}, s11")
    g("v_lshlrev_b32 v5, 2, v5")
    g("v_bfe_u32 v5, s11, v5, 4")
    g("v_lshlrev_b32 v6, 3, v5")
    g("v_add_u32 v6, s9, v6")
    g("v_mul_u32_u24 v4, 144, v4")
    g(f"v_add_u32 v{Q_VTA}, v4, v6")
    g(f"v_add_u32 v{Q_VTA+1}, {13*4608}, v{Q_VTA}")
    g("v_and_b32 v4, 3, v1")
    g("v_lshlrev_b32 v4, 2, v4")
    g(f"v_add_u32 v{A_AFL}, {F_KV}, v4")
    g(f"s_lshl_b32 s9, s{S_W4}, 2")
    g(f"s_add_u32 s9, s9, {F_KV}")
    g(f"v_mov_b32 v{A_FLW}, s9")
    g(f"v_mov_b32 v{A_FV}, 1")


def global_kv_sync(g, opts):
    g(f"v_mov_b32 v2, {F_G}")
    flag_wait(g, 2, A_FLD, 1, "gsb")
    flag_wait(g, A_AFL, A_FLD, 2, "gsa")


def reduce_setup(g, s_ct):
    srd(g, SRD_B1, P_B2, 1152)
    srd(g, SRD_W1, P_OUT, 2359296)
    g("v_lshlrev_b32 v2, 4, v1")
    g(f"s_lshr_b32 s10, s{S_FS}, 1")
    g(f"s_and_b32 s11, s{S_FS}, 1")
    g("s_mul_i32 s12, s10, 288")
    g(f"s_lshl_b32 s9, s{s_ct}, 5")
    g("s_add_u32 s12, s12, s9")
    g("v_lshrrev_b32 v3, 4, v1")
    g("v_lshlrev_b32 v3, 3, v3")
    g("v_add_u32 v3, s12, v3")
    g("v_and_b32 v4, 15, v1")
    g("v_mul_u32_u24 v4, 1152, v4")
    g("v_add_u32 v4, v4, v3")
    g(f"s_lshl_b32 s13, s{S_RB}, 1")
    g("s_add_u32 s13, s13, s11")
    g("s_mul_i32 s13, s13, 36864")
    g("s_add_u32 s14, s13, 18432")


def reduce_xb(g, xb, coff):
    g(f"buffer_load_dwordx2 {vr(xb,2)}, v3, {sr(SRD_B1)}, 0 offen offset:{coff}")
    g(f"buffer_load_dwordx2 {vr(xb+2,2)}, v4, {sr(SRD_X)}, s13 offen offset:{coff}")
    g(f"buffer_load_dwordx2 {vr(xb+4,2)}, v4, {sr(SRD_X)}, s14 offen offset:{coff}")


def reduce_loads(g, s_ct, pb, dct):
    g(f"s_mul_i32 s9, s{S_RB}, 589824")
    g("s_mul_i32 s12, s10, 18")
    g("s_add_u32 s12, s12, s11")
    g(f"s_lshl_b32 s15, s{s_ct}, 1")
    g("s_add_u32 s12, s12, s15")
    g("s_lshl_b32 s12, s12, 10")
    g("s_add_u32 s9, s9, s12")
    g(f"s_add_u32 s9, s9, {WS_PART + dct*2048}")
    for f2 in range(8):
        g(f"buffer_load_dwordx4 {vr(pb+f2*4,4)}, v2, {sr(SRD_WS)}, s9 offen sc1")
        if f2 < 7:
            g("s_add_u32 s9, s9, 73728")


def reduce_sum(g, pb, xb, ac, tm, coff):
    def unpack(dst, src):
        g(f"v_lshlrev_b32 v{dst}, 16, v{src}")
        g(f"v_and_b32 v{dst+1}, 0xffff0000, v{src}")
    for d in range(4):
        unpack(ac + 2 * d, xb + (d & 1))
        unpack(tm, xb + 2 + d)
        g(f"v_pk_add_f32 {vr(ac+2*d,2)}, {vr(ac+2*d,2)}, {vr(tm,2)}")
    for f2 in range(8):
        g(f"s_waitcnt vmcnt({7-f2})")
        for d in range(4):
            unpack(tm + 2 * (d & 1), pb + 4 * f2 + d)
            g(f"v_pk_add_f32 {vr(ac+2*d,2)}, {vr(ac+2*d,2)}, {vr(tm+2*(d&1),2)}")
    for d in range(4):
        g(f"v_cvt_pk_bf16_f32 v{tm+4+d}, v{ac+2*d}, v{ac+2*d+1}")
    g(f"buffer_store_dwordx2 {vr(tm+4,2)}, v4, {sr(SRD_W1)}, s13 offen offset:{coff}")
    g(f"buffer_store_dwordx2 {vr(tm+6,2)}, v4, {sr(SRD_W1)}, s14 offen offset:{coff}")


from gen_attn import attention
from gen_ffn import ffn, ffn_setup


def main_kernel(name, opts):
    g = G()
    me = sys.modules[__name__]
    head(g, opts)
    Lfl = g.new("noflag")
    g(f"s_cmp_lg_u32 s{S_WV}, 0")
    g(f"s_cbranch_scc1 {Lfl}")
    g("v_lshlrev_b32 v5, 2, v1")
    g("v_and_b32 v5, 127, v5")
    g(f"v_add_u32 v5, {FLAGS}, v5")
    g("v_mov_b32 v6, 0")
    g("ds_write_b32 v5, v6")
    g("s_waitcnt lgkmcnt(0)")
    g.label(Lfl)
    g("s_barrier")
    Lf = g.new("fwaves")
    g(f"s_cmp_ge_u32 s{S_WV}, 4")
    g(f"s_cbranch_scc1 {Lf}")
    touches(g, opts)
    q_setup(g, opts)
    a_layernorm(g, opts)
    q_phase(g, opts)
    stamp(g, opts, 3)
    attention(g, opts, me)
    stamp_flush(g, opts)
    g("s_branch L_end")
    g.label(Lf)
    g("s_setprio 3")
    srd(g, SRD_WQ, P_WQ, 663552)
    Lst, Lfj = g.new("fstage"), g.new("fjoin")
    g(f"s_cmp_ge_u32 s{S_W4}, 2")
    g(f"s_cbranch_scc1 {Lst}")
    f_kv(g, opts)
    g(f"s_branch {Lfj}")
    g.label(Lst)
    f_stage(g, opts)
    g.label(Lfj)
    g("s_setprio 0")
    srd(g, SRD_WO, P_WO, 663552)
    srd(g, SRD_W1, P_W1, 5308416)
    srd(g, SRD_W2, P_W2, 5308416)
    srd(g, SRD_B1, P_B1, 9216)
    g(f"s_mul_i32 s9, s{S_W4}, 288")
    g(f"s_mul_i32 s10, s{S_FS}, 1152")
    g("s_add_u32 s9, s9, s10")
    g("v_lshrrev_b32 v5, 4, v1")
    g("v_lshlrev_b32 v5, 3, v5")
    for ct in range(9):
        g(f"buffer_load_dwordx2 {vr(160+2*ct,2)}, v5, {sr(SRD_B1)}, s9 offen offset:{ct*32}")
    touch_w1(g, opts)
    fill = ffn_setup(g, opts, me)
    Lnw = g.new("fnw")
    g(f"s_cmp_lt_u32 s{S_W4}, 2")
    g(f"s_cbranch_scc1 {Lnw}")
    g(f"s_lshl_b32 s9, s{S_W4}, 2")
    g(f"s_add_u32 s9, s9, {F_P}")
    g("v_mov_b32 v5, s9")
    g("v_mov_b32 v6, 4")
    g(f"s_waitcnt vmcnt({9 if opts.get('nopf') else 10})")
    g("ds_write_b32 v5, v6")
    g.label(Lnw)
    stamp(g, opts, 1)
    f_poll_go(g, opts)
    stamp(g, opts, 12)
    g("v_and_b32 v5, 3, v1")
    g("v_lshlrev_b32 v5, 2, v5")
    g(f"v_add_u32 v5, {F_KV}, v5")
    flag_wait(g, 5, 6, 1, "ring")
    for o in fill:
        for l in o: g(l)
    opts["npf"] = 0
    ffn(g, opts, me)
    stamp_flush(g, opts)
    g.label("L_end")
    g("s_endpgm")
    txt = g.text().replace("L_", f"L{opts['tag']}_")
    return f"""
.globl {name}
.p2align 8
.type {name},@function
{name}:
{txt}
"""


def reduce_kernel(name, opts={}):
    g = G()
    g("s_cmp_ge_u32 s2, 576")
    g("s_cbranch_scc1 LR_end")
    if opts.get("stamp"):
        g("s_memrealtime s[40:41]")
    g("s_load_dwordx2 s[16:17], s[0:1], 0")
    g("s_load_dwordx2 s[18:19], s[0:1], 72")
    g("s_load_dwordx2 s[20:21], s[0:1], 80")
    g("s_load_dwordx2 s[22:23], s[0:1], 96")
    g("v_and_b32 v1, 63, v0")
    g("v_lshrrev_b32 v2, 6, v0")
    g("s_nop 0")
    g("v_readfirstlane_b32 s3, v2")
    g("s_lshl_b32 s4, s2, 2")
    g("s_add_u32 s4, s4, s3")
    g("s_mul_i32 s5, s4, 3641")
    g("s_lshr_b32 s5, s5, 16")
    g("s_mul_i32 s6, s5, 18")
    g("s_sub_u32 s6, s4, s6")
    g("s_lshr_b32 s7, s5, 2")
    g("s_and_b32 s8, s5, 3")
    g("s_waitcnt lgkmcnt(0)")
    srd(g, 24, 16, 2359296)
    srd(g, 28, 18, 1152)
    srd(g, 32, 20, 2359296)
    srd(g, 36, 22, WS_SIZE)
    g("s_mul_i32 s9, s7, 589824")
    g("s_mul_i32 s10, s8, 18")
    g("s_add_u32 s10, s10, s6")
    g("s_lshl_b32 s10, s10, 10")
    g("s_add_u32 s9, s9, s10")
    g(f"s_add_u32 s9, s9, {WS_PART}")
    g("v_lshlrev_b32 v2, 4, v1")
    for fs in range(8):
        g(f"buffer_load_dwordx4 {vr(8+4*fs,4)}, v2, s[36:39], s9 offen")
        if fs < 7:
            g("s_add_u32 s9, s9, 73728")
    g("s_lshr_b32 s10, s6, 1")
    g("s_and_b32 s11, s6, 1")
    g("s_mul_i32 s12, s8, 288")
    g("s_lshl_b32 s10, s10, 5")
    g("s_add_u32 s12, s12, s10")
    g("v_lshrrev_b32 v3, 4, v1")
    g("v_lshlrev_b32 v3, 3, v3")
    g("v_add_u32 v3, s12, v3")
    g("s_lshl_b32 s13, s7, 1")
    g("s_add_u32 s13, s13, s11")
    g("s_mul_i32 s13, s13, 36864")
    g("v_and_b32 v4, 15, v1")
    g("v_mul_u32_u24 v4, 1152, v4")
    g("v_add_u32 v4, v4, v3")
    g("s_add_u32 s14, s13, 18432")
    g("buffer_load_dwordx2 v[40:41], v3, s[28:31], 0 offen")
    g("buffer_load_dwordx2 v[42:43], v4, s[24:27], s13 offen")
    g("buffer_load_dwordx2 v[44:45], v4, s[24:27], s14 offen")
    g("s_waitcnt vmcnt(0)")
    def unpack(dst, src):
        g(f"v_lshlrev_b32 v{dst}, 16, v{src}")
        g(f"v_and_b32 v{dst+1}, 0xffff0000, v{src}")
    for d in range(4):
        unpack(48 + 2 * d, 8 + d)
    for fs in range(1, 8):
        for d in range(4):
            unpack(56, 8 + 4 * fs + d)
            g(f"v_pk_add_f32 {vr(48+2*d,2)}, {vr(48+2*d,2)}, v[56:57]")
    for d in range(4):
        unpack(56, 40 + (d & 1))
        g(f"v_pk_add_f32 {vr(48+2*d,2)}, {vr(48+2*d,2)}, v[56:57]")
        unpack(56, 42 + d)
        g(f"v_pk_add_f32 {vr(48+2*d,2)}, {vr(48+2*d,2)}, v[56:57]")
    for d in range(4):
        g(f"v_cvt_pk_bf16_f32 v{60+d}, v{48+2*d}, v{49+2*d}")
    g("buffer_store_dwordx2 v[60:61], v4, s[32:35], s13 offen")
    g("buffer_store_dwordx2 v[62:63], v4, s[32:35], s14 offen")
    if opts.get("stamp"):
        g("s_waitcnt vmcnt(0)")
        g("s_memrealtime s[42:43]")
        g("s_waitcnt lgkmcnt(0)")
        g("v_mov_b32 v8, s40")
        g("v_mov_b32 v9, s42")
        g("v_mov_b32 v2, 0")
        g("s_lshl_b32 s4, s4, 3")
        g(f"s_add_u32 s4, s4, {WS_DBG + (1<<20) + (2<<18)}")
        g("s_mov_b64 exec, 1")
        g("buffer_store_dwordx2 v[8:9], v2, s[36:39], s4 offen")
    g.label("LR_end")
    g("s_endpgm")
    for u in range(2304):
        assert (u * 3641) >> 16 == u // 18
    return f"""
.globl {name}
.p2align 8
.type {name},@function
{name}:
{g.text()}
"""


def kd(name, vgpr, sgpr=100):
    return f"""
.p2align 6
.amdhsa_kernel {name}
  .amdhsa_next_free_vgpr {vgpr}
  .amdhsa_next_free_sgpr {sgpr}
  .amdhsa_accum_offset {vgpr}
  .amdhsa_group_segment_fixed_size 0
  .amdhsa_kernarg_size 104
  .amdhsa_user_sgpr_count 2
  .amdhsa_user_sgpr_kernarg_segment_ptr 1
  .amdhsa_system_sgpr_workgroup_id_x 1
.end_amdhsa_kernel
"""


def build(mode):
    hdr = []
    body = []
    kds = []
    def add(name, code, grid, block, lds, vgpr):
        hdr.append(f"; @launch kernel={name} grid=({grid},1,1) block=({block},1,1) lds={lds}")
        body.append(code)
        kds.append(kd(name, vgpr))
    o = dict(tag="M", publish=True, inkernel=True)
    for m in mode.split(","):
        if "=" in m:
            k, v = m.split("="); o[k] = int(v)
        elif m: o[m] = True
    if o.get("fuse"):
        nm = KN + "_kernel"
        add(nm, main_kernel(nm, o), 256, 512, LDS_SIZE, 256)
        hdr[-1] = f"; @launch grid=(256,1,1) block=(512,1,1) lds={LDS_SIZE}"
    else:
        add("main_kernel", main_kernel("main_kernel", o), 256, 512, LDS_SIZE, 256)
    if not o.get("fuse"):
        add("reduce_kernel", reduce_kernel("reduce_kernel", o), 576, 256, 0, 64)
    out = "\n".join(hdr) + '\n.amdgcn_target "amdgcn-amd-amdhsa--gfx950"\n.text\n' + "\n".join(body) + '\n.section .rodata,"a"\n' + "\n".join(kds)
    return out


if __name__ == "__main__":
    mode = sys.argv[1]
    open(sys.argv[2], "w").write(build(mode))
```

```python
def attention(g, opts, M):
    if opts.get("noattn"):
        return
    vr, sr = M.vr, M.sr
    S_RB, S_FS, S_WV, S_W4, S_LO = M.S_RB, M.S_FS, M.S_WV, M.S_W4, M.S_LO
    Q1, Q2, S, P, O, KV = M.A_Q1, M.A_Q2, M.A_S, M.A_P, M.A_O, M.A_KV
    AM, AK1, AK2, AV = M.A_M, M.A_AK1, M.A_AK2, M.A_AV
    AFL, FLD, FLW, DV, T, FV = M.A_AFL, M.A_FLD, M.A_FLW, M.A_DV0, M.A_T, M.A_FV
    S_C, S_THR, S_DOFF, S_M0B, S_LT = 84, 85, 86, 87, 88
    S_CK = [90, 92]
    LO = f"s[{S_LO}:{S_LO+1}]"
    CH, TB = M.CHUNK_B, M.TILE_B
    ldaux = " sc1" if opts.get("inkernel") else ""

    g("v_and_b32 v2, 31, v1")
    g("v_lshrrev_b32 v3, 5, v1")
    g(f"v_lshlrev_b32 v4, 4, v1")
    g(f"v_add_u32 v{AK1}, {M.KVR}, v4")
    g(f"v_lshlrev_b32 v4, 2, v2")
    g(f"v_add_u32 v{AK2}, {M.KVR + 1024}, v4")
    g("v_min_u32 v4, 19, v2")
    g("v_cmp_eq_u32 vcc, 22, v2")
    g("s_nop 1")
    g("v_cndmask_b32 v4, v4, 18, vcc")
    g("v_lshlrev_b32 v4, 4, v4")
    g(f"v_mul_u32_u24 v5, {M.VG_B}, v3")
    g("v_add_u32 v4, v4, v5")
    g(f"v_add_u32 v{AV}, {M.KVR + 1152}, v4")
    g(f"s_mul_i32 s9, s{S_W4}, {76*16}")
    g(f"v_lshlrev_b32 v4, 4, v1")
    g(f"v_add_u32 v{DV}, s9, v4")
    g(f"s_add_u32 s{S_M0B}, s9, {M.KVR}")
    g(f"s_mov_b32 s{S_LT}, {M.f32bits(M.LTHR) if not opts.get('norare') else 0x7f800000}")
    for st in range(2):
        for u in range(2):
            b = KV(st, u)
            g(f"v_mov_b32 v{b+5}, 0x3f803f80")
            g(f"v_mov_b32 v{b+6}, 0x3f80")
            g(f"v_mov_b32 v{b+7}, 0")
    for r in range(4):
        g(f"v_mov_b32 v{KV(1,1)+12+r}, 0")
    for rt in range(2):
        for r in range(16):
            g(f"v_mov_b32 v{O[rt]+r}, 0")
        for r in range(8):
            g(f"v_mov_b32 v{P[rt]+r}, 0")

    AD = 204
    g("v_and_b32 v2, 31, v1")
    g("v_lshrrev_b32 v3, 5, v1")
    g(f"v_mul_u32_u24 v4, {M.OSTR}, v2")
    g(f"v_add_u32 v4, {M.OREG}, v4")
    g(f"s_mul_i32 s9, s{S_W4}, 18")
    g("v_lshlrev_b32 v5, 2, v3")
    g("v_add_u32 v5, s9, v5")

    for p, dd in enumerate((0, 2, 8, 10, 16)):
        g(f"v_add_u32 v6, {dd}, v5")
        g("v_lshrrev_b32 v7, 5, v6")
        g(f"v_lshl_add_u32 v{AD+p}, v7, 6, v4")
        g("v_bfe_u32 v7, v6, 2, 2")
        g(f"v_lshl_add_u32 v{AD+p}, v7, 4, v{AD+p}")
        g("v_bfe_u32 v7, v6, 4, 1")
        g(f"v_lshl_add_u32 v{AD+p}, v7, 3, v{AD+p}")
        g("v_and_b32 v7, 3, v6")
        g(f"v_lshl_add_u32 v{AD+p}, v7, 1, v{AD+p}")
    g("v_and_b32 v6, 15, v1")
    g(f"s_lshl_b32 s9, s{S_W4}, 4")
    g("v_add_u32 v6, s9, v6")
    g(f"v_mul_u32_u24 v6, {M.OSTR}, v6")
    g(f"v_add_u32 v6, {M.OREG + 128}, v6")
    g("v_lshrrev_b32 v7, 4, v1")
    g("v_lshl_add_u32 v209, v7, 4, 16")
    g("v_add_u32 v210, 8, v209")
    g("v_cmp_eq_u32 vcc, 0, v7")
    g("v_cmp_eq_u32 s[92:93], 3, v7")
    g("s_nop 1")
    g("s_or_b64 vcc, vcc, s[92:93]")
    g("s_nop 1")
    g("v_cndmask_b32 v209, v209, 8, vcc")
    g("v_cndmask_b32 v210, v210, 24, vcc")
    g("v_add_u32 v209, v209, v6")
    g("v_add_u32 v210, v210, v6")

    def dma(slot):
        return [[f"s_add_u32 m0, s{S_M0B}, {slot*CH}", "s_nop 0",
                 f"buffer_load_dwordx4 v{DV}, {sr(M.SRD_WS)}, s{S_DOFF} offen{ldaux} lds"],
                ["s_mov_b64 exec, 0xfff",
                 f"buffer_load_dwordx4 v{DV}, {sr(M.SRD_WS)}, s{S_DOFF} offen offset:1024{ldaux} lds",
                 "s_mov_b64 exec, -1",
                 f"s_add_u32 s{S_DOFF}, s{S_DOFF}, {CH}"]]
    def frag_reads(slot, st):
        ops = []
        for u in range(2):
            b = KV(st, u)
            off = slot * CH + u * TB
            ops.append([f"ds_read_b128 {vr(b,4)}, v{AK1} offset:{off}"])
            ops.append([f"ds_read_b32 v{b+4}, v{AK2} offset:{off}"])
            ops.append([f"ds_read_b128 {vr(b+8,4)}, v{AV} offset:{off}"])
            ops.append([f"ds_read_b128 {vr(b+12,4)}, v{AV} offset:{off+M.VH_B}"])
        return ops
    def emit(ops):
        for o in ops:
            for l in o:
                g(l)
    def set_mref(rt):
        g(f"v_sub_f32 v{T}, 0, v{AM[rt]}")
        g(f"v_and_b32 v{T+1}, 0xffff0000, v{T}")
        g(f"v_sub_f32 v{T}, v{T}, v{T+1}")
        g(f"v_and_b32 v{T+2}, 0xffff0000, v{T}")
        g(f"v_sub_f32 v{T}, v{T}, v{T+2}")
        g(f"v_lshrrev_b32 v{T+1}, 16, v{T+1}")
        g(f"v_or_b32 v{T+1}, v{T+1}, v{T+2}")
        g(f"v_lshrrev_b32 v{T}, 16, v{T}")
        g(f"v_cndmask_b32 v{Q2[rt]+1}, 0, v{T+1}, {LO}")
        g(f"v_cndmask_b32 v{Q2[rt]+2}, 0, v{T}, {LO}")
    def qk1(rt, kb):
        return f"v_mfma_f32_32x32x16_bf16 {vr(S[rt],16)}, {vr(kb,4)}, {vr(Q1[rt],4)}, 0"
    def qk2(rt, kb):
        return f"v_mfma_f32_32x32x16_bf16 {vr(S[rt],16)}, {vr(kb+4,4)}, {vr(Q2[rt],4)}, {vr(S[rt],16)}"
    def pva(rt, kb):
        return f"v_mfma_f32_32x32x16_bf16 {vr(O[rt],16)}, {vr(kb+8,4)}, {vr(P[rt],4)}, {vr(O[rt],16)}"
    def pvb(rt, kb):
        return f"v_mfma_f32_32x32x16_bf16 {vr(O[rt],16)}, {vr(kb+12,4)}, {vr(P[rt]+4,4)}, {vr(O[rt],16)}"

    g(f"v_mov_b32 v{FV}, 2")
    g("s_waitcnt vmcnt(0)")
    M.stamp(g, opts, 8)
    g(f"ds_write_b32 v{FLW}, v{FV}")
    if opts.get("inkernel"):
        M.global_kv_sync(g, opts)
    else:
        M.flag_wait(g, AFL, FLD, 2, "ka")
    M.stamp(g, opts, 7)
    g("s_setprio 2")
    g(f"s_mov_b32 s{S_DOFF}, {M.WS_KV}")
    for c in range(3):
        emit(dma(c))
    g("s_waitcnt vmcnt(4)")
    g(f"v_mov_b32 v{FV}, 3")
    g(f"ds_write_b32 v{FLW}, v{FV}")
    M.flag_wait(g, AFL, FLD, 3, "kb")
    emit(frag_reads(0, 0))
    g("s_waitcnt lgkmcnt(0)")
    M.stamp(g, opts, 4)
    for u in range(2):
        for rt in range(2):
            g(qk1(rt, KV(0, u)))
            g(qk2(rt, KV(0, u)))
        g("s_nop 15")
        g("s_nop 3")
        for rt in range(2):
            s = S[rt]
            t = T + 10 + rt
            if u == 0:
                g(f"v_max_f32 v{t}, v{s}, v{s+15}")
            else:
                g(f"v_max3_f32 v{t}, v{t}, v{s}, v{s+15}")
            for r in range(1, 15, 2):
                g(f"v_max3_f32 v{t}, v{t}, v{s+r}, v{s+r+1}")
    for rt in range(2):
        t = T + 10 + rt
        g(f"v_mov_b32 v{T+1}, v{t}")
        g("s_nop 1")
        g(f"v_permlane32_swap_b32 v{t}, v{T+1}")
        g("s_nop 1")
        g(f"v_max_f32 v{T}, v{t}, v{T+1}")
        g(f"v_ceil_f32 v{T}, v{T}")
        g(f"v_add_f32 v{AM[rt]}, {M.f32bits(float(M.HEAD))}, v{T}")
        set_mref(rt)
    g("s_nop 1")
    g(qk1(0, KV(0, 0)))
    g(qk2(0, KV(0, 0)))
    g("s_nop 15")
    M.stamp(g, opts, 5)
    M.cstamp(g, opts, 11)
    g("s_mov_b32 s94, 0")
    g(f"s_mov_b32 s{S_C}, 0")
    g(f"s_mov_b32 s{S_THR}, 4")

    rare = []

    def half_iter(pos6, q, extra, shadow=()):
        st = pos6 & 1
        rt = q & 1
        u = q >> 1
        if q < 3:
            nst, nu, nrt = st, (q + 1) >> 1, (q + 1) & 1
        else:
            nst, nu, nrt = st ^ 1, 0, 0
        if q > 0:
            pst, pu, prt = st, (q - 1) >> 1, (q - 1) & 1
        else:
            pst, pu, prt = st ^ 1, 1, 1
        s, p = S[rt], P[rt]
        valu = []
        for grp in range(4):
            for r in range(4):
                valu.append(f"v_exp_f32 v{s+4*grp+r}, v{s+4*grp+r}")
            valu.append(f"v_cvt_pk_bf16_f32 v{p+2*grp}, v{s+4*grp}, v{s+4*grp+1}")
            valu.append(f"v_cvt_pk_bf16_f32 v{p+2*grp+1}, v{s+4*grp+2}, v{s+4*grp+3}")
        mf = {0: qk1(nrt, KV(nst, nu)), 6: qk2(nrt, KV(nst, nu)), 12: pvb(prt, KV(pst, pu)), 18: pva(rt, KV(st, u))}
        sh = list(shadow)
        for i in range(24):
            for l in extra.get(i, []):
                g(l)
            if i in mf:
                g(mf[i])
            g(valu[i])
            if valu[i].startswith("v_exp") and sh and sh[0][0] <= i:
                x = sh.pop(0)[1]
                for l in (x if isinstance(x, list) else [x]):
                    g(l)
        assert not sh, sh

    def rare_block(rt, kb, Lr, Lback):
        b = []
        b.append(f"{Lr}:")
        L = M.G()
        L(pvb(rt, kb))
        L("s_nop 15")
        L("s_nop 3")
        L(f"v_frexp_exp_i32_f32 v{T+3}, v{O[rt]+10}")
        L(f"v_add_u32 v{T+3}, {M.HEAD}, v{T+3}")
        L(f"v_max_i32 v{T+3}, 0, v{T+3}")
        L(f"v_cvt_f32_i32 v{T+4}, v{T+3}")
        L(f"v_sub_u32 v{T+3}, 0, v{T+3}")
        L(f"v_add_f32 v{AM[rt]}, v{AM[rt]}, v{T+4}")
        for r in range(11):
            L(f"v_ldexp_f32 v{O[rt]+r}, v{O[rt]+r}, v{T+3}")
        for r in range(4):
            L(f"v_mov_b32 v{P[rt]+4+r}, 0")
        old = g.lines
        g.lines = L.lines
        set_mref(rt)
        if opts.get("dbgrare"):
            g(f"s_add_u32 s95, s95, 1")
        g("s_nop 1")
        g(f"s_branch {Lback}")
        g.lines = old
        rare.append("\n".join(b + L.lines))

    Lloop, Lexit = g.new("aloop"), g.new("aexit")
    if opts.get("dbgrare"):
        g("s_mov_b32 s95, 0")
    g.label(Lloop)
    for pos6 in range(6):
        st = pos6 & 1
        g.c(f"==== chunk pos {pos6}")
        Lspin, Lback = g.new("aspin"), g.new("aback")
        ex = {}
        sh = [(1, "s_waitcnt vmcnt(2)"), (2, f"v_mov_b32 v{FV}, s{S_THR}"), (3, f"ds_write_b32 v{FLW}, v{FV}"),
              (19, f"ds_read_b32 v{FLD}, v{AFL}")]
        if opts.get("nosync") or opts.get("noflag"): sh = []
        half_iter(pos6, 0, ex, sh)
        fr = [x[0] for x in frag_reads((pos6 + 1) % 3, st ^ 1)]
        sh = [(6, "s_waitcnt lgkmcnt(0)"), (7, f"v_cmp_gt_u32 vcc, s{S_THR}, v{FLD}"),
              (12, [f"s_cbranch_vccnz {Lspin}", f"{Lback}:"]),
              (13, fr[0]), (14, fr[1]), (15, fr[4]), (18, fr[5]), (19, fr[2]), (20, fr[3]), (21, fr[6])]
        if opts.get("nosync"): sh = [(12, f"{Lback}:")]
        if opts.get("noflag"): sh = [(12, f"{Lback}:")] + sh[3:]
        if opts.get("noreads"): sh = sh[:3]
        ex = {}
        if st == 0:
            ex[17] = [f"v_cmp_lt_f32 s[{S_CK[1]}:{S_CK[1]+1}], s{S_LT}, v{O[1]+10}"]
        half_iter(pos6, 1, ex, sh)
        rare.append("\n".join([f"{Lspin}:", f"    ds_read_b32 v{FLD}, v{AFL}", "    s_waitcnt lgkmcnt(0)",
                               f"    v_cmp_gt_u32 vcc, s{S_THR}, v{FLD}", "    s_nop 4",
                               "    s_add_u32 s94, s94, 1", f"    s_cbranch_vccz {Lback}", "    s_sleep 1", f"    s_branch {Lspin}"]))
        ex = {}
        if st == 0:
            Lr, Lb = g.new("rare1"), g.new("rback1")
            ex[0] = [f"s_cmp_lg_u64 s[{S_CK[1]}:{S_CK[1]+1}], 0", f"s_cbranch_scc1 {Lr}", f"{Lb}:"]
            rare_block(1, KV(0, 0), Lr, Lb)
            ex[17] = [f"v_cmp_lt_f32 s[{S_CK[0]}:{S_CK[0]+1}], s{S_LT}, v{O[0]+10}"]
        slot = pos6 % 3
        sh = [(0, fr[7]), (1, f"s_add_u32 m0, s{S_M0B}, {slot*CH}"),
              (2, f"buffer_load_dwordx4 v{DV}, {sr(M.SRD_WS)}, s{S_DOFF} offen{ldaux} lds"),
              (7, ["s_mov_b64 exec, 0xfff",
                   f"buffer_load_dwordx4 v{DV}, {sr(M.SRD_WS)}, s{S_DOFF} offen offset:1024{ldaux} lds",
                   "s_mov_b64 exec, -1"]),
              (9, f"s_add_u32 s{S_DOFF}, s{S_DOFF}, {CH}")]
        if opts.get("nosync"): sh = []
        if opts.get("nodma"): sh = sh[:1]
        if opts.get("nodma2"): sh = sh[:3] + sh[4:]
        if opts.get("noreads"): sh = sh[1:]
        half_iter(pos6, 2, ex, sh)
        ex = {0: ["s_waitcnt lgkmcnt(0)"]}
        if st == 0:
            Lr, Lb = g.new("rare0"), g.new("rback0")
            ex[0] = ex[0] + [f"s_cmp_lg_u64 s[{S_CK[0]}:{S_CK[0]+1}], 0", f"s_cbranch_scc1 {Lr}", f"{Lb}:"]
            rare_block(0, KV(0, 1), Lr, Lb)
        sh = [(13, f"s_add_u32 s{S_THR}, s{S_THR}, 1")]
        if pos6 == 1:
            sh.append((14, f"s_cmp_eq_u32 s{S_THR}, 36"))
        half_iter(pos6, 3, ex, sh)
        if pos6 == 1:
            g(f"s_cbranch_scc1 {Lexit}")
    g(f"s_branch {Lloop}")
    for r in rare:
        g.lines.append(r)
    g.label(Lexit)
    g("s_nop 1")
    g(pvb(1, KV(1, 1)))
    g("s_setprio 0")
    M.stamp(g, opts, 6)
    M.cstamp(g, opts, 12)
    if opts.get("stamp"):
        g("v_writelane_b32 v254, s94, 10")
    g("s_waitcnt vmcnt(0) lgkmcnt(0)")
    g(f"v_mov_b32 v{FV}, 100")
    g(f"ds_write_b32 v{FLW}, v{FV}")
    g("s_nop 7")
    g("s_nop 7")
    if opts.get("dbgrare"):
        g("s_lshl_b32 s9, s2, 2")
        g(f"s_add_u32 s9, s9, s{S_W4}")
        g("s_lshl_b32 s9, s9, 2")
        g(f"s_add_u32 s9, s9, {M.WS_DBG}")
        g("v_mov_b32 v2, 0")
        g("v_mov_b32 v3, s95")
        g(f"buffer_store_dword v3, v2, {sr(M.SRD_WS)}, s9 offen")
    g("s_movk_i32 s9, 0x207")
    g("s_mov_b64 s[90:91], 0")
    the_slow = opts.get("slow", True)
    for rt in range(2):
        Lok = g.new("fin_ok")
        g(f"v_mul_f32 v{T}, 0, v{O[rt]}")
        g(f"v_mul_f32 v{T+1}, 0, v{O[rt]+1}")
        for r in range(2, 11):
            g(f"v_fma_f32 v{T+(r&1)}, v{O[rt]+r}, 0, v{T+(r&1)}")
        g(f"v_cmp_u_f32 s[90:91], v{T}, v{T+1}")
        g("s_nop 1")
        if opts.get("forceslow"):
            g("s_mov_b64 s[90:91], -1")
        g("s_cmp_eq_u64 s[90:91], 0")
        g(f"s_cbranch_scc1 {Lok}")
        slow_path(g, opts, M, rt, set_mref, qk1, qk2, pva, pvb)
        g.label(Lok)
    g("v_mov_b32 v6, 0")
    g("v_mov_b32 v7, 0")
    for rt in range(2):
        o = O[rt]
        g(f"v_rcp_f32 v{T}, v{o+10}")
        g("s_nop 0")
        for r in range(10):
            g(f"v_mul_f32 v{o+r}, v{o+r}, v{T}")
        for p in range(5):
            g(f"v_cvt_pk_bf16_f32 v{o+p}, v{o+2*p}, v{o+2*p+1}")
    M.flag_wait(g, AFL, FLD, 100, "kend")
    g("ds_write_b64 v209, v[6:7]")
    g("ds_write_b64 v210, v[6:7]")
    for rt in range(2):
        o = O[rt]
        for p in range(4):
            g(f"ds_write_b32 v{AD+p}, v{o+p} offset:{rt*32*M.OSTR}")
        g(f"s_mov_b64 exec, {LO}")
        g(f"ds_write_b32 v{AD+4}, v{o+4} offset:{rt*32*M.OSTR}")
        g("s_mov_b64 exec, -1")
    g("s_waitcnt lgkmcnt(0)")
    g(f"v_add_u32 v{FLW}, {M.F_O - M.F_KV}, v{FLW}")
    g(f"v_mov_b32 v{FV}, 1")
    g(f"ds_write_b32 v{FLW}, v{FV}")
    M.reduce_setup(g, S_WV)
    XB = 112
    for p in range(3):
        M.reduce_xb(g, XB + 6 * p, p * 128)
    g(f"s_mul_i32 s84, s{S_RB}, 589824")
    g("s_mul_i32 s12, s10, 18")
    g("s_add_u32 s12, s12, s11")
    g(f"s_lshl_b32 s15, s{S_W4}, 1")
    g("s_add_u32 s12, s12, s15")
    g("s_lshl_b32 s12, s12, 10")
    g("s_add_u32 s84, s84, s12")
    g(f"s_add_u32 s84, s84, {M.WS_PART}")
    g("v_add_u32 v5, 8192, v2")
    g("v_add_u32 v6, 16384, v2")
    g(f"s_lshl_b32 s85, s{S_RB}, 2")
    g("s_add_u32 s85, s85, s10")
    g("s_lshl_b32 s85, s85, 7")
    g(f"s_add_u32 s85, s85, {M.WS_FLAG}")
    g("v_and_b32 v7, 7, v1")
    g("v_lshlrev_b32 v7, 2, v7")
    g("s_movk_i32 s86, 0xff")
    PB = 16
    if not opts.get("noawait"):
        g(f"v_add_u32 v9, {M.F_R - M.F_KV}, v{AFL}")
        M.flag_wait(g, 9, 8, 1, "rwait")
    Lp, Ld = g.new("rp"), g.new("rpd")
    g.label(Lp)
    g(f"buffer_load_dword v8, v7, {sr(M.SRD_WS)}, s85 offen sc1")
    g("s_waitcnt vmcnt(0)")
    g("v_cmp_eq_u32 vcc, 1, v8")
    g("s_nop 4")
    g("s_and_b32 s87, vcc_lo, s86")
    g("s_andn2_b32 s86, s86, s87")
    for f2 in range(8):
        Ls = g.new("rps")
        g(f"s_bitcmp1_b32 s87, {f2}")
        g(f"s_cbranch_scc0 {Ls}")
        g(f"s_add_u32 s9, s84, {f2*73728}")
        g(f"buffer_load_dwordx4 {vr(PB+12*f2,4)}, v2, {sr(M.SRD_WS)}, s9 offen sc1")
        g(f"buffer_load_dwordx4 {vr(PB+12*f2+4,4)}, v5, {sr(M.SRD_WS)}, s9 offen sc1")
        g(f"s_cmp_lg_u32 s{S_W4}, 0")
        g(f"s_cbranch_scc1 {Ls}")
        g(f"buffer_load_dwordx4 {vr(PB+12*f2+8,4)}, v6, {sr(M.SRD_WS)}, s9 offen sc1")
        g.label(Ls)
    g("s_cmp_eq_u32 s86, 0")
    g(f"s_cbranch_scc1 {Ld}")
    g(f"s_sleep {opts.get('rsleep', 2)}")
    g(f"s_branch {Lp}")
    g.label(Ld)
    M.stamp(g, opts, 9)
    g("s_waitcnt vmcnt(0)")
    M.reduce_sum(g, PB, XB, 136, 144, 0, 12, False)
    M.reduce_sum(g, PB + 4, XB + 6, 152, 160, 128, 12, False)
    Lx = g.new("red8")
    g(f"s_cmp_lg_u32 s{S_W4}, 0")
    g(f"s_cbranch_scc1 {Lx}")
    M.reduce_sum(g, PB + 8, XB + 12, 168, 176, 256, 12, False)
    g.label(Lx)
    g("s_waitcnt vmcnt(0)")


def slow_path(g, opts, M, rt, set_mref, qk1, qk2, pva, pvb):
    vr, sr = M.vr, M.sr
    Q1, Q2, S, P, O, KV = M.A_Q1, M.A_Q2, M.A_S, M.A_P, M.A_O, M.A_KV
    AM, AK1, AK2, AV, T = M.A_M, M.A_AK1, M.A_AK2, M.A_AV, M.A_T
    ldaux = " sc1" if opts.get("inkernel") else ""
    kb = KV(0, 0)
    s, p, o = S[rt], P[rt], O[rt]
    G1, G2, G3 = T + 6, T + 7, T + 8
    g(f"v_subrev_u32 v{G1}, {M.KVR}, v{AK1}")
    g(f"v_subrev_u32 v{G2}, {M.KVR}, v{AK2}")
    g(f"v_subrev_u32 v{G3}, {M.KVR}, v{AV}")
    for r in range(16):
        g(f"v_mov_b32 v{o+r}, 0")
    g(f"v_mov_b32 v{AM[rt]}, {M.f32bits(-8388608.0)}")
    g(f"s_mov_b32 s10, {M.WS_KV}")
    g("s_mov_b32 s11, 0")
    L, Lno = g.new("slow"), g.new("slownors")
    g.label(L)
    g(f"buffer_load_dwordx4 {vr(kb,4)}, v{G1}, {sr(M.SRD_WS)}, s10 offen{ldaux}")
    g(f"buffer_load_dword v{kb+4}, v{G2}, {sr(M.SRD_WS)}, s10 offen{ldaux}")
    g(f"buffer_load_dwordx4 {vr(kb+8,4)}, v{G3}, {sr(M.SRD_WS)}, s10 offen{ldaux}")
    g(f"buffer_load_dwordx4 {vr(kb+12,4)}, v{G3}, {sr(M.SRD_WS)}, s10 offen offset:{M.VH_B}{ldaux}")
    g(f"v_mov_b32 v{Q2[rt]+1}, 0")
    g(f"v_mov_b32 v{Q2[rt]+2}, 0")
    g("s_waitcnt vmcnt(0)")
    g("s_nop 1")
    g(qk1(rt, kb))
    g(qk2(rt, kb))
    g("s_nop 15")
    g("s_nop 3")
    g(f"v_max3_f32 v{T}, v{s}, v{s+1}, v{s+2}")
    for r in range(3, 15, 2):
        g(f"v_max3_f32 v{T}, v{T}, v{s+r}, v{s+r+1}")
    g(f"v_max_f32 v{T}, v{T}, v{s+15}")
    g(f"v_mov_b32 v{T+1}, v{T}")
    g("s_nop 1")
    g(f"v_permlane32_swap_b32 v{T}, v{T+1}")
    g("s_nop 1")
    g(f"v_max_f32 v{T}, v{T}, v{T+1}")
    g(f"v_ceil_f32 v{T}, v{T}")
    g(f"v_max_f32 v{T}, v{T}, v{AM[rt]}")
    g(f"v_sub_f32 v{T+1}, v{AM[rt]}, v{T}")
    g(f"v_max_f32 v{T+1}, {M.f32bits(-1000.0)}, v{T+1}")
    g(f"v_cvt_i32_f32 v{T+1}, v{T+1}")
    g(f"v_mov_b32 v{AM[rt]}, v{T}")
    for r in range(16):
        g(f"v_ldexp_f32 v{o+r}, v{o+r}, v{T+1}")
    for r in range(16):
        g(f"v_sub_f32 v{s+r}, v{s+r}, v{AM[rt]}")
        g(f"v_exp_f32 v{s+r}, v{s+r}")
    g("s_nop 0")
    for r in range(8):
        g(f"v_cvt_pk_bf16_f32 v{p+r}, v{s+2*r}, v{s+2*r+1}")
    g("s_nop 1")
    g(pva(rt, kb))
    g(pvb(rt, kb))
    g("s_nop 15")
    g("s_nop 3")
    g(f"s_add_u32 s10, s10, {M.TILE_B}")
    g("s_add_u32 s11, s11, 1")
    g("s_cmp_lt_u32 s11, 64")
    g(f"s_cbranch_scc1 {L}")
```

```python
def ffn_setup(g, opts, M):
    vr, sr = M.vr, M.sr
    S_RB, S_FS, S_WV, S_W4 = M.S_RB, M.S_FS, M.S_WV, M.S_W4
    ACC = lambda ct, rt: 16 + (ct * 4 + rt) * 4
    AB = [160, 172]
    BB = [184, 200]
    VO1, VO2 = 216, 225
    VBE = [234, 235]
    VTA, VBO, VFL, VFW = 236, 237, 238, 239
    VH = 240
    VT = 244
    S_WR, S_O1, S_O2, S_O3 = 84, 85, 86, 87
    noattn = opts.get("noattn")
    for j in range(9):
        g(f"v_add_u32 v5, {64*j}, v1")
        g("v_mul_u32_u24 v6, 3641, v5")
        g("v_lshrrev_b32 v6, 16, v6")
        g("v_mul_u32_u24 v7, 18, v6")
        g("v_sub_u32 v7, v5, v7")
        g("v_lshlrev_b32 v7, 4, v7")
        if j % 4:
            g(f"v_subrev_u32 v7, {(j%4)*1024}, v7")
        g("v_mul_u32_u24 v5, 9216, v6")
        g(f"v_add_u32 v{VO1+j}, v5, v7")
        g("v_mul_u32_u24 v5, 1152, v6")
        g(f"v_add_u32 v{VO2+j}, v5, v7")
    g(f"s_mul_i32 s{S_WR}, s{S_W4}, 18432")
    g(f"s_add_u32 s{S_WR}, s{S_WR}, {M.WR}")
    g(f"s_mul_i32 s9, s{S_W4}, 288")
    g(f"s_mul_i32 s{S_O1}, s{S_FS}, 1152")
    g(f"s_add_u32 s{S_O1}, s{S_O1}, s9")
    g(f"s_mul_i32 s{S_O2}, s{S_FS}, {576*1152}")
    g(f"s_add_u32 s{S_O2}, s{S_O2}, s9")
    g(f"s_mul_i32 s{S_O3}, s{S_FS}, {72*1152}")
    g(f"s_add_u32 s{S_O3}, s{S_O3}, s9")
    g("v_and_b32 v2, 15, v1")
    g("v_lshrrev_b32 v3, 4, v1")
    g("v_bfe_u32 v4, v2, 1, 3")
    g("v_xor_b32 v5, v4, v3")
    g("v_mul_u32_u24 v6, 1152, v2")
    g(f"v_lshl_add_u32 v{VBE[0]}, v5, 4, v6")
    g("v_xor_b32 v5, 4, v5")
    g(f"v_lshl_add_u32 v{VBE[1]}, v5, 4, v6")
    g(f"v_mul_u32_u24 v5, {M.OSTR}, v2")
    g("v_lshl_add_u32 v5, v3, 4, v5")
    g(f"v_add_u32 v{VBO}, {M.OREG}, v5")
    g("v_lshrrev_b32 v5, 2, v1")
    g("v_mul_u32_u24 v5, 288, v5")
    g("v_and_b32 v7, 3, v1")
    g("v_lshl_add_u32 v5, v7, 3, v5")
    g(f"v_add_u32 v{VTA}, s{S_WR}, v5")
    g("v_lshlrev_b32 v5, 2, v7")
    g(f"v_add_u32 v{VFL}, {M.F_X}, v5")
    g(f"s_lshl_b32 s9, s{S_W4}, 2")
    g(f"s_add_u32 s9, s9, {M.F_X}")
    g(f"v_mov_b32 v{VFW}, s9")
    for c in range(4):
        g(f"s_mul_i32 s9, s{S_W4}, 9")
        g(f"s_add_u32 s9, s9, {c}")
        g("s_lshr_b32 s10, s9, 2")
        g("s_lshl_b32 s10, s10, 7")
        g("s_and_b32 s11, s9, 1")
        g("s_lshl_b32 s11, s11, 3")
        g("s_add_u32 s10, s10, s11")
        g("s_and_b32 s11, s9, 2")
        g("s_lshl_b32 s11, s11, 1")
        g("v_xor_b32 v5, v4, v3")
        g("v_xor_b32 v5, s11, v5")
        g("v_lshl_add_u32 v5, v5, 4, v6")
        g(f"v_add_u32 v{VH+c}, s10, v5")
    steps = [("w1", k) for k in range(18)] + [("w2", k) for k in range(18)]
    if not noattn:
        steps += [("wo", k) for k in range(3)]
    NS = len(steps)

    def dma_ops(gs):
        kind, kk = steps[gs]
        st = gs & 1
        if kind == "w1":
            srd, vo, sb, inc = M.SRD_W1, VO1, S_O1, kk * 32 * 9216
        elif kind == "w2":
            srd, vo, sb, inc = M.SRD_W2, VO2, S_O2, kk * 32 * 1152
        else:
            srd, vo, sb, inc = M.SRD_WO, VO2, S_O3, kk * 32 * 1152
        ops = []
        for j in range(9):
            pre = []
            if j == 0:
                pre.append(f"s_add_u32 s88, s{sb}, {inc}")
            if j % 4 == 0:
                pre.append(f"s_add_u32 m0, s{S_WR}, {st*9216 + (j//4)*4096}")
                pre.append("s_nop 0")
            ops.append(pre + [f"buffer_load_dwordx4 v{vo+j}, {sr(srd)}, s88 offen offset:{(j%4)*1024} lds"])
        return ops
    return dma_ops(0) + dma_ops(1)


def ffn(g, opts, M):
    vr, sr = M.vr, M.sr
    S_RB, S_FS, S_WV, S_W4 = M.S_RB, M.S_FS, M.S_WV, M.S_W4
    ACC = lambda ct, rt: 16 + (ct * 4 + rt) * 4
    AB = [160, 172]
    BB = [184, 200]
    VO1, VO2 = 216, 225
    VBE = [234, 235]
    VTA, VBO, VFL, VFW = 236, 237, 238, 239
    VH = 240
    VT = 244
    S_WR, S_O1, S_O2, S_O3 = 84, 85, 86, 87
    noattn = opts.get("noattn")
    g(f"s_waitcnt vmcnt({18 + opts['npf']})")
    for ct in range(9):
        a, b = ACC(ct, 0), 160 + 2 * ct
        g(f"v_lshlrev_b32 v{a}, 16, v{b}")
        g(f"v_and_b32 v{a+1}, 0xffff0000, v{b}")
        g(f"v_lshlrev_b32 v{a+2}, 16, v{b+1}")
        g(f"v_and_b32 v{a+3}, 0xffff0000, v{b+1}")
    M.stamp(g, opts, 3)
    if opts.get("noffn"):
        return

    steps = [("w1", k) for k in range(18)] + [("w2", k) for k in range(18)]
    if not noattn:
        steps += [("wo", k) for k in range(3)]
    NS = len(steps)

    def dma_ops(gs):
        kind, kk = steps[gs]
        st = gs & 1
        if kind == "w1":
            srd, vo, sb, inc = M.SRD_W1, VO1, S_O1, kk * 32 * 9216
        elif kind == "w2":
            srd, vo, sb, inc = M.SRD_W2, VO2, S_O2, kk * 32 * 1152
        else:
            srd, vo, sb, inc = M.SRD_WO, VO2, S_O3, kk * 32 * 1152
        ops = []
        for j in range(9):
            pre = []
            if j == 0:
                pre.append(f"s_add_u32 s88, s{sb}, {inc}")
            if j % 4 == 0:
                pre.append(f"s_add_u32 m0, s{S_WR}, {st*9216 + (j//4)*4096}")
                pre.append("s_nop 0")
            ops.append(pre + [f"buffer_load_dwordx4 v{vo+j}, {sr(srd)}, s88 offen offset:{(j%4)*1024} lds"])
        return ops
    def tr_ops(gs, c):
        st = gs & 1
        ab = AB[(3 * gs + c) & 1]
        ops = []
        for i in range(3):
            ct = 3 * c + i
            for jh in range(2):
                ops.append([f"ds_read_b64_tr_b16 {vr(ab+i*4+jh*2,2)}, v{VTA} offset:{st*9216 + ct*32 + jh*4608}"])
        return ops
    def b_ops(gs):
        kind, kk = steps[gs]
        bb = BB[gs & 1]
        ops = []
        for rt in range(4):
            if kind == "wo":
                ops.append([f"ds_read_b128 {vr(bb+rt*4,4)}, v{VBO} offset:{rt*16*M.OSTR + kk*64}"])
            else:
                ops.append([f"ds_read_b128 {vr(bb+rt*4,4)}, v{VBE[kk&1]} offset:{M.XH + rt*18432 + (kk>>1)*128}"])
        return ops
    def emit(ops):
        for o in ops:
            for l in o:
                g(l)

    def part_store(c):
        ops = []
        for ct in range(3 * c, 3 * c + 3):
            for u in range(2):
                b = ACC(ct, 2 * u)
                tp = ct * 2 + u
                o = [f"v_cvt_pk_bf16_f32 v{b+d}, v{b+2*d}, v{b+2*d+1}" for d in range(4)]
                if tp % 4 == 0 and tp:
                    o.append("s_add_u32 s9, s9, 4096")
                o.append(f"buffer_store_dwordx4 {vr(b,4)}, v2, {sr(M.SRD_WS)}, s9 offen offset:{(tp%4)*1024} sc1")
                ops.append(o)
        return ops
    emit(b_ops(0))
    npf = opts["npf"]
    g(f"s_waitcnt vmcnt({9 + npf})")
    emit(tr_ops(0, 0))
    deferred = []
    for gs in range(NS):
        kind, kk = steps[gs]
        g.c(f"---- step {gs} {kind} {kk}")
        if gs == 1: M.stamp(g, opts, 4)
        if not opts.get("fst"):
            if gs == 5: M.stamp(g, opts, 10)
            if gs == 9: M.stamp(g, opts, 11)
            if gs == 13: M.stamp(g, opts, 12)
        first = (kk == 0 and kind in ("w1", "w2"))
        bpre = gs + 1 < NS and not (steps[gs + 1][1] == 0 and steps[gs + 1][0] in ("w2", "wo"))
        for c in range(3):
            fill = []
            if c == 2 and bpre:
                g("s_waitcnt lgkmcnt(4)")
            else:
                g("s_waitcnt lgkmcnt(0)")
            if c < 2:
                fill += tr_ops(gs, c + 1)
                if c == 1 and bpre:
                    fill += b_ops(gs + 1)
                if c == 0 and gs == 2 and not opts.get("nopf"):
                    fill += [[f"s_min_u32 s9, s{S_W4}, 2", "s_mul_i32 s9, s9, 6912", f"s_mul_i32 s10, s{S_RB}, 20736", "s_add_u32 s9, s9, s10",
                              f"s_mul_i32 s10, s{S_FS}, {576*1152}", "s_add_u32 s9, s9, s10"],
                             [f"v_min_u32 v{VT+2}, 53, v1", f"v_lshlrev_b32 v{VT+2}, 7, v{VT+2}"],
                             [f"buffer_load_dword v{VT+3}, v{VT+2}, {sr(M.SRD_W2)}, s9 offen"]]
                    if opts.get("map2"):
                        fill += [[f"s_xor_b32 s10, s{S_RB}, 16", f"s_sub_u32 s10, s10, s{S_RB}", "s_mul_i32 s10, s10, 20736", "s_add_u32 s9, s9, s10",
                                  f"buffer_load_dword v{VT+3}, v{VT+2}, {sr(M.SRD_W2)}, s9 offen"]]
                if c == 0 and kind == "w1" and kk == 17:
                    fill += [[f"v_mov_b32 v{VT}, 1", f"ds_write_b32 v{VFW}, v{VT}"]]
            else:
                if gs + 1 < NS:
                    g(f"s_waitcnt vmcnt({1 if (gs == 2 and not opts.get('nopf') and opts.get('dspread', 9) == 9) else 0})")
                    fill += tr_ops(gs + 1, 0)
                if gs + 2 < NS:
                    d = dma_ops(gs + 2)
                    nsp = opts.get("dspread", 9)
                    fill += d[:nsp]
                    deferred = d[nsp:]
            if c == 0 and deferred:
                fill += deferred
                deferred = []
            if gs == NS - 1:
                if c == 0:
                    fill += [[f"s_lshl_b32 s9, s{S_RB}, 3", f"s_add_u32 s9, s9, s{S_FS}", "s_mul_i32 s9, s9, 73728"],
                             [f"s_mul_i32 s10, s{S_W4}, 18432", "s_add_u32 s9, s9, s10", f"s_add_u32 s9, s9, {M.WS_PART}"],
                             ["v_lshlrev_b32 v2, 4, v1"]]
                else:
                    fill = [["s_nop 1"]] * 2 + fill + part_store(c - 1)
            ab = AB[(3 * gs + c) & 1]
            bb = BB[gs & 1]
            mf = []
            for i in range(3):
                ct = 3 * c + i
                order = (1, 2, 3, 0) if (first and kind == "w1") else (0, 1, 2, 3)
                for rt in order:
                    if first and kind == "w1":
                        cc = vr(ACC(ct, 0), 4)
                    elif first:
                        cc = "0"
                    else:
                        cc = vr(ACC(ct, rt), 4)
                    mf.append(f"v_mfma_f32_16x16x32_bf16 {vr(ACC(ct,rt),4)}, {vr(ab+i*4,4)}, {vr(bb+rt*4,4)}, {cc}")
            nf = len(fill)
            fi = 0
            for mi, m in enumerate(mf):
                g(m)
                want = ((mi + 1) * nf + 11) // 12
                while fi < want:
                    for l in fill[fi]:
                        g(l)
                    fi += 1
        if kind == "w1" and kk == 17:
            g.c("---- GEMM1 epilogue")
            M.stamp(g, opts, 5)
            M.flag_wait(g, VFL, VT, 1, "fx1")
            g(f"v_subrev_u32 v{VT+1}, {M.F_X - M.F_KV}, v{VFL}")
            if not noattn:
                M.flag_wait(g, VT + 1, VT, 2, "fxa")
            g(f"s_setprio {opts.get('eprio', 3)}")
            for ct in range(9):
                for rt in range(4):
                    a = ACC(ct, rt)
                    for r in range(4):
                        g(f"v_max_f32 v{a+r}, 0, v{a+r}")
                    g(f"v_pk_mul_f32 {vr(a,2)}, {vr(a,2)}, {vr(a,2)}")
                    g(f"v_pk_mul_f32 {vr(a+2,2)}, {vr(a+2,2)}, {vr(a+2,2)}")
                    g(f"v_cvt_pk_bf16_f32 v{a}, v{a}, v{a+1}")
                    g(f"v_cvt_pk_bf16_f32 v{a+1}, v{a+2}, v{a+3}")
                    g(f"ds_write_b64 v{VH + (ct & 3)}, {vr(a,2)} offset:{M.XH + rt*18432 + (ct>>2)*128}")
            g("s_waitcnt lgkmcnt(0)")
            g(f"v_mov_b32 v{VT}, 2")
            g(f"ds_write_b32 v{VFW}, v{VT}")
            g("s_setprio 0")
            M.flag_wait(g, VFL, VT, 2, "fx2")
            M.stamp(g, opts, 6)
            emit(b_ops(gs + 1))
        if kind == "w2" and kk == 17 and not noattn:
            g.c("---- wait for O")
            M.stamp(g, opts, 7)
            g(f"v_add_u32 v{VFL}, {M.F_O - M.F_X}, v{VFL}")
            M.flag_wait(g, VFL, VT, 1, "fo")
            M.stamp(g, opts, 8)
            emit(b_ops(gs + 1))
    g.c("---- GEMM2 epilogue: partial store")
    M.stamp(g, opts, 9)
    g("s_nop 7")
    emit(part_store(2))
    g(f"s_lshl_b32 s9, s{S_RB}, 2")
    g(f"s_add_u32 s9, s9, s{S_W4}")
    g("s_lshl_b32 s9, s9, 7")
    g(f"s_lshl_b32 s10, s{S_FS}, 2")
    g("s_add_u32 s9, s9, s10")
    g(f"s_add_u32 s9, s9, {M.WS_FLAG}")
    g("v_mov_b32 v7, 1")
    g("v_mov_b32 v10, 0")
    g(f"s_lshl_b32 s10, s{S_W4}, 2")
    g(f"s_add_u32 s10, s10, {M.F_R}")
    g("v_mov_b32 v6, s10")
    g("ds_write_b32 v6, v7")
    g("s_waitcnt vmcnt(0)")
    M.stamp(g, opts, 10)
    g("s_mov_b64 exec, 1")
    g(f"buffer_store_dword v7, v10, {sr(M.SRD_WS)}, s9 offen sc1")
    g("s_mov_b64 exec, -1")
    g("s_waitcnt vmcnt(0)")
```

```python
import sys, struct, math

KN = "parallel_sum__grouped_kv_mqa__dense_activation_squared_relu__prompt"

XH = 0
WR = 73728
KVR = 147456
OREG = 147456
OSTR = 224
FLAGS = 163712
LDS_SIZE = 163840
QST = 73728
F_KV = FLAGS
F_X = FLAGS + 16
F_O = FLAGS + 32
F_G = FLAGS + 48
F_P = FLAGS + 64
F_A = FLAGS + 112
F_R = FLAGS + 80
TILE_B = 2432
VH_B = 640
VG_B = 320
VSCR = 160768
PQ_B = 3584
CHUNK_B = 2 * TILE_B
WS_KV = 0
WS_FLAG = 512 << 10
WS_PART = 1 << 20
WS_DBG = 24 << 20
WS_SIZE = 32 << 20

def f32bits(x):
    return struct.unpack("<I", struct.pack("<f", x))[0]

CSCALE = math.log2(math.e) / math.sqrt(18.0)
HEAD = 72
LTHR = 2.0 ** 28


class G:
    def __init__(s):
        s.lines = []
        s.uid = 0
    def __call__(s, t):
        s.lines.append("    " + t)
    def label(s, l):
        s.lines.append(l + ":")
    def c(s, t):
        s.lines.append("    ; " + t)
    def new(s, p):
        s.uid += 1
        return f"L_{p}_{s.uid}"
    def text(s):
        return "\n".join(s.lines)


def vr(a, n):
    return f"v[{a}:{a+n-1}]"

S_RB, S_FS, S_WV, S_W4 = 4, 5, 6, 7
P_X, P_WQ, P_WK, P_WV, P_WO, P_BX, P_W1, P_B1, P_W2, P_B2, P_OUT, P_DBG, P_WS = [16 + 2 * i for i in range(13)]
SRD_X, SRD_WQ, SRD_W1, SRD_W2, SRD_WO, SRD_B1, SRD_WS, SRD_WK, SRD_WVV = 44, 48, 52, 56, 60, 64, 68, 72, 76
SRD_DBG = 12
S_SH = 3
S_LO = 80
S_HI = 82


def srd(g, d, p, nbytes):
    g(f"s_mov_b32 s{d}, s{p}")
    g(f"s_and_b32 s{d+1}, s{p+1}, 0xffff")
    g(f"s_mov_b32 s{d+2}, {nbytes}")
    g(f"s_mov_b32 s{d+3}, 0x00020000")

def sr(d):
    return f"s[{d}:{d+3}]"


def flag_wait(g, vaddr, vtmp, thr, name):
    L = g.new(name)
    Ld = g.new(name + "d")
    g.label(L)
    g(f"ds_read_b32 v{vtmp}, v{vaddr}")
    g("s_waitcnt lgkmcnt(0)")
    g(f"v_cmp_gt_u32 vcc, {thr}, v{vtmp}")
    g("s_nop 4")
    g(f"s_cbranch_vccz {Ld}")
    g("s_sleep 1")
    g(f"s_branch {L}")
    g.label(Ld)


def stamp(g, opts, idx):
    if not opts.get("stamp"):
        return
    g("s_memrealtime s[96:97]")
    g("s_waitcnt lgkmcnt(0)")
    g(f"v_writelane_b32 v254, s96, {idx}")


def cstamp(g, opts, idx):
    if not opts.get("stamp"):
        return
    g("s_memtime s[96:97]")
    g("s_waitcnt lgkmcnt(0)")
    g(f"v_writelane_b32 v254, s96, {idx}")


def stamp_flush(g, opts):
    if not opts.get("stamp"):
        return
    stamp(g, opts, 15)
    g("s_memtime s[96:97]")
    g("s_waitcnt lgkmcnt(0)")
    g(f"v_writelane_b32 v254, s96, 14")
    base = WS_DBG + (1 << 20) + (0 if opts["tag"] == "K" else (1 << 18))
    g("s_lshl_b32 s98, s2, 3")
    g(f"s_add_u32 s98, s98, s{S_WV}")
    g("s_lshl_b32 s98, s98, 6")
    g(f"s_add_u32 s98, s98, {base}")
    g("v_lshlrev_b32 v253, 2, v1")
    g("s_mov_b64 exec, 0xffff")
    g(f"buffer_store_dword v254, v253, {sr(SRD_WS)}, s98 offen")
    g("s_mov_b64 exec, -1")
    g("s_waitcnt vmcnt(0)")
    if opts.get("dbgt"):
        Lx = g.new("dbgt")
        g("s_cmp_lg_u32 s2, 8")
        g(f"s_cbranch_scc1 {Lx}")
        g(f"s_cmp_lg_u32 s{S_WV}, 4")
        g(f"s_cbranch_scc1 {Lx}")
        srd(g, SRD_DBG, P_DBG, 256)
        g("v_readlane_b32 s96, v254, 0")
        g("s_nop 3")
        g("v_subrev_u32 v254, s96, v254")
        g("s_mov_b64 exec, 0x8ee8")
        g(f"buffer_store_dword v254, v253, {sr(SRD_DBG)}, 0 offen")
        g("s_mov_b64 exec, -1")
        g("s_waitcnt vmcnt(0)")
        g.label(Lx)


def head(g, opts):
    g("s_cmp_ge_u32 s2, 256")
    g("s_cbranch_scc1 L_end")
    if opts.get("stamp"):
        g("v_mov_b32 v254, 0")
    stamp(g, opts, 0)
    cstamp(g, opts, 13)
    g("s_load_dwordx16 s[16:31], s[0:1], 0")
    g("s_load_dwordx8 s[32:39], s[0:1], 64")
    g("s_load_dwordx2 s[40:41], s[0:1], 96")
    g("v_and_b32 v1, 63, v0")
    g("v_lshrrev_b32 v2, 6, v0")
    if opts.get("map2"):
        g("s_lshr_b32 s8, s2, 3")
        g("s_and_b32 s9, s2, 3")
        g("s_lshl_b32 s9, s9, 1")
        g("s_and_b32 s10, s8, 1")
        g(f"s_add_u32 s{S_FS}, s9, s10")
        g("s_bfe_u32 s9, s2, 0x10002")
        g("s_lshl_b32 s9, s9, 4")
        g("s_lshr_b32 s10, s8, 1")
        g(f"s_add_u32 s{S_RB}, s9, s10")
    else:
        g(f"s_lshr_b32 s{S_RB}, s2, 3")
        g(f"s_and_b32 s{S_FS}, s2, 7")
    g(f"v_readfirstlane_b32 s{S_WV}, v2")
    g(f"s_mov_b32 s{S_LO}, -1")
    g(f"s_mov_b32 s{S_LO+1}, 0")
    g(f"s_mov_b32 s{S_HI}, 0")
    g(f"s_mov_b32 s{S_HI+1}, -1")
    g(f"s_and_b32 s{S_W4}, s{S_WV}, 3")
    if opts.get("map2"):
        g(f"s_mov_b32 s{S_SH}, s{S_RB}")
    else:
        g(f"s_mov_b32 s{S_SH}, s{S_RB}")
    g("s_waitcnt lgkmcnt(0)")
    srd(g, SRD_X, P_X, 2359296)
    srd(g, SRD_WS, P_WS, WS_SIZE)


def touch_w1(g, opts):
    if opts.get("nopf"):
        return
    g("v_min_u32 v5, 53, v1")
    g("v_mul_u32_u24 v6, 7282, v5")
    g("v_lshrrev_b32 v6, 16, v6")
    g("v_mul_u32_u24 v7, 9, v6")
    g("v_sub_u32 v7, v5, v7")
    g(f"s_mov_b32 s10, {32*9216}")
    g("v_mul_lo_u32 v6, v6, s10")
    g("v_lshl_add_u32 v5, v7, 7, v6")
    g(f"s_min_u32 s9, s{S_W4}, 2")
    g("s_mul_i32 s9, s9, 192")
    g(f"s_add_u32 s9, s9, s{S_RB}")
    g("s_mul_i32 s9, s9, 9216")
    g(f"s_mul_i32 s10, s{S_FS}, 1152")
    g("s_add_u32 s9, s9, s10")
    g(f"buffer_load_dword v251, v5, {sr(SRD_W1)}, s9 offen")
    if opts.get("map2"):
        g(f"s_xor_b32 s11, s{S_RB}, 16")
        g(f"s_sub_u32 s11, s11, s{S_RB}")
        g("s_mul_i32 s11, s11, 9216")
        g("s_add_u32 s9, s9, s11")
        g(f"buffer_load_dword v251, v5, {sr(SRD_W1)}, s9 offen")


def touches(g, opts):
    if opts.get("nopf"):
        return
    L1, Ld = g.new("tc"), g.new("tcd")
    if opts.get("map2"):
        g(f"s_lshr_b32 s{S_SH}, s{S_W4}, 1")
        g(f"s_lshl_b32 s{S_SH}, s{S_SH}, 4")
        g(f"s_xor_b32 s{S_SH}, s{S_SH}, s{S_RB}")
    else:
        g(f"s_cmp_ge_u32 s{S_W4}, 2")
        g(f"s_cbranch_scc1 {Ld}")
    g(f"s_bitcmp1_b32 s{S_W4}, 0")
    g(f"s_cbranch_scc1 {L1}")
    srd(g, SRD_WQ, P_WQ, 663552)
    g("v_min_u32 v5, 53, v1")
    g("v_mul_u32_u24 v6, 21846, v5")
    g("v_lshrrev_b32 v6, 16, v6")
    g("v_mul_u32_u24 v7, 3, v6")
    g("v_sub_u32 v7, v5, v7")
    g("v_mul_u32_u24 v6, 1152, v6")
    g("v_lshl_add_u32 v6, v7, 6, v6")
    g(f"s_mul_i32 s9, s{S_SH}, {18*1152}")
    g(f"s_mul_i32 s10, s{S_FS}, 144")
    g("s_add_u32 s9, s9, s10")
    g(f"buffer_load_dword v252, v6, {sr(SRD_WQ)}, s9 offen offset:12")
    g(f"s_branch {Ld}")
    g.label(L1)
    srd(g, SRD_WO, P_WO, 663552)
    g("v_min_u32 v6, 26, v1")
    g("v_lshlrev_b32 v6, 7, v6")
    g(f"s_mul_i32 s9, s{S_FS}, {72*1152}")
    g(f"s_mul_i32 s10, s{S_SH}, 3456")
    g("s_add_u32 s9, s9, s10")
    g(f"buffer_load_dword v252, v6, {sr(SRD_WO)}, s9 offen")
    g.label(Ld)


def ln_load(g, X, srow):
    g(f"s_lshl_b32 s8, s{S_RB}, 6")
    g(f"s_add_u32 s8, s8, s{srow}")
    g("s_mul_i32 s8, s8, 1152")
    for i in range(9):
        g(f"buffer_load_dwordx4 {vr(X+4*i,4)}, v4, {sr(SRD_X)}, s8 offen offset:{i*128}")


def ln_addr(g, A, srow):
    g(f"v_add_u32 v5, s{srow}, v2")
    g("v_bfe_u32 v6, v5, 1, 3")
    g("v_lshrrev_b32 v7, 2, v3")
    g("v_lshlrev_b32 v7, 2, v7")
    g(f"v_and_b32 v{A}, 1, v3")
    g(f"v_lshl_add_u32 v7, v{A}, 1, v7")
    g("v_xor_b32 v7, v7, v6")
    g(f"v_mul_u32_u24 v{A}, 1152, v5")
    g(f"v_lshl_add_u32 v{A}, v7, 4, v{A}")
    g("v_bfe_u32 v7, v3, 1, 1")
    g(f"v_lshl_add_u32 v{A}, v7, 3, v{A}")
    g(f"v_xor_b32 v{A+1}, 16, v{A}")


def ln_compute(g, X):
    for r in range(52, 56):
        g(f"v_mov_b32 v{r}, 0")
    g("s_mov_b32 s9, 0x3f803f80")
    for n in range(36):
        g(f"v_dot2c_f32_bf16 v{52 + (n&1)}, s9, v{X+n}")
        g(f"v_dot2c_f32_bf16 v{54 + (n&1)}, v{X+n}, v{X+n}")
    g("s_nop 3")
    g("v_add_f32 v52, v52, v53")
    g("v_add_f32 v54, v54, v55")
    for pat in ("quad_perm:[1,0,3,2]", "quad_perm:[2,3,0,1]", "row_half_mirror"):
        g("s_nop 1")
        g(f"v_add_f32_dpp v52, v52, v52 {pat} row_mask:0xf bank_mask:0xf")
        g(f"v_add_f32_dpp v54, v54, v54 {pat} row_mask:0xf bank_mask:0xf")
    g(f"s_mov_b32 s9, {f32bits(1.0/576.0)}")
    g("v_mul_f32 v52, s9, v52")
    g("v_mul_f32 v54, s9, v54")
    g("v_fma_f32 v54, -v52, v52, v54")
    g("v_max_f32 v54, 0, v54")
    g(f"v_add_f32 v54, {f32bits(1e-5)}, v54")
    g("v_rsq_f32 v56, v54")
    g("s_nop 0")
    g("v_mov_b32 v57, v56")
    g("v_mul_f32 v58, v52, v56")
    g("v_sub_f32 v58, 0, v58")
    g("v_mov_b32 v59, v58")
    for n in range(36):
        t = 60 + 2 * (n % 4)
        g(f"v_lshlrev_b32 v{t}, 16, v{X+n}")
        g(f"v_and_b32 v{t+1}, 0xffff0000, v{X+n}")
        g(f"v_pk_fma_f32 {vr(t,2)}, {vr(t,2)}, v[56:57], v[58:59]")
        g(f"v_cvt_pk_bf16_f32 v{X+n}, v{t}, v{t+1}")


def ln_write(g, X, A):
    for i in range(9):
        g(f"ds_write_b64 v{A}, {vr(X+4*i,2)} offset:{i*128}")
        g(f"ds_write_b64 v{A+1}, {vr(X+2+4*i,2)} offset:{i*128}")


def ln_lane_setup(g):
    g("v_lshrrev_b32 v2, 3, v1")
    g("v_and_b32 v3, 7, v1")
    g("v_mul_u32_u24 v4, 1152, v2")
    g("v_lshl_add_u32 v4, v3, 4, v4")


def a_layernorm(g, opts):
    XS = [8, 68]
    ln_lane_setup(g)
    g(f"s_lshl_b32 s11, s{S_W4}, 4")
    g("s_add_u32 s12, s11, 8")
    g("v_and_b32 v48, 3, v1")
    g("v_lshlrev_b32 v48, 2, v48")
    g(f"v_add_u32 v48, {F_P}, v48")
    Lsk = g.new("lnskip")
    g(f"s_lshr_b32 s9, s{S_FS}, 1")
    g(f"s_cmp_eq_u32 s9, s{S_W4}")
    g(f"s_cbranch_scc1 {Lsk}")
    if opts.get("asleep"):
        g(f"s_sleep {opts['asleep']}")
    ln_load(g, XS[0], 11)
    ln_load(g, XS[1], 12)
    ln_addr(g, 44, 11)
    ln_addr(g, 46, 12)
    g("s_waitcnt vmcnt(9)")
    stamp(g, opts, 1)
    ln_compute(g, XS[0])
    g("s_waitcnt vmcnt(0)")
    ln_compute(g, XS[1])
    flag_wait(g, 48, 49, 2, "kvw")
    ln_write(g, XS[0], 44)
    ln_write(g, XS[1], 46)
    g.label(Lsk)
    flag_wait(g, 48, 49, 2, "kvw2")
    g(f"s_lshl_b32 s9, s{S_W4}, 2")
    g(f"s_add_u32 s9, s9, {F_A}")
    g("v_mov_b32 v50, s9")
    g("v_mov_b32 v51, 1")
    g("s_waitcnt lgkmcnt(0)")
    g("ds_write_b32 v50, v51")
    stamp(g, opts, 9)
    g("v_and_b32 v50, 1, v1")
    g("v_lshlrev_b32 v50, 2, v50")
    g(f"v_add_u32 v50, {F_P + 8}, v50")
    flag_wait(g, 50, 49, 4, "qst")
    g(f"v_add_u32 v48, {F_A - F_P}, v48")
    flag_wait(g, 48, 49, 1, "xn")
    stamp(g, opts, 2)


def f_kv(g, opts):
    aux = " sc1"
    ln_lane_setup(g)
    g(f"s_lshr_b32 s13, s{S_FS}, 1")
    g("s_lshl_b32 s11, s13, 4")
    g(f"s_lshl_b32 s12, s{S_W4}, 3")
    g("s_add_u32 s11, s11, s12")
    ln_load(g, 8, 11)
    ln_addr(g, 44, 11)
    g("v_and_b32 v48, 3, v1")
    g("v_lshlrev_b32 v48, 2, v48")
    g(f"v_add_u32 v48, {F_P}, v48")
    g(f"s_lshl_b32 s9, s{S_W4}, 2")
    g(f"s_add_u32 s9, s9, {F_P}")
    g("v_mov_b32 v47, s9")
    g("v_and_b32 v5, 15, v1")
    g("v_lshrrev_b32 v6, 4, v1")
    g("v_bfe_u32 v7, v5, 1, 3")
    g("v_xor_b32 v7, v7, v6")
    g("v_mul_u32_u24 v70, 1152, v5")
    g("s_mul_i32 s9, s13, 18432")
    g("v_add_u32 v70, s9, v70")
    g("v_xor_b32 v71, 4, v7")
    g("v_lshl_add_u32 v71, v71, 4, v70")
    g("v_lshl_add_u32 v70, v7, 4, v70")
    g("v_lshrrev_b32 v7, 2, v1")
    g("v_mul_u32_u24 v72, 48, v7")
    g("v_and_b32 v7, 3, v1")
    g("v_lshlrev_b32 v7, 3, v7")
    g(f"s_cmp_lg_u32 s{S_W4}, 0")
    g("s_cselect_b64 vcc, -1, 0")
    g("v_cndmask_b32 v7, v7, 40, vcc")
    g("v_add_u32 v72, v72, v7")
    g("s_cmp_lt_u32 s13, 2")
    g("s_cselect_b32 s9, 36864, 0")
    g("v_add_u32 v72, s9, v72")
    g("s_waitcnt vmcnt(0)")
    stamp(g, opts, 10)
    ln_compute(g, 8)
    ln_write(g, 8, 44)
    g("v_mov_b32 v46, 1")
    g("s_waitcnt lgkmcnt(0)")
    g("ds_write_b32 v47, v46")
    flag_wait(g, 48, 49, 1, "kvr")
    def rd(kk):
        b = 80 + 8 * (kk % 3)
        return [f"ds_read_b64_tr_b16 {vr(b,2)}, v72 offset:{kk*1536}",
                f"ds_read_b64_tr_b16 {vr(b+2,2)}, v72 offset:{kk*1536+768}",
                f"ds_read_b128 {vr(b+4,4)}, v{70+(kk&1)} offset:{XH + (kk>>1)*128}"]
    LVv, Lj = g.new("kv_v"), g.new("kv_j")
    g(f"s_bitcmp1_b32 s{S_FS}, 0")
    g(f"s_cbranch_scc1 {LVv}")
    for isv in range(2):
        if isv:
            g.label(LVv)
        for l in rd(0) + rd(1): g(l)
        for kk in range(18):
            if kk + 2 < 18:
                for l in rd(kk + 2): g(l)
                g("s_waitcnt lgkmcnt(6)")
            else:
                g(f"s_waitcnt lgkmcnt({3 if kk == 16 else 0})")
            b = 80 + 8 * (kk % 3)
            A, B = (vr(b+4,4), vr(b,4)) if isv else (vr(b,4), vr(b+4,4))
            g(f"v_mfma_f32_16x16x32_bf16 v[76:79], {A}, {B}, {'0' if kk == 0 else 'v[76:79]'}")
        if not isv:
            g(f"s_branch {Lj}")
    g.label(Lj)
    g("v_mov_b32 v46, 2")
    g("ds_write_b32 v47, v46")
    g(f"s_lshl_b32 s9, s{S_RB}, 1")
    g("s_lshr_b32 s10, s13, 1")
    g("s_add_u32 s9, s9, s10")
    g(f"s_mul_i32 s9, s9, {TILE_B}")
    g(f"s_add_u32 s9, s9, {WS_KV}")
    g("s_and_b32 s12, s13, 1")
    g("s_nop 4")
    g("v_cvt_pk_bf16_f32 v76, v76, v77")
    g("v_cvt_pk_bf16_f32 v77, v78, v79")
    Lc = [g.new("kvp") for _ in range(4)]
    g(f"s_bitcmp1_b32 s{S_FS}, 0")
    g(f"s_cbranch_scc1 {Lc[1]}")
    g("s_lshl_b32 s10, s12, 4")
    g("v_add_u32 v7, s10, v5")
    g(f"s_cmp_lg_u32 s{S_W4}, 0")
    g(f"s_cbranch_scc1 {Lc[0]}")
    g("v_lshrrev_b32 v2, 1, v6")
    g("v_lshl_add_u32 v7, v2, 5, v7")
    g("v_lshlrev_b32 v7, 4, v7")
    g("v_and_b32 v2, 1, v6")
    g("v_lshl_add_u32 v7, v2, 3, v7")
    g(f"buffer_store_dwordx2 v[76:77], v7, {sr(SRD_WS)}, s9 offen{aux}")
    g(f"s_branch {Lc[3]}")
    g.label(Lc[0])
    g("v_lshlrev_b32 v7, 2, v7")
    g("s_mov_b64 exec, 0xffff")
    g(f"buffer_store_dword v77, v7, {sr(SRD_WS)}, s9 offen offset:1024{aux}")
    g("s_mov_b64 exec, -1")
    g(f"s_branch {Lc[3]}")
    g.label(Lc[1])
    g(f"s_mul_i32 s10, s12, {VH_B}")
    g("s_add_u32 s9, s9, s10")
    g("v_and_b32 v2, 1, v6")
    g(f"v_mul_u32_u24 v7, {VG_B}, v2")
    g("v_lshl_add_u32 v7, v5, 4, v7")
    g("v_lshrrev_b32 v2, 1, v6")
    g("v_lshl_add_u32 v7, v2, 3, v7")
    g(f"s_cmp_lg_u32 s{S_W4}, 0")
    g(f"s_cbranch_scc1 {Lc[2]}")
    g(f"buffer_store_dwordx2 v[76:77], v7, {sr(SRD_WS)}, s9 offen offset:1152{aux}")
    g(f"s_branch {Lc[3]}")
    g.label(Lc[2])
    g("v_mov_b32 v2, 0x3f803f80")
    g("v_cmp_eq_u32 vcc, 4, v5")
    g("s_nop 1")
    g("v_cndmask_b32 v76, v76, v2, vcc")
    g("v_cndmask_b32 v77, v77, v2, vcc")
    g("v_cmp_eq_u32 vcc, 5, v5")
    g("s_nop 1")
    g("v_cndmask_b32 v76, v76, 0, vcc")
    g("v_cndmask_b32 v77, v77, 0, vcc")
    g("s_mov_b32 exec_lo, 0x003c003c")
    g("s_mov_b32 exec_hi, 0x003c003c")
    g(f"buffer_store_dwordx2 v[76:77], v7, {sr(SRD_WS)}, s9 offen offset:{1152+14*16}{aux}")
    g("s_mov_b64 exec, -1")
    g.label(Lc[3])
    if opts.get("fuse"):
        Lz = g.new("kvz")
        g(f"s_and_b32 s9, s{S_FS}, 1")
        g(f"s_add_u32 s9, s9, s{S_W4}")
        g("s_cmp_lg_u32 s9, 0")
        g(f"s_cbranch_scc1 {Lz}")
        g(f"s_lshl_b32 s9, s{S_RB}, 2")
        g(f"s_lshr_b32 s10, s{S_FS}, 1")
        g("s_add_u32 s9, s9, s10")
        g("s_lshl_b32 s9, s9, 7")
        g(f"s_add_u32 s9, s9, {WS_FLAG}")
        g("v_mov_b32 v2, 0")
        g("v_lshlrev_b32 v3, 2, v1")
        g("s_mov_b64 exec, 0xff")
        g(f"buffer_store_dword v2, v3, {sr(SRD_WS)}, s9 offen sc1")
        g("s_mov_b64 exec, -1")
        g.label(Lz)
    g("s_waitcnt vmcnt(0)")
    stamp(g, opts, 11)
    Lw1, Lad = g.new("arr1"), g.new("arrd")
    g(f"s_cmp_lg_u32 s{S_W4}, 0")
    g(f"s_cbranch_scc1 {Lw1}")
    g(f"v_mov_b32 v48, {F_P + 4}")
    flag_wait(g, 48, 49, 3, "arr")
    srd(g, SRD_DBG, P_DBG, 256)
    NSHD = opts.get("shards", 8)
    g(f"s_and_b32 s9, s2, {NSHD-1}")
    g(f"s_mul_i32 s9, s9, {128 // NSHD if NSHD > 1 else 0}")
    g("v_mov_b32 v3, s9")
    g("v_mov_b32 v4, 1")
    g("s_mov_b64 exec, 1")
    g(f"buffer_atomic_add v4, v3, {sr(SRD_DBG)}, 0 offen sc0 sc1")
    g("s_waitcnt vmcnt(0)")
    g("v_readfirstlane_b32 s9, v4")
    g(f"s_cmp_lg_u32 s9, {256 // NSHD - 1}")
    g(f"s_cbranch_scc1 {Lad}")
    g("v_mov_b32 v4, 1")
    g("v_mov_b32 v3, 0")
    if NSHD > 1:
        g(f"buffer_atomic_add v4, v3, {sr(SRD_DBG)}, 0 offen offset:4 sc0 sc1")
        g("s_waitcnt vmcnt(0)")
        g("v_readfirstlane_b32 s9, v4")
        g(f"s_cmp_lg_u32 s9, {NSHD - 1}")
        g(f"s_cbranch_scc1 {Lad}")
        g("v_mov_b32 v4, 1")
    g(f"buffer_store_dword v4, v3, {sr(SRD_DBG)}, 0 offen offset:128 sc1")
    g(f"s_branch {Lad}")
    g.label(Lw1)
    g("v_mov_b32 v46, 3")
    g("ds_write_b32 v47, v46")
    g.label(Lad)
    g("s_mov_b64 exec, -1")


def f_poll_go(g, opts):
    Ln = g.new("gsn")
    g(f"s_cmp_lg_u32 s{S_W4}, 1")
    g(f"s_cbranch_scc1 {Ln}")
    srd(g, SRD_DBG, P_DBG, 256)
    g("v_mov_b32 v3, 0")
    g("v_mov_b32 v4, 1")
    Lp, Ld = g.new("gpoll"), g.new("gpolld")
    g.label(Lp)
    g(f"buffer_load_dword v5, v3, {sr(SRD_DBG)}, 0 offen offset:128 sc1")
    g("s_waitcnt vmcnt(0)")
    g("v_cmp_ne_u32 vcc, 1, v5")
    g("s_nop 4")
    g(f"s_cbranch_vccz {Ld}")
    g(f"s_sleep {opts.get('psleep', 4)}")
    g(f"s_branch {Lp}")
    g.label(Ld)
    g(f"v_mov_b32 v2, {F_G}")
    g("ds_write_b32 v2, v4")
    if not opts.get("nopf"):
        g("s_lshr_b32 s9, s2, 3")
        g(f"s_mul_i32 s9, s9, {CHUNK_B}")
        g(f"s_add_u32 s9, s9, {WS_KV}")
        g("v_min_u32 v5, 38, v1")
        g("v_lshlrev_b32 v5, 7, v5")
        g(f"buffer_load_dword v250, v5, {sr(SRD_WS)}, s9 offen sc1")
    g.label(Ln)


def f_stage(g, opts):
    g(f"s_bitcmp1_b32 s{S_FS}, 0")
    g(f"s_cselect_b32 s{SRD_WK}, s{P_WV}, s{P_WK}")
    g(f"s_cselect_b32 s{SRD_WK+1}, s{P_WV+1}, s{P_WK+1}")
    g(f"s_and_b32 s{SRD_WK+1}, s{SRD_WK+1}, 0xffff")
    g(f"s_mov_b32 s{SRD_WK+2}, 20736")
    g(f"s_mov_b32 s{SRD_WK+3}, 0x00020000")
    for j in range(3):
        g(f"v_add_u32 v5, {64*j}, v1")
        g("v_mul_u32_u24 v6, 21846, v5")
        g("v_lshrrev_b32 v6, 16, v6")
        g("v_mul_u32_u24 v7, 3, v6")
        g("v_sub_u32 v7, v5, v7")
        g("v_lshlrev_b32 v7, 4, v7")
        g("v_min_u32 v7, 20, v7")
        g(f"v_mad_u32_u24 v{44+j}, v6, 36, v7")
    g(f"s_lshr_b32 s13, s{S_FS}, 1")
    g("s_cmp_lt_u32 s13, 2")
    g("s_cselect_b32 s12, 36864, 0")
    g(f"s_and_b32 s11, s{S_W4}, 1")
    for n in range(5):
        Ls = g.new("kws")
        if n == 4:
            g("s_cmp_lg_u32 s11, 0")
            g(f"s_cbranch_scc1 {Ls}")
        g(f"s_add_u32 s14, s11, {2*n}")
        g(f"s_mul_i32 s9, s14, {64*36}")
        g("s_mul_i32 s10, s14, 3072")
        g("s_add_u32 s10, s10, s12")
        for j in range(3):
            g(f"s_add_u32 m0, s10, {j*1024}")
            g("s_nop 0")
            g(f"buffer_load_dwordx4 v{44+j}, {sr(SRD_WK)}, s9 offen lds")
        g.label(Ls)
    for j in range(9):
        g(f"v_add_u32 v5, {64*j}, v1")
        g("v_mul_u32_u24 v6, 7282, v5")
        g("v_lshrrev_b32 v6, 16, v6")
        g("v_mul_u32_u24 v7, 9, v6")
        g("v_sub_u32 v7, v5, v7")
        g("v_mul_u32_u24 v6, 1152, v6")
        g(f"v_lshl_add_u32 v{50+j}, v7, 4, v6")
        if j % 4:
            g(f"v_subrev_u32 v{50+j}, {(j%4)*1024}, v{50+j}")
    g(f"s_lshl_b32 s9, s{S_W4}, 2")
    g(f"s_add_u32 s9, s9, {F_P}")
    g("v_mov_b32 v47, s9")
    g("v_mov_b32 v46, 2")
    g(f"s_mul_i32 s12, s{S_FS}, 144")
    NE = opts.get("qearly", 0)
    for n in range(5):
        if n == NE:
            g(f"s_waitcnt vmcnt({9*NE})")
            g("ds_write_b32 v47, v46")
            stamp(g, opts, 10)
        Ls = g.new("qs")
        if n == 4:
            g("s_cmp_lg_u32 s11, 0")
            g(f"s_cbranch_scc1 {Ls}")
        g(f"s_add_u32 s14, s11, {2*n}")
        g(f"s_mul_i32 s9, s14, {64*1152}")
        g("s_add_u32 s9, s9, s12")
        g("s_mul_i32 s10, s14, 9216")
        g(f"s_add_u32 s10, s10, {QST}")
        for j in range(9):
            if j % 4 == 0:
                g(f"s_add_u32 m0, s10, {(j//4)*4096}")
                g("s_nop 0")
            g(f"buffer_load_dwordx4 v{50+j}, {sr(SRD_WQ)}, s9 offen offset:{(j%4)*1024} lds")
        g.label(Ls)
    stamp(g, opts, 11)


A_Q1 = [16, 20]
A_Q2 = [24, 28]
A_S = [32, 48]
A_P = [64, 72]
A_O = [80, 96]
def A_KV(st, u):
    return 112 + (st * 2 + u) * 16
A_M = [176, 177]
A_AK1, A_AK2, A_AV = 178, 179, 180
A_AFL, A_FLD, A_FLW = 181, 182, 183
A_DV0, A_DV1 = 184, 185
A_T = 186
A_FV = 200
QW = 128
QX = 236


def q_phase(g, opts):
    QA = [32, 48]
    AB = [112, 120]
    BB = [128, 144]
    def reads(kk):
        b = kk & 1
        off = kk * 4608
        st = 0
        if off >= 65536 - 4608:
            off -= 13 * 4608; st = 1
        L = []
        for m in range(2):
            for jh in range(2):
                L.append(f"ds_read_b64_tr_b16 {vr(AB[b]+m*4+jh*2,2)}, v{Q_VTA+st} offset:{off + (m*8+jh*16)*144}")
            for rt in range(2):
                L.append(f"ds_read_b128 {vr(BB[b]+(rt*2+m)*4,4)}, v{Q_VBA+(kk&1)*2+m} offset:{XH + rt*36864 + (kk>>1)*128}")
        return L
    def mfmas(kk):
        b = kk & 1
        L = []
        for m in range(2):
            for rt in range(2):
                c = "0" if (kk == 0 and m == 0) else vr(QA[rt], 16)
                L.append(f"v_mfma_f32_32x32x16_bf16 {vr(QA[rt],16)}, {vr(AB[b]+m*4,4)}, {vr(BB[b]+(rt*2+m)*4,4)}, {c}")
        return L
    for l in reads(0): g(l)
    for l in reads(1): g(l)
    for kk in range(18):
        g("s_waitcnt lgkmcnt(8)" if kk < 16 else "s_waitcnt lgkmcnt(8)" if kk == 16 else "s_waitcnt lgkmcnt(0)")
        if kk == 15:
            g(f"ds_write_b32 v{A_FLW}, v{A_FV}")
        mf = mfmas(kk)
        rd = reads(kk + 2) if kk + 2 < 18 else []
        g(mf[0]); g(mf[1])
        for l in rd[:2]: g(l)
        g(mf[2])
        for l in rd[2:4]: g(l)
        g(mf[3])
        for l in rd[4:]: g(l)
    g(f"s_mov_b32 s9, {f32bits(CSCALE)}")
    g("s_nop 15")
    for rt in range(2):
        for r in range(16):
            g(f"v_mul_f32 v{QA[rt]+r}, s9, v{QA[rt]+r}")
    Lodd, Lqd = g.new("odd"), g.new("qdone")
    g(f"s_bitcmp1_b32 s{S_W4}, 0")
    g(f"s_cbranch_scc1 {Lodd}")
    for odd in range(2):
        if odd:
            g.label(Lodd)
        for rt in range(2):
            q = QA[rt] + 2 * odd
            for p in range(4):
                g(f"v_cvt_pk_bf16_f32 v{A_Q1[rt]+p}, v{q+2*p}, v{q+2*p+1}")
            t = QA[rt] + (14 if odd else 8)
            g(f"v_cvt_pk_bf16_f32 v{A_T+8}, v{t}, v{t+1}")
            g(f"v_cndmask_b32 v{A_Q2[rt]}, 0, v{A_T+8}, s[{S_LO}:{S_LO+1}]")
        if not odd:
            g(f"s_branch {Lqd}")
    g.label(Lqd)
    for rt in range(2):
        for p in range(1, 4):
            g(f"v_mov_b32 v{A_Q2[rt]+p}, 0")


Q_VBA = 160
Q_VTA = 164
def q_setup(g, opts):
    g("v_and_b32 v2, 31, v1")
    g("v_lshrrev_b32 v3, 5, v1")
    g("v_bfe_u32 v4, v2, 1, 3")
    g("v_xor_b32 v4, v4, v3")
    g("v_mul_u32_u24 v5, 1152, v2")
    for e in range(2):
        for m in range(2):
            g(f"v_xor_b32 v6, {4*e+2*m}, v4")
            g(f"v_lshl_add_u32 v{Q_VBA+e*2+m}, v6, 4, v5")
    g("v_bfe_u32 v4, v1, 2, 2")
    g("v_lshl_add_u32 v4, v3, 2, v4")
    g("v_bfe_u32 v5, v1, 4, 1")
    g("v_and_b32 v6, 3, v1")
    g("v_lshl_add_u32 v5, v5, 2, v6")
    g(f"s_mul_i32 s9, s{S_W4}, 36")
    g(f"s_and_b32 s10, s{S_W4}, 1")
    g("s_lshl_b32 s10, s10, 2")
    g("s_sub_u32 s9, s9, s10")
    g(f"s_add_u32 s9, s9, {QST}")
    tbl_e = sum(v << (4*i) for i, v in enumerate([0,2,1,3,4,4,4,4]))
    tbl_o = sum(v << (4*i) for i, v in enumerate([0,2,1,3,2,4,4,4]))
    g(f"s_mov_b32 s11, {tbl_e}")
    g("s_cmp_lg_u32 s10, 0")
    g(f"s_cselect_b32 s11, {tbl_o}, s11")
    g("v_lshlrev_b32 v5, 2, v5")
    g("v_bfe_u32 v5, s11, v5, 4")
    g("v_lshlrev_b32 v6, 3, v5")
    g("v_add_u32 v6, s9, v6")
    g("v_mul_u32_u24 v4, 144, v4")
    g(f"v_add_u32 v{Q_VTA}, v4, v6")
    g(f"v_add_u32 v{Q_VTA+1}, {13*4608}, v{Q_VTA}")
    g("v_and_b32 v4, 3, v1")
    g("v_lshlrev_b32 v4, 2, v4")
    g(f"v_add_u32 v{A_AFL}, {F_KV}, v4")
    g(f"s_lshl_b32 s9, s{S_W4}, 2")
    g(f"s_add_u32 s9, s9, {F_KV}")
    g(f"v_mov_b32 v{A_FLW}, s9")
    g(f"v_mov_b32 v{A_FV}, 1")


def global_kv_sync(g, opts):
    g(f"v_mov_b32 v2, {F_G}")
    flag_wait(g, 2, A_FLD, 1, "gsb")
    flag_wait(g, A_AFL, A_FLD, 2, "gsa")


def reduce_setup(g, s_ct):
    srd(g, SRD_B1, P_B2, 1152)
    srd(g, SRD_W1, P_OUT, 2359296)
    g("v_lshlrev_b32 v2, 4, v1")
    g(f"s_lshr_b32 s10, s{S_FS}, 1")
    g(f"s_and_b32 s11, s{S_FS}, 1")
    g("s_mul_i32 s12, s10, 288")
    g(f"s_lshl_b32 s9, s{s_ct}, 5")
    g("s_add_u32 s12, s12, s9")
    g("v_lshrrev_b32 v3, 4, v1")
    g("v_lshlrev_b32 v3, 3, v3")
    g("v_add_u32 v3, s12, v3")
    g("v_and_b32 v4, 15, v1")
    g("v_mul_u32_u24 v4, 1152, v4")
    g("v_add_u32 v4, v4, v3")
    g(f"s_lshl_b32 s13, s{S_RB}, 1")
    g("s_add_u32 s13, s13, s11")
    g("s_mul_i32 s13, s13, 36864")
    g("s_add_u32 s14, s13, 18432")


def reduce_xb(g, xb, coff):
    g(f"buffer_load_dwordx2 {vr(xb,2)}, v3, {sr(SRD_B1)}, 0 offen offset:{coff}")
    g(f"buffer_load_dwordx2 {vr(xb+2,2)}, v4, {sr(SRD_X)}, s13 offen offset:{coff}")
    g(f"buffer_load_dwordx2 {vr(xb+4,2)}, v4, {sr(SRD_X)}, s14 offen offset:{coff}")


def reduce_loads(g, s_ct, pb, dct):
    g(f"s_mul_i32 s9, s{S_RB}, 589824")
    g("s_mul_i32 s12, s10, 18")
    g("s_add_u32 s12, s12, s11")
    g(f"s_lshl_b32 s15, s{s_ct}, 1")
    g("s_add_u32 s12, s12, s15")
    g("s_lshl_b32 s12, s12, 10")
    g("s_add_u32 s9, s9, s12")
    g(f"s_add_u32 s9, s9, {WS_PART + dct*2048}")
    for f2 in range(8):
        g(f"buffer_load_dwordx4 {vr(pb+f2*4,4)}, v2, {sr(SRD_WS)}, s9 offen sc1")
        if f2 < 7:
            g("s_add_u32 s9, s9, 73728")


def reduce_sum(g, pb, xb, ac, tm, coff, stride=4, waits=True):
    def unpack(dst, src):
        g(f"v_lshlrev_b32 v{dst}, 16, v{src}")
        g(f"v_and_b32 v{dst+1}, 0xffff0000, v{src}")
    for d in range(4):
        unpack(ac + 2 * d, xb + (d & 1))
        unpack(tm, xb + 2 + d)
        g(f"v_pk_add_f32 {vr(ac+2*d,2)}, {vr(ac+2*d,2)}, {vr(tm,2)}")
    for f2 in range(8):
        if waits:
            g(f"s_waitcnt vmcnt({7-f2})")
        for d in range(4):
            unpack(tm + 2 * (d & 1), pb + stride * f2 + d)
            g(f"v_pk_add_f32 {vr(ac+2*d,2)}, {vr(ac+2*d,2)}, {vr(tm+2*(d&1),2)}")
    for d in range(4):
        g(f"v_cvt_pk_bf16_f32 v{tm+4+d}, v{ac+2*d}, v{ac+2*d+1}")
    g(f"buffer_store_dwordx2 {vr(tm+4,2)}, v4, {sr(SRD_W1)}, s13 offen offset:{coff}")
    g(f"buffer_store_dwordx2 {vr(tm+6,2)}, v4, {sr(SRD_W1)}, s14 offen offset:{coff}")


from gen_attn import attention
from gen_ffn import ffn, ffn_setup


def main_kernel(name, opts):
    g = G()
    me = sys.modules[__name__]
    head(g, opts)
    Lfl = g.new("noflag")
    g(f"s_cmp_lg_u32 s{S_WV}, 0")
    g(f"s_cbranch_scc1 {Lfl}")
    g("v_lshlrev_b32 v5, 2, v1")
    g("v_and_b32 v5, 127, v5")
    g(f"v_add_u32 v5, {FLAGS}, v5")
    g("v_mov_b32 v6, 0")
    g("ds_write_b32 v5, v6")
    g("s_waitcnt lgkmcnt(0)")
    g.label(Lfl)
    g("s_barrier")
    Lf = g.new("fwaves")
    g(f"s_cmp_ge_u32 s{S_WV}, 4")
    g(f"s_cbranch_scc1 {Lf}")
    touches(g, opts)
    q_setup(g, opts)
    a_layernorm(g, opts)
    q_phase(g, opts)
    stamp(g, opts, 3)
    attention(g, opts, me)
    stamp_flush(g, opts)
    g("s_branch L_end")
    g.label(Lf)
    g("s_setprio 3")
    srd(g, SRD_WQ, P_WQ, 663552)
    Lst, Lfj = g.new("fstage"), g.new("fjoin")
    g(f"s_cmp_ge_u32 s{S_W4}, 2")
    g(f"s_cbranch_scc1 {Lst}")
    f_kv(g, opts)
    g(f"s_branch {Lfj}")
    g.label(Lst)
    f_stage(g, opts)
    g.label(Lfj)
    g("s_setprio 0")
    srd(g, SRD_WO, P_WO, 663552)
    srd(g, SRD_W1, P_W1, 5308416)
    srd(g, SRD_W2, P_W2, 5308416)
    srd(g, SRD_B1, P_B1, 9216)
    g(f"s_mul_i32 s9, s{S_W4}, 288")
    g(f"s_mul_i32 s10, s{S_FS}, 1152")
    g("s_add_u32 s9, s9, s10")
    g("v_lshrrev_b32 v5, 4, v1")
    g("v_lshlrev_b32 v5, 3, v5")
    for ct in range(9):
        g(f"buffer_load_dwordx2 {vr(160+2*ct,2)}, v5, {sr(SRD_B1)}, s9 offen offset:{ct*32}")
    touch_w1(g, opts)
    fill = ffn_setup(g, opts, me)
    Lnw = g.new("fnw")
    g(f"s_cmp_lt_u32 s{S_W4}, 2")
    g(f"s_cbranch_scc1 {Lnw}")
    g(f"s_lshl_b32 s9, s{S_W4}, 2")
    g(f"s_add_u32 s9, s9, {F_P}")
    g("v_mov_b32 v5, s9")
    g("v_mov_b32 v6, 4")
    g(f"s_waitcnt vmcnt({9 if opts.get('nopf') else 11 if opts.get('map2') else 10})")
    g("ds_write_b32 v5, v6")
    g.label(Lnw)
    stamp(g, opts, 1)
    f_poll_go(g, opts)
    stamp(g, opts, 12)
    g("v_and_b32 v5, 3, v1")
    g("v_lshlrev_b32 v5, 2, v5")
    g(f"v_add_u32 v5, {F_KV}, v5")
    flag_wait(g, 5, 6, 1, "ring")
    for o in fill:
        for l in o: g(l)
    opts["npf"] = 0
    ffn(g, opts, me)
    stamp_flush(g, opts)
    g.label("L_end")
    g("s_endpgm")
    txt = g.text().replace("L_", f"L{opts['tag']}_")
    return f"""
.globl {name}
.p2align 8
.type {name},@function
{name}:
{txt}
"""


def reduce_kernel(name, opts={}):
    g = G()
    g("s_cmp_ge_u32 s2, 576")
    g("s_cbranch_scc1 LR_end")
    if opts.get("stamp"):
        g("s_memrealtime s[40:41]")
    g("s_load_dwordx2 s[16:17], s[0:1], 0")
    g("s_load_dwordx2 s[18:19], s[0:1], 72")
    g("s_load_dwordx2 s[20:21], s[0:1], 80")
    g("s_load_dwordx2 s[22:23], s[0:1], 96")
    g("v_and_b32 v1, 63, v0")
    g("v_lshrrev_b32 v2, 6, v0")
    g("s_nop 0")
    g("v_readfirstlane_b32 s3, v2")
    g("s_lshl_b32 s4, s2, 2")
    g("s_add_u32 s4, s4, s3")
    g("s_mul_i32 s5, s4, 3641")
    g("s_lshr_b32 s5, s5, 16")
    g("s_mul_i32 s6, s5, 18")
    g("s_sub_u32 s6, s4, s6")
    g("s_lshr_b32 s7, s5, 2")
    g("s_and_b32 s8, s5, 3")
    g("s_waitcnt lgkmcnt(0)")
    srd(g, 24, 16, 2359296)
    srd(g, 28, 18, 1152)
    srd(g, 32, 20, 2359296)
    srd(g, 36, 22, WS_SIZE)
    g("s_mul_i32 s9, s7, 589824")
    g("s_mul_i32 s10, s8, 18")
    g("s_add_u32 s10, s10, s6")
    g("s_lshl_b32 s10, s10, 10")
    g("s_add_u32 s9, s9, s10")
    g(f"s_add_u32 s9, s9, {WS_PART}")
    g("v_lshlrev_b32 v2, 4, v1")
    for fs in range(8):
        g(f"buffer_load_dwordx4 {vr(8+4*fs,4)}, v2, s[36:39], s9 offen")
        if fs < 7:
            g("s_add_u32 s9, s9, 73728")
    g("s_lshr_b32 s10, s6, 1")
    g("s_and_b32 s11, s6, 1")
    g("s_mul_i32 s12, s8, 288")
    g("s_lshl_b32 s10, s10, 5")
    g("s_add_u32 s12, s12, s10")
    g("v_lshrrev_b32 v3, 4, v1")
    g("v_lshlrev_b32 v3, 3, v3")
    g("v_add_u32 v3, s12, v3")
    g("s_lshl_b32 s13, s7, 1")
    g("s_add_u32 s13, s13, s11")
    g("s_mul_i32 s13, s13, 36864")
    g("v_and_b32 v4, 15, v1")
    g("v_mul_u32_u24 v4, 1152, v4")
    g("v_add_u32 v4, v4, v3")
    g("s_add_u32 s14, s13, 18432")
    g("buffer_load_dwordx2 v[40:41], v3, s[28:31], 0 offen")
    g("buffer_load_dwordx2 v[42:43], v4, s[24:27], s13 offen")
    g("buffer_load_dwordx2 v[44:45], v4, s[24:27], s14 offen")
    g("s_waitcnt vmcnt(0)")
    def unpack(dst, src):
        g(f"v_lshlrev_b32 v{dst}, 16, v{src}")
        g(f"v_and_b32 v{dst+1}, 0xffff0000, v{src}")
    for d in range(4):
        unpack(48 + 2 * d, 8 + d)
    for fs in range(1, 8):
        for d in range(4):
            unpack(56, 8 + 4 * fs + d)
            g(f"v_pk_add_f32 {vr(48+2*d,2)}, {vr(48+2*d,2)}, v[56:57]")
    for d in range(4):
        unpack(56, 40 + (d & 1))
        g(f"v_pk_add_f32 {vr(48+2*d,2)}, {vr(48+2*d,2)}, v[56:57]")
        unpack(56, 42 + d)
        g(f"v_pk_add_f32 {vr(48+2*d,2)}, {vr(48+2*d,2)}, v[56:57]")
    for d in range(4):
        g(f"v_cvt_pk_bf16_f32 v{60+d}, v{48+2*d}, v{49+2*d}")
    g("buffer_store_dwordx2 v[60:61], v4, s[32:35], s13 offen")
    g("buffer_store_dwordx2 v[62:63], v4, s[32:35], s14 offen")
    if opts.get("stamp"):
        g("s_waitcnt vmcnt(0)")
        g("s_memrealtime s[42:43]")
        g("s_waitcnt lgkmcnt(0)")
        g("v_mov_b32 v8, s40")
        g("v_mov_b32 v9, s42")
        g("v_mov_b32 v2, 0")
        g("s_lshl_b32 s4, s4, 3")
        g(f"s_add_u32 s4, s4, {WS_DBG + (1<<20) + (2<<18)}")
        g("s_mov_b64 exec, 1")
        g("buffer_store_dwordx2 v[8:9], v2, s[36:39], s4 offen")
    g.label("LR_end")
    g("s_endpgm")
    for u in range(2304):
        assert (u * 3641) >> 16 == u // 18
    return f"""
.globl {name}
.p2align 8
.type {name},@function
{name}:
{g.text()}
"""


def kd(name, vgpr, sgpr=100):
    return f"""
.p2align 6
.amdhsa_kernel {name}
  .amdhsa_next_free_vgpr {vgpr}
  .amdhsa_next_free_sgpr {sgpr}
  .amdhsa_accum_offset {vgpr}
  .amdhsa_group_segment_fixed_size 0
  .amdhsa_kernarg_size 104
  .amdhsa_user_sgpr_count 2
  .amdhsa_user_sgpr_kernarg_segment_ptr 1
  .amdhsa_system_sgpr_workgroup_id_x 1
.end_amdhsa_kernel
"""


def build(mode):
    hdr = []
    body = []
    kds = []
    def add(name, code, grid, block, lds, vgpr):
        hdr.append(f"; @launch kernel={name} grid=({grid},1,1) block=({block},1,1) lds={lds}")
        body.append(code)
        kds.append(kd(name, vgpr))
    o = dict(tag="M", publish=True, inkernel=True)
    for m in mode.split(","):
        if "=" in m:
            k, v = m.split("="); o[k] = int(v)
        elif m: o[m] = True
    if o.get("fuse"):
        nm = KN + "_kernel"
        add(nm, main_kernel(nm, o), 256, 512, LDS_SIZE, 256)
        hdr[-1] = f"; @launch grid=(256,1,1) block=(512,1,1) lds={LDS_SIZE}"
    else:
        add("main_kernel", main_kernel("main_kernel", o), 256, 512, LDS_SIZE, 256)
    if not o.get("fuse"):
        add("reduce_kernel", reduce_kernel("reduce_kernel", o), 576, 256, 0, 64)
    out = "\n".join(hdr) + '\n.amdgcn_target "amdgcn-amd-amdhsa--gfx950"\n.text\n' + "\n".join(body) + '\n.section .rodata,"a"\n' + "\n".join(kds)
    return out


if __name__ == "__main__":
    mode = sys.argv[1]
    open(sys.argv[2], "w").write(build(mode))
```

```python
def attn_setup(g, opts, M):
    vr, sr = M.vr, M.sr
    S_RB, S_FS, S_WV, S_W4, S_LO = M.S_RB, M.S_FS, M.S_WV, M.S_W4, M.S_LO
    Q1, Q2, S, P, O, KV = M.A_Q1, M.A_Q2, M.A_S, M.A_P, M.A_O, M.A_KV
    AM, AK1, AK2, AV = M.A_M, M.A_AK1, M.A_AK2, M.A_AV
    AFL, FLD, FLW, DV, T, FV = M.A_AFL, M.A_FLD, M.A_FLW, M.A_DV0, M.A_T, M.A_FV
    S_C, S_THR, S_DOFF, S_M0B, S_LT = 84, 85, 86, 87, 88
    S_CK = [90, 92]
    LO = f"s[{S_LO}:{S_LO+1}]"
    CH, TB = M.CHUNK_B, M.TILE_B
    ldaux = " sc1" if opts.get("inkernel") else ""

    g("v_and_b32 v2, 31, v1")
    g("v_lshrrev_b32 v3, 5, v1")
    g(f"v_lshlrev_b32 v4, 4, v1")
    g(f"v_add_u32 v{AK1}, {M.KVR}, v4")
    g(f"v_lshlrev_b32 v4, 2, v2")
    g(f"v_add_u32 v{AK2}, {M.KVR + 1024}, v4")
    g("v_min_u32 v4, 19, v2")
    g("v_cmp_eq_u32 vcc, 22, v2")
    g("s_nop 1")
    g("v_cndmask_b32 v4, v4, 18, vcc")
    g("v_lshlrev_b32 v4, 4, v4")
    g(f"v_mul_u32_u24 v5, {M.VG_B}, v3")
    g("v_add_u32 v4, v4, v5")
    g(f"v_add_u32 v{AV}, {M.KVR + 1152}, v4")
    g(f"s_mul_i32 s9, s{S_W4}, {76*16}")
    g(f"v_lshlrev_b32 v4, 4, v1")
    g(f"v_add_u32 v{DV}, s9, v4")
    g(f"s_add_u32 s{S_M0B}, s9, {M.KVR}")
    g(f"s_mov_b32 s{S_LT}, {M.f32bits(M.LTHR) if not opts.get('norare') else 0x7f800000}")
    AD = 204
    g("v_and_b32 v2, 31, v1")
    g("v_lshrrev_b32 v3, 5, v1")
    g(f"v_mul_u32_u24 v4, {M.OSTR}, v2")
    g(f"v_add_u32 v4, {M.OREG}, v4")
    g(f"s_mul_i32 s9, s{S_W4}, 18")
    g("v_lshlrev_b32 v5, 2, v3")
    g("v_add_u32 v5, s9, v5")

    for p, dd in enumerate((0, 2, 8, 10, 16)):
        g(f"v_add_u32 v6, {dd}, v5")
        g("v_lshrrev_b32 v7, 5, v6")
        g(f"v_lshl_add_u32 v{AD+p}, v7, 6, v4")
        g("v_bfe_u32 v7, v6, 2, 2")
        g(f"v_lshl_add_u32 v{AD+p}, v7, 4, v{AD+p}")
        g("v_bfe_u32 v7, v6, 4, 1")
        g(f"v_lshl_add_u32 v{AD+p}, v7, 3, v{AD+p}")
        g("v_and_b32 v7, 3, v6")
        g(f"v_lshl_add_u32 v{AD+p}, v7, 1, v{AD+p}")
    g("v_and_b32 v6, 15, v1")
    g(f"s_lshl_b32 s9, s{S_W4}, 4")
    g("v_add_u32 v6, s9, v6")
    g(f"v_mul_u32_u24 v6, {M.OSTR}, v6")
    g(f"v_add_u32 v6, {M.OREG + 128}, v6")
    g("v_lshrrev_b32 v7, 4, v1")
    g("v_lshl_add_u32 v209, v7, 4, 16")
    g("v_add_u32 v210, 8, v209")
    g("v_cmp_eq_u32 vcc, 0, v7")
    g("v_cmp_eq_u32 s[92:93], 3, v7")
    g("s_nop 1")
    g("s_or_b64 vcc, vcc, s[92:93]")
    g("s_nop 1")
    g("v_cndmask_b32 v209, v209, 8, vcc")
    g("v_cndmask_b32 v210, v210, 24, vcc")
    g("v_add_u32 v209, v209, v6")
    g("v_add_u32 v210, v210, v6")

    g(f"s_mov_b32 s{S_DOFF}, {M.WS_KV}")
    g("s_mov_b32 s89, 0")


def attn_zero(g, opts, M):
    vr, sr = M.vr, M.sr
    S_RB, S_FS, S_WV, S_W4, S_LO = M.S_RB, M.S_FS, M.S_WV, M.S_W4, M.S_LO
    Q1, Q2, S, P, O, KV = M.A_Q1, M.A_Q2, M.A_S, M.A_P, M.A_O, M.A_KV
    AM, AK1, AK2, AV = M.A_M, M.A_AK1, M.A_AK2, M.A_AV
    AFL, FLD, FLW, DV, T, FV = M.A_AFL, M.A_FLD, M.A_FLW, M.A_DV0, M.A_T, M.A_FV
    S_C, S_THR, S_DOFF, S_M0B, S_LT = 84, 85, 86, 87, 88
    S_CK = [90, 92]
    LO = f"s[{S_LO}:{S_LO+1}]"
    CH, TB = M.CHUNK_B, M.TILE_B
    ldaux = " sc1" if opts.get("inkernel") else ""

    for rt in range(2):
        for r in range(16):
            g(f"v_mov_b32 v{O[rt]+r}, 0")
        for r in range(8):
            g(f"v_mov_b32 v{P[rt]+r}, 0")


def kv_first(g, opts, M):
    vr, sr = M.vr, M.sr
    S_RB, S_FS, S_WV, S_W4, S_LO = M.S_RB, M.S_FS, M.S_WV, M.S_W4, M.S_LO
    Q1, Q2, S, P, O, KV = M.A_Q1, M.A_Q2, M.A_S, M.A_P, M.A_O, M.A_KV
    AM, AK1, AK2, AV = M.A_M, M.A_AK1, M.A_AK2, M.A_AV
    AFL, FLD, FLW, DV, T, FV = M.A_AFL, M.A_FLD, M.A_FLW, M.A_DV0, M.A_T, M.A_FV
    S_C, S_THR, S_DOFF, S_M0B, S_LT = 84, 85, 86, 87, 88
    S_CK = [90, 92]
    LO = f"s[{S_LO}:{S_LO+1}]"
    CH, TB = M.CHUNK_B, M.TILE_B
    ldaux = " sc1" if opts.get("inkernel") else ""

    if not opts.get("nopf"):
        Lt = g.new("kvt")
        g(f"s_cmp_lg_u32 s{S_W4}, 3")
        g(f"s_cbranch_scc1 {Lt}")
        g("s_lshr_b32 s9, s2, 3")
        g(f"s_mul_i32 s9, s9, {CH}")
        g(f"s_add_u32 s9, s9, {M.WS_KV}")
        g("v_min_u32 v5, 38, v1")
        g("v_lshlrev_b32 v5, 7, v5")
        g(f"buffer_load_dword v203, v5, {sr(M.SRD_WS)}, s9 offen sc1")
        g.label(Lt)
    for slot in range(3):
        for l in [f"s_add_u32 m0, s{S_M0B}, {slot*CH}", "s_nop 0",
                  f"buffer_load_dwordx4 v{DV}, {sr(M.SRD_WS)}, s{S_DOFF} offen{ldaux} lds",
                  "s_mov_b64 exec, 0xfff",
                  f"buffer_load_dwordx4 v{DV}, {sr(M.SRD_WS)}, s{S_DOFF} offen offset:1024{ldaux} lds",
                  "s_mov_b64 exec, -1",
                  f"s_add_u32 s{S_DOFF}, s{S_DOFF}, {CH}"]:
            g(l)
    g("s_mov_b32 s89, 1")


def attention(g, opts, M):
    if opts.get("noattn"):
        return
    vr, sr = M.vr, M.sr
    S_RB, S_FS, S_WV, S_W4, S_LO = M.S_RB, M.S_FS, M.S_WV, M.S_W4, M.S_LO
    Q1, Q2, S, P, O, KV = M.A_Q1, M.A_Q2, M.A_S, M.A_P, M.A_O, M.A_KV
    AM, AK1, AK2, AV = M.A_M, M.A_AK1, M.A_AK2, M.A_AV
    AFL, FLD, FLW, DV, T, FV = M.A_AFL, M.A_FLD, M.A_FLW, M.A_DV0, M.A_T, M.A_FV
    S_C, S_THR, S_DOFF, S_M0B, S_LT = 84, 85, 86, 87, 88
    S_CK = [90, 92]
    LO = f"s[{S_LO}:{S_LO+1}]"
    CH, TB = M.CHUNK_B, M.TILE_B
    ldaux = " sc1" if opts.get("inkernel") else ""

    for st in range(2):
        for u in range(2):
            b = KV(st, u)
            g(f"v_mov_b32 v{b+5}, 0x3f803f80")
            g(f"v_mov_b32 v{b+6}, 0x3f80")
            g(f"v_mov_b32 v{b+7}, 0")
    for r in range(4):
        g(f"v_mov_b32 v{KV(1,1)+12+r}, 0")
    AD = 204
    def dma(slot):
        return [[f"s_add_u32 m0, s{S_M0B}, {slot*CH}", "s_nop 0",
                 f"buffer_load_dwordx4 v{DV}, {sr(M.SRD_WS)}, s{S_DOFF} offen{ldaux} lds"],
                ["s_mov_b64 exec, 0xfff",
                 f"buffer_load_dwordx4 v{DV}, {sr(M.SRD_WS)}, s{S_DOFF} offen offset:1024{ldaux} lds",
                 "s_mov_b64 exec, -1",
                 f"s_add_u32 s{S_DOFF}, s{S_DOFF}, {CH}"]]
    def frag_reads(slot, st):
        ops = []
        for u in range(2):
            b = KV(st, u)
            off = slot * CH + u * TB
            ops.append([f"ds_read_b128 {vr(b,4)}, v{AK1} offset:{off}"])
            ops.append([f"ds_read_b32 v{b+4}, v{AK2} offset:{off}"])
            ops.append([f"ds_read_b128 {vr(b+8,4)}, v{AV} offset:{off}"])
            ops.append([f"ds_read_b128 {vr(b+12,4)}, v{AV} offset:{off+M.VH_B}"])
        return ops
    def emit(ops):
        for o in ops:
            for l in o:
                g(l)
    def set_mref(rt):
        g(f"v_sub_f32 v{T}, 0, v{AM[rt]}")
        g(f"v_and_b32 v{T+1}, 0xffff0000, v{T}")
        g(f"v_sub_f32 v{T}, v{T}, v{T+1}")
        g(f"v_and_b32 v{T+2}, 0xffff0000, v{T}")
        g(f"v_sub_f32 v{T}, v{T}, v{T+2}")
        g(f"v_lshrrev_b32 v{T+1}, 16, v{T+1}")
        g(f"v_or_b32 v{T+1}, v{T+1}, v{T+2}")
        g(f"v_lshrrev_b32 v{T}, 16, v{T}")
        g(f"v_cndmask_b32 v{Q2[rt]+1}, 0, v{T+1}, {LO}")
        g(f"v_cndmask_b32 v{Q2[rt]+2}, 0, v{T}, {LO}")
    def qk1(rt, kb):
        return f"v_mfma_f32_32x32x16_bf16 {vr(S[rt],16)}, {vr(kb,4)}, {vr(Q1[rt],4)}, 0"
    def qk2(rt, kb):
        return f"v_mfma_f32_32x32x16_bf16 {vr(S[rt],16)}, {vr(kb+4,4)}, {vr(Q2[rt],4)}, {vr(S[rt],16)}"
    def pva(rt, kb):
        return f"v_mfma_f32_32x32x16_bf16 {vr(O[rt],16)}, {vr(kb+8,4)}, {vr(P[rt],4)}, {vr(O[rt],16)}"
    def pvb(rt, kb):
        return f"v_mfma_f32_32x32x16_bf16 {vr(O[rt],16)}, {vr(kb+12,4)}, {vr(P[rt]+4,4)}, {vr(O[rt],16)}"

    M.stamp(g, opts, 8)
    Le = g.new("kvearly")
    g("s_cmp_eq_u32 s89, 1")
    g(f"s_cbranch_scc1 {Le}")
    M.global_kv_sync(g, opts)
    kv_first(g, opts, M)
    g.label(Le)
    M.stamp(g, opts, 7)
    g("s_setprio 2")
    g("s_waitcnt vmcnt(4)")
    g(f"v_mov_b32 v{FV}, 3")
    g(f"ds_write_b32 v{FLW}, v{FV}")
    M.flag_wait(g, AFL, FLD, 3, "kb")
    emit(frag_reads(0, 0))
    g("s_waitcnt lgkmcnt(0)")
    M.stamp(g, opts, 4)
    for u in range(2):
        for rt in range(2):
            g(qk1(rt, KV(0, u)))
            g(qk2(rt, KV(0, u)))
        g("s_nop 15")
        g("s_nop 3")
        for rt in range(2):
            s = S[rt]
            t = T + 10 + rt
            if u == 0:
                g(f"v_max_f32 v{t}, v{s}, v{s+15}")
            else:
                g(f"v_max3_f32 v{t}, v{t}, v{s}, v{s+15}")
            for r in range(1, 15, 2):
                g(f"v_max3_f32 v{t}, v{t}, v{s+r}, v{s+r+1}")
    for rt in range(2):
        t = T + 10 + rt
        g(f"v_mov_b32 v{T+1}, v{t}")
        g("s_nop 1")
        g(f"v_permlane32_swap_b32 v{t}, v{T+1}")
        g("s_nop 1")
        g(f"v_max_f32 v{T}, v{t}, v{T+1}")
        g(f"v_ceil_f32 v{T}, v{T}")
        g(f"v_add_f32 v{AM[rt]}, {M.f32bits(float(M.HEAD))}, v{T}")
        set_mref(rt)
    g("s_nop 1")
    g(qk1(0, KV(0, 0)))
    g(qk2(0, KV(0, 0)))
    g("s_nop 15")
    M.stamp(g, opts, 5)
    M.cstamp(g, opts, 11)
    g("s_mov_b32 s94, 0")
    g(f"s_mov_b32 s{S_C}, 0")
    g(f"s_mov_b32 s{S_THR}, 4")

    rare = []

    def half_iter(pos6, q, extra, shadow=()):
        st = pos6 & 1
        rt = q & 1
        u = q >> 1
        if q < 3:
            nst, nu, nrt = st, (q + 1) >> 1, (q + 1) & 1
        else:
            nst, nu, nrt = st ^ 1, 0, 0
        if q > 0:
            pst, pu, prt = st, (q - 1) >> 1, (q - 1) & 1
        else:
            pst, pu, prt = st ^ 1, 1, 1
        s, p = S[rt], P[rt]
        valu = []
        for grp in range(4):
            for r in range(4):
                valu.append(f"v_exp_f32 v{s+4*grp+r}, v{s+4*grp+r}")
            valu.append(f"v_cvt_pk_bf16_f32 v{p+2*grp}, v{s+4*grp}, v{s+4*grp+1}")
            valu.append(f"v_cvt_pk_bf16_f32 v{p+2*grp+1}, v{s+4*grp+2}, v{s+4*grp+3}")
        mf = {0: qk1(nrt, KV(nst, nu)), 6: qk2(nrt, KV(nst, nu)), 12: pvb(prt, KV(pst, pu)), 18: pva(rt, KV(st, u))}
        sh = list(shadow)
        for i in range(24):
            for l in extra.get(i, []):
                g(l)
            if i in mf:
                g(mf[i])
            g(valu[i])
            if valu[i].startswith("v_exp") and sh and sh[0][0] <= i:
                x = sh.pop(0)[1]
                for l in (x if isinstance(x, list) else [x]):
                    g(l)
        assert not sh, sh

    def rare_block(rt, kb, Lr, Lback):
        b = []
        b.append(f"{Lr}:")
        L = M.G()
        L(pvb(rt, kb))
        L("s_nop 15")
        L("s_nop 3")
        L(f"v_frexp_exp_i32_f32 v{T+3}, v{O[rt]+10}")
        L(f"v_add_u32 v{T+3}, {M.HEAD}, v{T+3}")
        L(f"v_max_i32 v{T+3}, 0, v{T+3}")
        L(f"v_cvt_f32_i32 v{T+4}, v{T+3}")
        L(f"v_sub_u32 v{T+3}, 0, v{T+3}")
        L(f"v_add_f32 v{AM[rt]}, v{AM[rt]}, v{T+4}")
        for r in range(11):
            L(f"v_ldexp_f32 v{O[rt]+r}, v{O[rt]+r}, v{T+3}")
        for r in range(4):
            L(f"v_mov_b32 v{P[rt]+4+r}, 0")
        old = g.lines
        g.lines = L.lines
        set_mref(rt)
        if opts.get("dbgrare"):
            g(f"s_add_u32 s95, s95, 1")
        g("s_nop 1")
        g(f"s_branch {Lback}")
        g.lines = old
        rare.append("\n".join(b + L.lines))

    Lloop, Lexit = g.new("aloop"), g.new("aexit")
    if opts.get("dbgrare"):
        g("s_mov_b32 s95, 0")
    g.label(Lloop)
    for pos6 in range(6):
        st = pos6 & 1
        g.c(f"==== chunk pos {pos6}")
        Lspin, Lback = g.new("aspin"), g.new("aback")
        ex = {}
        sh = [(1, "s_waitcnt vmcnt(2)"), (2, f"v_mov_b32 v{FV}, s{S_THR}"), (3, f"ds_write_b32 v{FLW}, v{FV}"),
              (19, f"ds_read_b32 v{FLD}, v{AFL}")]
        if opts.get("nosync") or opts.get("noflag"): sh = []
        half_iter(pos6, 0, ex, sh)
        fr = [x[0] for x in frag_reads((pos6 + 1) % 3, st ^ 1)]
        sh = [(6, "s_waitcnt lgkmcnt(0)"), (7, f"v_cmp_gt_u32 vcc, s{S_THR}, v{FLD}"),
              (12, [f"s_cbranch_vccnz {Lspin}", f"{Lback}:"]),
              (13, fr[0]), (14, fr[1]), (15, fr[4]), (18, fr[5]), (19, fr[2]), (20, fr[3]), (21, fr[6])]
        if opts.get("nosync"): sh = [(12, f"{Lback}:")]
        if opts.get("noflag"): sh = [(12, f"{Lback}:")] + sh[3:]
        if opts.get("noreads"): sh = sh[:3]
        ex = {}
        if st == 0:
            ex[17] = [f"v_cmp_lt_f32 s[{S_CK[1]}:{S_CK[1]+1}], s{S_LT}, v{O[1]+10}"]
        half_iter(pos6, 1, ex, sh)
        rare.append("\n".join([f"{Lspin}:", f"    ds_read_b32 v{FLD}, v{AFL}", "    s_waitcnt lgkmcnt(0)",
                               f"    v_cmp_gt_u32 vcc, s{S_THR}, v{FLD}", "    s_nop 4",
                               "    s_add_u32 s94, s94, 1", f"    s_cbranch_vccz {Lback}", "    s_sleep 1", f"    s_branch {Lspin}"]))
        ex = {}
        if st == 0:
            Lr, Lb = g.new("rare1"), g.new("rback1")
            ex[0] = [f"s_cmp_lg_u64 s[{S_CK[1]}:{S_CK[1]+1}], 0", f"s_cbranch_scc1 {Lr}", f"{Lb}:"]
            rare_block(1, KV(0, 0), Lr, Lb)
            ex[17] = [f"v_cmp_lt_f32 s[{S_CK[0]}:{S_CK[0]+1}], s{S_LT}, v{O[0]+10}"]
        slot = pos6 % 3
        sh = [(0, fr[7]), (1, f"s_add_u32 m0, s{S_M0B}, {slot*CH}"),
              (2, f"buffer_load_dwordx4 v{DV}, {sr(M.SRD_WS)}, s{S_DOFF} offen{ldaux} lds"),
              (7, ["s_mov_b64 exec, 0xfff",
                   f"buffer_load_dwordx4 v{DV}, {sr(M.SRD_WS)}, s{S_DOFF} offen offset:1024{ldaux} lds",
                   "s_mov_b64 exec, -1"]),
              (9, f"s_add_u32 s{S_DOFF}, s{S_DOFF}, {CH}")]
        if opts.get("nosync"): sh = []
        if opts.get("nodma"): sh = sh[:1]
        if opts.get("nodma2"): sh = sh[:3] + sh[4:]
        if opts.get("noreads"): sh = sh[1:]
        half_iter(pos6, 2, ex, sh)
        ex = {0: ["s_waitcnt lgkmcnt(0)"]}
        if st == 0:
            Lr, Lb = g.new("rare0"), g.new("rback0")
            ex[0] = ex[0] + [f"s_cmp_lg_u64 s[{S_CK[0]}:{S_CK[0]+1}], 0", f"s_cbranch_scc1 {Lr}", f"{Lb}:"]
            rare_block(0, KV(0, 1), Lr, Lb)
        sh = [(13, f"s_add_u32 s{S_THR}, s{S_THR}, 1")]
        if pos6 == 1:
            sh.append((14, f"s_cmp_eq_u32 s{S_THR}, 36"))
        half_iter(pos6, 3, ex, sh)
        if pos6 == 1:
            g(f"s_cbranch_scc1 {Lexit}")
    g(f"s_branch {Lloop}")
    for r in rare:
        g.lines.append(r)
    g.label(Lexit)
    g("s_nop 1")
    g(pvb(1, KV(1, 1)))
    g("s_setprio 0")
    M.stamp(g, opts, 6)
    M.cstamp(g, opts, 12)
    if opts.get("stamp"):
        g("v_writelane_b32 v254, s94, 10")
    g("s_waitcnt vmcnt(0) lgkmcnt(0)")
    g(f"v_mov_b32 v{FV}, 100")
    g(f"ds_write_b32 v{FLW}, v{FV}")
    g("s_nop 7")
    g("s_nop 7")
    if opts.get("dbgrare"):
        g("s_lshl_b32 s9, s2, 2")
        g(f"s_add_u32 s9, s9, s{S_W4}")
        g("s_lshl_b32 s9, s9, 2")
        g(f"s_add_u32 s9, s9, {M.WS_DBG}")
        g("v_mov_b32 v2, 0")
        g("v_mov_b32 v3, s95")
        g(f"buffer_store_dword v3, v2, {sr(M.SRD_WS)}, s9 offen")
    g("s_movk_i32 s9, 0x207")
    g("s_mov_b64 s[90:91], 0")
    the_slow = opts.get("slow", True)
    for rt in range(2):
        Lok = g.new("fin_ok")
        g(f"v_mul_f32 v{T}, 0, v{O[rt]}")
        g(f"v_mul_f32 v{T+1}, 0, v{O[rt]+1}")
        for r in range(2, 11):
            g(f"v_fma_f32 v{T+(r&1)}, v{O[rt]+r}, 0, v{T+(r&1)}")
        g(f"v_cmp_u_f32 s[90:91], v{T}, v{T+1}")
        g("s_nop 1")
        if opts.get("forceslow"):
            g("s_mov_b64 s[90:91], -1")
        g("s_cmp_eq_u64 s[90:91], 0")
        g(f"s_cbranch_scc1 {Lok}")
        slow_path(g, opts, M, rt, set_mref, qk1, qk2, pva, pvb)
        g.label(Lok)
    g("v_mov_b32 v6, 0")
    g("v_mov_b32 v7, 0")
    for rt in range(2):
        o = O[rt]
        g(f"v_rcp_f32 v{T}, v{o+10}")
        g("s_nop 0")
        for r in range(10):
            g(f"v_mul_f32 v{o+r}, v{o+r}, v{T}")
        for p in range(5):
            g(f"v_cvt_pk_bf16_f32 v{o+p}, v{o+2*p}, v{o+2*p+1}")
    M.flag_wait(g, AFL, FLD, 100, "kend")
    g("ds_write_b64 v209, v[6:7]")
    g("ds_write_b64 v210, v[6:7]")
    for rt in range(2):
        o = O[rt]
        for p in range(4):
            g(f"ds_write_b32 v{AD+p}, v{o+p} offset:{rt*32*M.OSTR}")
        g(f"s_mov_b64 exec, {LO}")
        g(f"ds_write_b32 v{AD+4}, v{o+4} offset:{rt*32*M.OSTR}")
        g("s_mov_b64 exec, -1")
    g("s_waitcnt lgkmcnt(0)")
    g(f"v_add_u32 v{FLW}, {M.F_O - M.F_KV}, v{FLW}")
    g(f"v_mov_b32 v{FV}, 1")
    g(f"ds_write_b32 v{FLW}, v{FV}")
    M.reduce_setup(g, S_WV)
    XB = 112
    for p in range(3):
        M.reduce_xb(g, XB + 6 * p, p * 128)
    g(f"s_mul_i32 s84, s{S_RB}, 589824")
    g("s_mul_i32 s12, s10, 18")
    g("s_add_u32 s12, s12, s11")
    g(f"s_lshl_b32 s15, s{S_W4}, 1")
    g("s_add_u32 s12, s12, s15")
    g("s_lshl_b32 s12, s12, 10")
    g("s_add_u32 s84, s84, s12")
    g(f"s_add_u32 s84, s84, {M.WS_PART}")
    g("v_add_u32 v5, 8192, v2")
    g("v_add_u32 v6, 16384, v2")
    g(f"s_lshl_b32 s85, s{S_RB}, 2")
    g("s_add_u32 s85, s85, s10")
    g("s_lshl_b32 s85, s85, 7")
    g(f"s_add_u32 s85, s85, {M.WS_FLAG}")
    g("v_and_b32 v7, 7, v1")
    g("v_lshlrev_b32 v7, 2, v7")
    g("s_movk_i32 s86, 0xff")
    PB = 16
    if not opts.get("noawait"):
        g(f"v_add_u32 v9, {M.F_R - M.F_KV}, v{AFL}")
        M.flag_wait(g, 9, 8, 1, "rwait")
    Lp, Ld = g.new("rp"), g.new("rpd")
    g.label(Lp)
    g(f"buffer_load_dword v8, v7, {sr(M.SRD_WS)}, s85 offen sc1")
    g("s_waitcnt vmcnt(0)")
    g("v_cmp_eq_u32 vcc, 1, v8")
    g("s_nop 4")
    g("s_and_b32 s87, vcc_lo, s86")
    g("s_andn2_b32 s86, s86, s87")
    for f2 in range(8):
        Ls = g.new("rps")
        g(f"s_bitcmp1_b32 s87, {f2}")
        g(f"s_cbranch_scc0 {Ls}")
        g(f"s_add_u32 s9, s84, {f2*73728}")
        g(f"buffer_load_dwordx4 {vr(PB+12*f2,4)}, v2, {sr(M.SRD_WS)}, s9 offen sc1")
        g(f"buffer_load_dwordx4 {vr(PB+12*f2+4,4)}, v5, {sr(M.SRD_WS)}, s9 offen sc1")
        g(f"s_cmp_lg_u32 s{S_W4}, 0")
        g(f"s_cbranch_scc1 {Ls}")
        g(f"buffer_load_dwordx4 {vr(PB+12*f2+8,4)}, v6, {sr(M.SRD_WS)}, s9 offen sc1")
        g.label(Ls)
    g("s_cmp_eq_u32 s86, 0")
    g(f"s_cbranch_scc1 {Ld}")
    g(f"s_sleep {opts.get('rsleep', 2)}")
    g(f"s_branch {Lp}")
    g.label(Ld)
    M.stamp(g, opts, 9)
    g("s_waitcnt vmcnt(0)")
    M.reduce_sum(g, PB, XB, 136, 144, 0, 12, False)
    M.reduce_sum(g, PB + 4, XB + 6, 152, 160, 128, 12, False)
    Lx = g.new("red8")
    g(f"s_cmp_lg_u32 s{S_W4}, 0")
    g(f"s_cbranch_scc1 {Lx}")
    M.reduce_sum(g, PB + 8, XB + 12, 168, 176, 256, 12, False)
    g.label(Lx)
    g("s_waitcnt vmcnt(0)")


def slow_path(g, opts, M, rt, set_mref, qk1, qk2, pva, pvb):
    vr, sr = M.vr, M.sr
    Q1, Q2, S, P, O, KV = M.A_Q1, M.A_Q2, M.A_S, M.A_P, M.A_O, M.A_KV
    AM, AK1, AK2, AV, T = M.A_M, M.A_AK1, M.A_AK2, M.A_AV, M.A_T
    ldaux = " sc1" if opts.get("inkernel") else ""
    kb = KV(0, 0)
    s, p, o = S[rt], P[rt], O[rt]
    G1, G2, G3 = T + 6, T + 7, T + 8
    g(f"v_subrev_u32 v{G1}, {M.KVR}, v{AK1}")
    g(f"v_subrev_u32 v{G2}, {M.KVR}, v{AK2}")
    g(f"v_subrev_u32 v{G3}, {M.KVR}, v{AV}")
    for r in range(16):
        g(f"v_mov_b32 v{o+r}, 0")
    g(f"v_mov_b32 v{AM[rt]}, {M.f32bits(-8388608.0)}")
    g(f"s_mov_b32 s10, {M.WS_KV}")
    g("s_mov_b32 s11, 0")
    L, Lno = g.new("slow"), g.new("slownors")
    g.label(L)
    g(f"buffer_load_dwordx4 {vr(kb,4)}, v{G1}, {sr(M.SRD_WS)}, s10 offen{ldaux}")
    g(f"buffer_load_dword v{kb+4}, v{G2}, {sr(M.SRD_WS)}, s10 offen{ldaux}")
    g(f"buffer_load_dwordx4 {vr(kb+8,4)}, v{G3}, {sr(M.SRD_WS)}, s10 offen{ldaux}")
    g(f"buffer_load_dwordx4 {vr(kb+12,4)}, v{G3}, {sr(M.SRD_WS)}, s10 offen offset:{M.VH_B}{ldaux}")
    g(f"v_mov_b32 v{Q2[rt]+1}, 0")
    g(f"v_mov_b32 v{Q2[rt]+2}, 0")
    g("s_waitcnt vmcnt(0)")
    g("s_nop 1")
    g(qk1(rt, kb))
    g(qk2(rt, kb))
    g("s_nop 15")
    g("s_nop 3")
    g(f"v_max3_f32 v{T}, v{s}, v{s+1}, v{s+2}")
    for r in range(3, 15, 2):
        g(f"v_max3_f32 v{T}, v{T}, v{s+r}, v{s+r+1}")
    g(f"v_max_f32 v{T}, v{T}, v{s+15}")
    g(f"v_mov_b32 v{T+1}, v{T}")
    g("s_nop 1")
    g(f"v_permlane32_swap_b32 v{T}, v{T+1}")
    g("s_nop 1")
    g(f"v_max_f32 v{T}, v{T}, v{T+1}")
    g(f"v_ceil_f32 v{T}, v{T}")
    g(f"v_max_f32 v{T}, v{T}, v{AM[rt]}")
    g(f"v_sub_f32 v{T+1}, v{AM[rt]}, v{T}")
    g(f"v_max_f32 v{T+1}, {M.f32bits(-1000.0)}, v{T+1}")
    g(f"v_cvt_i32_f32 v{T+1}, v{T+1}")
    g(f"v_mov_b32 v{AM[rt]}, v{T}")
    for r in range(16):
        g(f"v_ldexp_f32 v{o+r}, v{o+r}, v{T+1}")
    for r in range(16):
        g(f"v_sub_f32 v{s+r}, v{s+r}, v{AM[rt]}")
        g(f"v_exp_f32 v{s+r}, v{s+r}")
    g("s_nop 0")
    for r in range(8):
        g(f"v_cvt_pk_bf16_f32 v{p+r}, v{s+2*r}, v{s+2*r+1}")
    g("s_nop 1")
    g(pva(rt, kb))
    g(pvb(rt, kb))
    g("s_nop 15")
    g("s_nop 3")
    g(f"s_add_u32 s10, s10, {M.TILE_B}")
    g("s_add_u32 s11, s11, 1")
    g("s_cmp_lt_u32 s11, 64")
    g(f"s_cbranch_scc1 {L}")
```

```python
import sys, struct, math

KN = "parallel_sum__grouped_kv_mqa__dense_activation_squared_relu__prompt"

XH = 0
WR = 73728
KVR = 147456
OREG = 147456
OSTR = 224
FLAGS = 163712
LDS_SIZE = 163840
QST = 73728
F_KV = FLAGS
F_X = FLAGS + 16
F_O = FLAGS + 32
F_G = FLAGS + 48
F_P = FLAGS + 64
F_A = FLAGS + 112
F_R = FLAGS + 80
TILE_B = 2432
VH_B = 640
VG_B = 320
VSCR = 160768
PQ_B = 3584
CHUNK_B = 2 * TILE_B
WS_KV = 0
WS_FLAG = 512 << 10
WS_PART = 1 << 20
WS_DBG = 24 << 20
WS_SIZE = 32 << 20

def f32bits(x):
    return struct.unpack("<I", struct.pack("<f", x))[0]

CSCALE = math.log2(math.e) / math.sqrt(18.0)
HEAD = 72
LTHR = 2.0 ** 28


class G:
    def __init__(s):
        s.lines = []
        s.uid = 0
    def __call__(s, t):
        s.lines.append("    " + t)
    def label(s, l):
        s.lines.append(l + ":")
    def c(s, t):
        s.lines.append("    ; " + t)
    def new(s, p):
        s.uid += 1
        return f"L_{p}_{s.uid}"
    def text(s):
        return "\n".join(s.lines)


def vr(a, n):
    return f"v[{a}:{a+n-1}]"

S_RB, S_FS, S_WV, S_W4 = 4, 5, 6, 7
P_X, P_WQ, P_WK, P_WV, P_WO, P_BX, P_W1, P_B1, P_W2, P_B2, P_OUT, P_DBG, P_WS = [16 + 2 * i for i in range(13)]
SRD_X, SRD_WQ, SRD_W1, SRD_W2, SRD_WO, SRD_B1, SRD_WS, SRD_WK, SRD_WVV = 44, 48, 52, 56, 60, 64, 68, 72, 76
SRD_DBG = 12
S_SH = 3
S_LO = 80
S_HI = 82


def srd(g, d, p, nbytes):
    g(f"s_mov_b32 s{d}, s{p}")
    g(f"s_and_b32 s{d+1}, s{p+1}, 0xffff")
    g(f"s_mov_b32 s{d+2}, {nbytes}")
    g(f"s_mov_b32 s{d+3}, 0x00020000")

def sr(d):
    return f"s[{d}:{d+3}]"


def flag_wait(g, vaddr, vtmp, thr, name):
    L = g.new(name)
    Ld = g.new(name + "d")
    g.label(L)
    g(f"ds_read_b32 v{vtmp}, v{vaddr}")
    g("s_waitcnt lgkmcnt(0)")
    g(f"v_cmp_gt_u32 vcc, {thr}, v{vtmp}")
    g("s_nop 4")
    g(f"s_cbranch_vccz {Ld}")
    g("s_sleep 1")
    g(f"s_branch {L}")
    g.label(Ld)


def stamp(g, opts, idx):
    if not opts.get("stamp"):
        return
    g("s_memrealtime s[96:97]")
    g("s_waitcnt lgkmcnt(0)")
    g(f"v_writelane_b32 v254, s96, {idx}")


def cstamp(g, opts, idx):
    if not opts.get("stamp"):
        return
    g("s_memtime s[96:97]")
    g("s_waitcnt lgkmcnt(0)")
    g(f"v_writelane_b32 v254, s96, {idx}")


def stamp_flush(g, opts):
    if not opts.get("stamp"):
        return
    stamp(g, opts, 15)
    g("s_memtime s[96:97]")
    g("s_waitcnt lgkmcnt(0)")
    g(f"v_writelane_b32 v254, s96, 14")
    base = WS_DBG + (1 << 20) + (0 if opts["tag"] == "K" else (1 << 18))
    g("s_lshl_b32 s98, s2, 3")
    g(f"s_add_u32 s98, s98, s{S_WV}")
    g("s_lshl_b32 s98, s98, 6")
    g(f"s_add_u32 s98, s98, {base}")
    g("v_lshlrev_b32 v253, 2, v1")
    g("s_mov_b64 exec, 0xffff")
    g(f"buffer_store_dword v254, v253, {sr(SRD_WS)}, s98 offen")
    g("s_mov_b64 exec, -1")
    g("s_waitcnt vmcnt(0)")
    if opts.get("dbgt"):
        Lx = g.new("dbgt")
        g("s_cmp_lg_u32 s2, 8")
        g(f"s_cbranch_scc1 {Lx}")
        g(f"s_cmp_lg_u32 s{S_WV}, 4")
        g(f"s_cbranch_scc1 {Lx}")
        srd(g, SRD_DBG, P_DBG, 256)
        g("v_readlane_b32 s96, v254, 0")
        g("s_nop 3")
        g("v_subrev_u32 v254, s96, v254")
        g("s_mov_b64 exec, 0x8ee8")
        g(f"buffer_store_dword v254, v253, {sr(SRD_DBG)}, 0 offen")
        g("s_mov_b64 exec, -1")
        g("s_waitcnt vmcnt(0)")
        g.label(Lx)


def head(g, opts):
    g("s_cmp_ge_u32 s2, 256")
    g("s_cbranch_scc1 L_end")
    if opts.get("stamp"):
        g("v_mov_b32 v254, 0")
    stamp(g, opts, 0)
    cstamp(g, opts, 13)
    g("s_load_dwordx16 s[16:31], s[0:1], 0")
    g("s_load_dwordx8 s[32:39], s[0:1], 64")
    g("s_load_dwordx2 s[40:41], s[0:1], 96")
    g("v_and_b32 v1, 63, v0")
    g("v_lshrrev_b32 v2, 6, v0")
    if opts.get("map2"):
        g("s_lshr_b32 s8, s2, 3")
        g("s_and_b32 s9, s2, 3")
        g("s_lshl_b32 s9, s9, 1")
        g("s_and_b32 s10, s8, 1")
        g(f"s_add_u32 s{S_FS}, s9, s10")
        g("s_bfe_u32 s9, s2, 0x10002")
        g("s_lshl_b32 s9, s9, 4")
        g("s_lshr_b32 s10, s8, 1")
        g(f"s_add_u32 s{S_RB}, s9, s10")
    else:
        g(f"s_lshr_b32 s{S_RB}, s2, 3")
        g(f"s_and_b32 s{S_FS}, s2, 7")
    g(f"v_readfirstlane_b32 s{S_WV}, v2")
    g(f"s_mov_b32 s{S_LO}, -1")
    g(f"s_mov_b32 s{S_LO+1}, 0")
    g(f"s_mov_b32 s{S_HI}, 0")
    g(f"s_mov_b32 s{S_HI+1}, -1")
    g(f"s_and_b32 s{S_W4}, s{S_WV}, 3")
    if opts.get("map2"):
        g(f"s_mov_b32 s{S_SH}, s{S_RB}")
    else:
        g(f"s_mov_b32 s{S_SH}, s{S_RB}")
    g("s_waitcnt lgkmcnt(0)")
    srd(g, SRD_X, P_X, 2359296)
    srd(g, SRD_WS, P_WS, WS_SIZE)


def touch_w1(g, opts):
    if opts.get("nopf"):
        return
    g("v_min_u32 v5, 53, v1")
    g("v_mul_u32_u24 v6, 7282, v5")
    g("v_lshrrev_b32 v6, 16, v6")
    g("v_mul_u32_u24 v7, 9, v6")
    g("v_sub_u32 v7, v5, v7")
    g(f"s_mov_b32 s10, {32*9216}")
    g("v_mul_lo_u32 v6, v6, s10")
    g("v_lshl_add_u32 v5, v7, 7, v6")
    g(f"s_min_u32 s9, s{S_W4}, 2")
    g("s_mul_i32 s9, s9, 192")
    g(f"s_add_u32 s9, s9, s{S_RB}")
    g("s_mul_i32 s9, s9, 9216")
    g(f"s_mul_i32 s10, s{S_FS}, 1152")
    g("s_add_u32 s9, s9, s10")
    g(f"buffer_load_dword v251, v5, {sr(SRD_W1)}, s9 offen")
    if opts.get("map2"):
        g(f"s_xor_b32 s11, s{S_RB}, 16")
        g(f"s_sub_u32 s11, s11, s{S_RB}")
        g("s_mul_i32 s11, s11, 9216")
        g("s_add_u32 s9, s9, s11")
        g(f"buffer_load_dword v251, v5, {sr(SRD_W1)}, s9 offen")


def touches(g, opts):
    if opts.get("nopf"):
        return
    L1, Ld = g.new("tc"), g.new("tcd")
    if opts.get("map2"):
        g(f"s_lshr_b32 s{S_SH}, s{S_W4}, 1")
        g(f"s_lshl_b32 s{S_SH}, s{S_SH}, 4")
        g(f"s_xor_b32 s{S_SH}, s{S_SH}, s{S_RB}")
    else:
        g(f"s_cmp_ge_u32 s{S_W4}, 2")
        g(f"s_cbranch_scc1 {Ld}")
    g(f"s_bitcmp1_b32 s{S_W4}, 0")
    g(f"s_cbranch_scc1 {L1}")
    srd(g, SRD_WQ, P_WQ, 663552)
    g("v_min_u32 v5, 53, v1")
    g("v_mul_u32_u24 v6, 21846, v5")
    g("v_lshrrev_b32 v6, 16, v6")
    g("v_mul_u32_u24 v7, 3, v6")
    g("v_sub_u32 v7, v5, v7")
    g("v_mul_u32_u24 v6, 1152, v6")
    g("v_lshl_add_u32 v6, v7, 6, v6")
    g(f"s_mul_i32 s9, s{S_SH}, {18*1152}")
    g(f"s_mul_i32 s10, s{S_FS}, 144")
    g("s_add_u32 s9, s9, s10")
    g(f"buffer_load_dword v252, v6, {sr(SRD_WQ)}, s9 offen offset:12")
    g(f"s_branch {Ld}")
    g.label(L1)
    srd(g, SRD_WO, P_WO, 663552)
    g("v_min_u32 v6, 26, v1")
    g("v_lshlrev_b32 v6, 7, v6")
    g(f"s_mul_i32 s9, s{S_FS}, {72*1152}")
    g(f"s_mul_i32 s10, s{S_SH}, 3456")
    g("s_add_u32 s9, s9, s10")
    g(f"buffer_load_dword v252, v6, {sr(SRD_WO)}, s9 offen")
    g.label(Ld)


def ln_load(g, X, srow):
    g(f"s_lshl_b32 s8, s{S_RB}, 6")
    g(f"s_add_u32 s8, s8, s{srow}")
    g("s_mul_i32 s8, s8, 1152")
    for i in range(9):
        g(f"buffer_load_dwordx4 {vr(X+4*i,4)}, v4, {sr(SRD_X)}, s8 offen offset:{i*128}")


def ln_addr(g, A, srow):
    g(f"v_add_u32 v5, s{srow}, v2")
    g("v_bfe_u32 v6, v5, 1, 3")
    g("v_lshrrev_b32 v7, 2, v3")
    g("v_lshlrev_b32 v7, 2, v7")
    g(f"v_and_b32 v{A}, 1, v3")
    g(f"v_lshl_add_u32 v7, v{A}, 1, v7")
    g("v_xor_b32 v7, v7, v6")
    g(f"v_mul_u32_u24 v{A}, 1152, v5")
    g(f"v_lshl_add_u32 v{A}, v7, 4, v{A}")
    g("v_bfe_u32 v7, v3, 1, 1")
    g(f"v_lshl_add_u32 v{A}, v7, 3, v{A}")
    g(f"v_xor_b32 v{A+1}, 16, v{A}")


def ln_compute(g, X):
    for r in range(52, 56):
        g(f"v_mov_b32 v{r}, 0")
    g("s_mov_b32 s9, 0x3f803f80")
    for n in range(36):
        g(f"v_dot2c_f32_bf16 v{52 + (n&1)}, s9, v{X+n}")
        g(f"v_dot2c_f32_bf16 v{54 + (n&1)}, v{X+n}, v{X+n}")
    g("s_nop 3")
    g("v_add_f32 v52, v52, v53")
    g("v_add_f32 v54, v54, v55")
    for pat in ("quad_perm:[1,0,3,2]", "quad_perm:[2,3,0,1]", "row_half_mirror"):
        g("s_nop 1")
        g(f"v_add_f32_dpp v52, v52, v52 {pat} row_mask:0xf bank_mask:0xf")
        g(f"v_add_f32_dpp v54, v54, v54 {pat} row_mask:0xf bank_mask:0xf")
    g(f"s_mov_b32 s9, {f32bits(1.0/576.0)}")
    g("v_mul_f32 v52, s9, v52")
    g("v_mul_f32 v54, s9, v54")
    g("v_fma_f32 v54, -v52, v52, v54")
    g("v_max_f32 v54, 0, v54")
    g(f"v_add_f32 v54, {f32bits(1e-5)}, v54")
    g("v_rsq_f32 v56, v54")
    g("s_nop 0")
    g("v_mov_b32 v57, v56")
    g("v_mul_f32 v58, v52, v56")
    g("v_sub_f32 v58, 0, v58")
    g("v_mov_b32 v59, v58")
    for n in range(36):
        t = 60 + 2 * (n % 4)
        g(f"v_lshlrev_b32 v{t}, 16, v{X+n}")
        g(f"v_and_b32 v{t+1}, 0xffff0000, v{X+n}")
        g(f"v_pk_fma_f32 {vr(t,2)}, {vr(t,2)}, v[56:57], v[58:59]")
        g(f"v_cvt_pk_bf16_f32 v{X+n}, v{t}, v{t+1}")


def ln_write(g, X, A):
    for i in range(9):
        g(f"ds_write_b64 v{A}, {vr(X+4*i,2)} offset:{i*128}")
        g(f"ds_write_b64 v{A+1}, {vr(X+2+4*i,2)} offset:{i*128}")


def ln_lane_setup(g):
    g("v_lshrrev_b32 v2, 3, v1")
    g("v_and_b32 v3, 7, v1")
    g("v_mul_u32_u24 v4, 1152, v2")
    g("v_lshl_add_u32 v4, v3, 4, v4")


def a_layernorm(g, opts):
    XS = [8, 68]
    ln_lane_setup(g)
    g(f"s_lshl_b32 s11, s{S_W4}, 4")
    g("s_add_u32 s12, s11, 8")
    g("v_and_b32 v48, 3, v1")
    g("v_lshlrev_b32 v48, 2, v48")
    g(f"v_add_u32 v48, {F_P}, v48")
    Lsk = g.new("lnskip")
    g(f"s_lshr_b32 s9, s{S_FS}, 1")
    g(f"s_cmp_eq_u32 s9, s{S_W4}")
    g(f"s_cbranch_scc1 {Lsk}")
    if opts.get("asleep"):
        g(f"s_sleep {opts['asleep']}")
    ln_load(g, XS[0], 11)
    ln_load(g, XS[1], 12)
    ln_addr(g, 44, 11)
    ln_addr(g, 46, 12)
    g("s_waitcnt vmcnt(9)")
    stamp(g, opts, 1)
    ln_compute(g, XS[0])
    g("s_waitcnt vmcnt(0)")
    ln_compute(g, XS[1])
    flag_wait(g, 48, 49, 2, "kvw")
    ln_write(g, XS[0], 44)
    ln_write(g, XS[1], 46)
    g.label(Lsk)
    flag_wait(g, 48, 49, 2, "kvw2")
    g(f"s_lshl_b32 s9, s{S_W4}, 2")
    g(f"s_add_u32 s9, s9, {F_A}")
    g("v_mov_b32 v50, s9")
    g("v_mov_b32 v51, 1")
    g("s_waitcnt lgkmcnt(0)")
    g("ds_write_b32 v50, v51")
    stamp(g, opts, 9)
    attn_setup(g, opts, sys.modules[__name__])
    attn_zero(g, opts, sys.modules[__name__])
    g("v_and_b32 v50, 1, v1")
    g("v_lshlrev_b32 v50, 2, v50")
    g(f"v_add_u32 v50, {F_P + 8}, v50")
    flag_wait(g, 50, 49, 4, "qst")
    g(f"v_add_u32 v48, {F_A - F_P}, v48")
    flag_wait(g, 48, 49, 1, "xn")
    stamp(g, opts, 2)


def f_kv(g, opts):
    aux = " sc1"
    ln_lane_setup(g)
    g(f"s_lshr_b32 s13, s{S_FS}, 1")
    g("s_lshl_b32 s11, s13, 4")
    g(f"s_lshl_b32 s12, s{S_W4}, 3")
    g("s_add_u32 s11, s11, s12")
    ln_load(g, 8, 11)
    ln_addr(g, 44, 11)
    g("v_and_b32 v48, 3, v1")
    g("v_lshlrev_b32 v48, 2, v48")
    g(f"v_add_u32 v48, {F_P}, v48")
    g(f"s_lshl_b32 s9, s{S_W4}, 2")
    g(f"s_add_u32 s9, s9, {F_P}")
    g("v_mov_b32 v47, s9")
    g("v_and_b32 v5, 15, v1")
    g("v_lshrrev_b32 v6, 4, v1")
    g("v_bfe_u32 v7, v5, 1, 3")
    g("v_xor_b32 v7, v7, v6")
    g("v_mul_u32_u24 v70, 1152, v5")
    g("s_mul_i32 s9, s13, 18432")
    g("v_add_u32 v70, s9, v70")
    g("v_xor_b32 v71, 4, v7")
    g("v_lshl_add_u32 v71, v71, 4, v70")
    g("v_lshl_add_u32 v70, v7, 4, v70")
    g("v_lshrrev_b32 v7, 2, v1")
    g("v_mul_u32_u24 v72, 48, v7")
    g("v_and_b32 v7, 3, v1")
    g("v_lshlrev_b32 v7, 3, v7")
    g(f"s_cmp_lg_u32 s{S_W4}, 0")
    g("s_cselect_b64 vcc, -1, 0")
    g("v_cndmask_b32 v7, v7, 40, vcc")
    g("v_add_u32 v72, v72, v7")
    g("s_cmp_lt_u32 s13, 2")
    g("s_cselect_b32 s9, 36864, 0")
    g("v_add_u32 v72, s9, v72")
    g("s_waitcnt vmcnt(0)")
    stamp(g, opts, 10)
    ln_compute(g, 8)
    ln_write(g, 8, 44)
    g("v_mov_b32 v46, 1")
    g("s_waitcnt lgkmcnt(0)")
    g("ds_write_b32 v47, v46")
    flag_wait(g, 48, 49, 1, "kvr")
    def rd(kk):
        b = 80 + 8 * (kk % 3)
        return [f"ds_read_b64_tr_b16 {vr(b,2)}, v72 offset:{kk*1536}",
                f"ds_read_b64_tr_b16 {vr(b+2,2)}, v72 offset:{kk*1536+768}",
                f"ds_read_b128 {vr(b+4,4)}, v{70+(kk&1)} offset:{XH + (kk>>1)*128}"]
    LVv, Lj = g.new("kv_v"), g.new("kv_j")
    g(f"s_bitcmp1_b32 s{S_FS}, 0")
    g(f"s_cbranch_scc1 {LVv}")
    for isv in range(2):
        if isv:
            g.label(LVv)
        for l in rd(0) + rd(1): g(l)
        for kk in range(18):
            if kk + 2 < 18:
                for l in rd(kk + 2): g(l)
                g("s_waitcnt lgkmcnt(6)")
            else:
                g(f"s_waitcnt lgkmcnt({3 if kk == 16 else 0})")
            b = 80 + 8 * (kk % 3)
            A, B = (vr(b+4,4), vr(b,4)) if isv else (vr(b,4), vr(b+4,4))
            g(f"v_mfma_f32_16x16x32_bf16 v[76:79], {A}, {B}, {'0' if kk == 0 else 'v[76:79]'}")
        if not isv:
            g(f"s_branch {Lj}")
    g.label(Lj)
    g("v_mov_b32 v46, 2")
    g("ds_write_b32 v47, v46")
    g(f"s_lshl_b32 s9, s{S_RB}, 1")
    g("s_lshr_b32 s10, s13, 1")
    g("s_add_u32 s9, s9, s10")
    g(f"s_mul_i32 s9, s9, {TILE_B}")
    g(f"s_add_u32 s9, s9, {WS_KV}")
    g("s_and_b32 s12, s13, 1")
    g("s_nop 4")
    g("v_cvt_pk_bf16_f32 v76, v76, v77")
    g("v_cvt_pk_bf16_f32 v77, v78, v79")
    Lc = [g.new("kvp") for _ in range(4)]
    g(f"s_bitcmp1_b32 s{S_FS}, 0")
    g(f"s_cbranch_scc1 {Lc[1]}")
    g("s_lshl_b32 s10, s12, 4")
    g("v_add_u32 v7, s10, v5")
    g(f"s_cmp_lg_u32 s{S_W4}, 0")
    g(f"s_cbranch_scc1 {Lc[0]}")
    g("v_lshrrev_b32 v2, 1, v6")
    g("v_lshl_add_u32 v7, v2, 5, v7")
    g("v_lshlrev_b32 v7, 4, v7")
    g("v_and_b32 v2, 1, v6")
    g("v_lshl_add_u32 v7, v2, 3, v7")
    g(f"buffer_store_dwordx2 v[76:77], v7, {sr(SRD_WS)}, s9 offen{aux}")
    g(f"s_branch {Lc[3]}")
    g.label(Lc[0])
    g("v_lshlrev_b32 v7, 2, v7")
    g("s_mov_b64 exec, 0xffff")
    g(f"buffer_store_dword v77, v7, {sr(SRD_WS)}, s9 offen offset:1024{aux}")
    g("s_mov_b64 exec, -1")
    g(f"s_branch {Lc[3]}")
    g.label(Lc[1])
    g(f"s_mul_i32 s10, s12, {VH_B}")
    g("s_add_u32 s9, s9, s10")
    g("v_and_b32 v2, 1, v6")
    g(f"v_mul_u32_u24 v7, {VG_B}, v2")
    g("v_lshl_add_u32 v7, v5, 4, v7")
    g("v_lshrrev_b32 v2, 1, v6")
    g("v_lshl_add_u32 v7, v2, 3, v7")
    g(f"s_cmp_lg_u32 s{S_W4}, 0")
    g(f"s_cbranch_scc1 {Lc[2]}")
    g(f"buffer_store_dwordx2 v[76:77], v7, {sr(SRD_WS)}, s9 offen offset:1152{aux}")
    g(f"s_branch {Lc[3]}")
    g.label(Lc[2])
    g("v_mov_b32 v2, 0x3f803f80")
    g("v_cmp_eq_u32 vcc, 4, v5")
    g("s_nop 1")
    g("v_cndmask_b32 v76, v76, v2, vcc")
    g("v_cndmask_b32 v77, v77, v2, vcc")
    g("v_cmp_eq_u32 vcc, 5, v5")
    g("s_nop 1")
    g("v_cndmask_b32 v76, v76, 0, vcc")
    g("v_cndmask_b32 v77, v77, 0, vcc")
    g("s_mov_b32 exec_lo, 0x003c003c")
    g("s_mov_b32 exec_hi, 0x003c003c")
    g(f"buffer_store_dwordx2 v[76:77], v7, {sr(SRD_WS)}, s9 offen offset:{1152+14*16}{aux}")
    g("s_mov_b64 exec, -1")
    g.label(Lc[3])
    if opts.get("fuse"):
        Lz = g.new("kvz")
        g(f"s_and_b32 s9, s{S_FS}, 1")
        g(f"s_add_u32 s9, s9, s{S_W4}")
        g("s_cmp_lg_u32 s9, 0")
        g(f"s_cbranch_scc1 {Lz}")
        g(f"s_lshl_b32 s9, s{S_RB}, 2")
        g(f"s_lshr_b32 s10, s{S_FS}, 1")
        g("s_add_u32 s9, s9, s10")
        g("s_lshl_b32 s9, s9, 7")
        g(f"s_add_u32 s9, s9, {WS_FLAG}")
        g("v_mov_b32 v2, 0")
        g("v_lshlrev_b32 v3, 2, v1")
        g("s_mov_b64 exec, 0xff")
        g(f"buffer_store_dword v2, v3, {sr(SRD_WS)}, s9 offen sc1")
        g("s_mov_b64 exec, -1")
        g.label(Lz)
    g("s_waitcnt vmcnt(0)")
    stamp(g, opts, 11)
    Lw1, Lad = g.new("arr1"), g.new("arrd")
    g(f"s_cmp_lg_u32 s{S_W4}, 0")
    g(f"s_cbranch_scc1 {Lw1}")
    g(f"v_mov_b32 v48, {F_P + 4}")
    flag_wait(g, 48, 49, 3, "arr")
    srd(g, SRD_DBG, P_DBG, 256)
    NSHD = opts.get("shards", 8)
    if opts.get("fastbar"):
        g("s_and_b32 s9, s2, 15")
        g("s_lshl_b32 s9, s9, 4")
        g("v_mov_b32 v3, s9")
        g("v_mov_b32 v4, 1")
        g("s_mov_b64 exec, 1")
        g(f"buffer_atomic_add v4, v3, {sr(SRD_DBG)}, 0 offen sc1")
        g(f"s_branch {Lad}")
    g(f"s_and_b32 s9, s2, {NSHD-1}")
    g(f"s_mul_i32 s9, s9, {128 // NSHD if NSHD > 1 else 0}")
    g("v_mov_b32 v3, s9")
    g("v_mov_b32 v4, 1")
    g("s_mov_b64 exec, 1")
    g(f"buffer_atomic_add v4, v3, {sr(SRD_DBG)}, 0 offen sc0 sc1")
    g("s_waitcnt vmcnt(0)")
    g("v_readfirstlane_b32 s9, v4")
    g(f"s_cmp_lg_u32 s9, {256 // NSHD - 1}")
    g(f"s_cbranch_scc1 {Lad}")
    g("v_mov_b32 v4, 1")
    g("v_mov_b32 v3, 0")
    if NSHD > 1:
        g(f"buffer_atomic_add v4, v3, {sr(SRD_DBG)}, 0 offen offset:4 sc0 sc1")
        g("s_waitcnt vmcnt(0)")
        g("v_readfirstlane_b32 s9, v4")
        g(f"s_cmp_lg_u32 s9, {NSHD - 1}")
        g(f"s_cbranch_scc1 {Lad}")
        g("v_mov_b32 v4, 1")
    g(f"buffer_store_dword v4, v3, {sr(SRD_DBG)}, 0 offen offset:128 sc1")
    g(f"s_branch {Lad}")
    g.label(Lw1)
    g("v_mov_b32 v46, 3")
    g("ds_write_b32 v47, v46")
    g.label(Lad)
    g("s_mov_b64 exec, -1")


def f_poll_go(g, opts):
    Ln = g.new("gsn")
    g(f"s_cmp_lg_u32 s{S_W4}, 1")
    g(f"s_cbranch_scc1 {Ln}")
    srd(g, SRD_DBG, P_DBG, 256)
    g("v_mov_b32 v3, 0")
    g("v_mov_b32 v4, 1")
    Lp, Ld = g.new("gpoll"), g.new("gpolld")
    g.label(Lp)
    g(f"buffer_load_dword v5, v3, {sr(SRD_DBG)}, 0 offen offset:128 sc1")
    g("s_waitcnt vmcnt(0)")
    g("v_cmp_ne_u32 vcc, 1, v5")
    g("s_nop 4")
    g(f"s_cbranch_vccz {Ld}")
    g(f"s_sleep {opts.get('psleep', 4)}")
    g(f"s_branch {Lp}")
    g.label(Ld)
    g(f"v_mov_b32 v2, {F_G}")
    g("ds_write_b32 v2, v4")
    if not opts.get("nopf"):
        g("s_lshr_b32 s9, s2, 3")
        g(f"s_mul_i32 s9, s9, {CHUNK_B}")
        g(f"s_add_u32 s9, s9, {WS_KV}")
        g("v_min_u32 v5, 38, v1")
        g("v_lshlrev_b32 v5, 7, v5")
        g(f"buffer_load_dword v250, v5, {sr(SRD_WS)}, s9 offen sc1")
    g.label(Ln)


def f_stage(g, opts):
    g(f"s_bitcmp1_b32 s{S_FS}, 0")
    g(f"s_cselect_b32 s{SRD_WK}, s{P_WV}, s{P_WK}")
    g(f"s_cselect_b32 s{SRD_WK+1}, s{P_WV+1}, s{P_WK+1}")
    g(f"s_and_b32 s{SRD_WK+1}, s{SRD_WK+1}, 0xffff")
    g(f"s_mov_b32 s{SRD_WK+2}, 20736")
    g(f"s_mov_b32 s{SRD_WK+3}, 0x00020000")
    for j in range(3):
        g(f"v_add_u32 v5, {64*j}, v1")
        g("v_mul_u32_u24 v6, 21846, v5")
        g("v_lshrrev_b32 v6, 16, v6")
        g("v_mul_u32_u24 v7, 3, v6")
        g("v_sub_u32 v7, v5, v7")
        g("v_lshlrev_b32 v7, 4, v7")
        g("v_min_u32 v7, 20, v7")
        g(f"v_mad_u32_u24 v{44+j}, v6, 36, v7")
    g(f"s_lshr_b32 s13, s{S_FS}, 1")
    g("s_cmp_lt_u32 s13, 2")
    g("s_cselect_b32 s12, 36864, 0")
    g(f"s_and_b32 s11, s{S_W4}, 1")
    for n in range(5):
        Ls = g.new("kws")
        if n == 4:
            g("s_cmp_lg_u32 s11, 0")
            g(f"s_cbranch_scc1 {Ls}")
        g(f"s_add_u32 s14, s11, {2*n}")
        g(f"s_mul_i32 s9, s14, {64*36}")
        g("s_mul_i32 s10, s14, 3072")
        g("s_add_u32 s10, s10, s12")
        for j in range(3):
            g(f"s_add_u32 m0, s10, {j*1024}")
            g("s_nop 0")
            g(f"buffer_load_dwordx4 v{44+j}, {sr(SRD_WK)}, s9 offen lds")
        g.label(Ls)
    for j in range(9):
        g(f"v_add_u32 v5, {64*j}, v1")
        g("v_mul_u32_u24 v6, 7282, v5")
        g("v_lshrrev_b32 v6, 16, v6")
        g("v_mul_u32_u24 v7, 9, v6")
        g("v_sub_u32 v7, v5, v7")
        g("v_mul_u32_u24 v6, 1152, v6")
        g(f"v_lshl_add_u32 v{50+j}, v7, 4, v6")
        if j % 4:
            g(f"v_subrev_u32 v{50+j}, {(j%4)*1024}, v{50+j}")
    g(f"s_lshl_b32 s9, s{S_W4}, 2")
    g(f"s_add_u32 s9, s9, {F_P}")
    g("v_mov_b32 v47, s9")
    g("v_mov_b32 v46, 2")
    g(f"s_mul_i32 s12, s{S_FS}, 144")
    NE = opts.get("qearly", 0)
    for n in range(5):
        if n == NE:
            g(f"s_waitcnt vmcnt({9*NE})")
            g("ds_write_b32 v47, v46")
            stamp(g, opts, 10)
        Ls = g.new("qs")
        if n == 4:
            g("s_cmp_lg_u32 s11, 0")
            g(f"s_cbranch_scc1 {Ls}")
        g(f"s_add_u32 s14, s11, {2*n}")
        g(f"s_mul_i32 s9, s14, {64*1152}")
        g("s_add_u32 s9, s9, s12")
        g("s_add_u32 s10, s14, 8")
        g("s_cmp_ge_u32 s10, 9")
        g("s_cselect_b32 s13, 9, 0")
        g("s_sub_u32 s10, s10, s13")
        g("s_mul_i32 s10, s10, 9216")
        g(f"s_add_u32 s10, s10, {QST}")
        for j in range(9):
            if j % 4 == 0:
                g(f"s_add_u32 m0, s10, {(j//4)*4096}")
                g("s_nop 0")
            g(f"buffer_load_dwordx4 v{50+j}, {sr(SRD_WQ)}, s9 offen offset:{(j%4)*1024} lds")
        g.label(Ls)
    stamp(g, opts, 11)


A_Q1 = [16, 20]
A_Q2 = [24, 28]
A_S = [32, 48]
A_P = [64, 72]
A_O = [80, 96]
def A_KV(st, u):
    return 112 + (st * 2 + u) * 16
A_M = [176, 177]
A_AK1, A_AK2, A_AV = 178, 179, 180
A_AFL, A_FLD, A_FLW = 181, 182, 183
A_DV0, A_DV1 = 184, 185
A_T = 186
A_FV = 200
QW = 128
QX = 236


def q_phase(g, opts):
    QA = [32, 48]
    AB = [112, 120]
    BB = [128, 144]
    def reads(kk):
        b = kk & 1
        off = ((kk + 16) % 18) * 4608
        st = 0
        if off >= 65536 - 4608:
            off -= 13 * 4608; st = 1
        L = []
        for m in range(2):
            for jh in range(2):
                L.append(f"ds_read_b64_tr_b16 {vr(AB[b]+m*4+jh*2,2)}, v{Q_VTA+st} offset:{off + (m*8+jh*16)*144}")
            for rt in range(2):
                L.append(f"ds_read_b128 {vr(BB[b]+(rt*2+m)*4,4)}, v{Q_VBA+(kk&1)*2+m} offset:{XH + rt*36864 + (kk>>1)*128}")
        return L
    def mfmas(kk):
        b = kk & 1
        L = []
        for m in range(2):
            for rt in range(2):
                c = "0" if (kk == 0 and m == 0) else vr(QA[rt], 16)
                L.append(f"v_mfma_f32_32x32x16_bf16 {vr(QA[rt],16)}, {vr(AB[b]+m*4,4)}, {vr(BB[b]+(rt*2+m)*4,4)}, {c}")
        return L
    PK = opts.get("pollk", 10)
    for l in reads(0): g(l)
    for l in reads(1): g(l)
    for kk in range(18):
        g("s_waitcnt lgkmcnt(8)" if kk < 16 else "s_waitcnt lgkmcnt(8)" if kk == 16 else "s_waitcnt lgkmcnt(0)")
        if kk == 2:
            g("v_mov_b32 v3, 2")
            g("ds_write_b32 v166, v3")
        if kk == PK:
            srd(g, SRD_DBG, P_DBG, 256)
            g("v_and_b32 v202, 15, v1")
            g("v_lshlrev_b32 v202, 4, v202")
            g(f"buffer_load_dword v203, v202, {sr(SRD_DBG)}, 0 offen sc1")
            g("ds_read_b32 v201, v167")
        if kk == PK + 4:
            Lq = g.new("qearly")
            g("s_waitcnt vmcnt(0)")
            g("v_cmp_gt_u32 vcc, 16, v203")
            g("v_cmp_gt_u32 s[90:91], 2, v201")
            g("s_nop 3")
            g("s_or_b64 vcc, vcc, s[90:91]")
            g(f"s_cbranch_vccnz {Lq}")
            kv_first(g, opts, sys.modules[__name__])
            g.label(Lq)
        if kk == 17:
            g(f"ds_write_b32 v{A_FLW}, v{A_FV}")
        mf = mfmas(kk)
        rd = reads(kk + 2) if kk + 2 < 18 else []
        g(mf[0]); g(mf[1])
        for l in rd[:2]: g(l)
        g(mf[2])
        for l in rd[2:4]: g(l)
        g(mf[3])
        for l in rd[4:]: g(l)
    g(f"s_mov_b32 s9, {f32bits(CSCALE)}")
    g("s_nop 15")
    for rt in range(2):
        for r in range(16):
            g(f"v_mul_f32 v{QA[rt]+r}, s9, v{QA[rt]+r}")
    Lodd, Lqd = g.new("odd"), g.new("qdone")
    g(f"s_bitcmp1_b32 s{S_W4}, 0")
    g(f"s_cbranch_scc1 {Lodd}")
    for odd in range(2):
        if odd:
            g.label(Lodd)
        for rt in range(2):
            q = QA[rt] + 2 * odd
            for p in range(4):
                g(f"v_cvt_pk_bf16_f32 v{A_Q1[rt]+p}, v{q+2*p}, v{q+2*p+1}")
            t = QA[rt] + (14 if odd else 8)
            g(f"v_cvt_pk_bf16_f32 v{A_T+8}, v{t}, v{t+1}")
            g(f"v_cndmask_b32 v{A_Q2[rt]}, 0, v{A_T+8}, s[{S_LO}:{S_LO+1}]")
        if not odd:
            g(f"s_branch {Lqd}")
    g.label(Lqd)
    for rt in range(2):
        for p in range(1, 4):
            g(f"v_mov_b32 v{A_Q2[rt]+p}, 0")


Q_VBA = 160
Q_VTA = 164
def q_setup(g, opts):
    g("v_and_b32 v2, 31, v1")
    g("v_lshrrev_b32 v3, 5, v1")
    g("v_bfe_u32 v4, v2, 1, 3")
    g("v_xor_b32 v4, v4, v3")
    g("v_mul_u32_u24 v5, 1152, v2")
    for e in range(2):
        for m in range(2):
            g(f"v_xor_b32 v6, {4*e+2*m}, v4")
            g(f"v_lshl_add_u32 v{Q_VBA+e*2+m}, v6, 4, v5")
    g("v_bfe_u32 v4, v1, 2, 2")
    g("v_lshl_add_u32 v4, v3, 2, v4")
    g("v_bfe_u32 v5, v1, 4, 1")
    g("v_and_b32 v6, 3, v1")
    g("v_lshl_add_u32 v5, v5, 2, v6")
    g(f"s_mul_i32 s9, s{S_W4}, 36")
    g(f"s_and_b32 s10, s{S_W4}, 1")
    g("s_lshl_b32 s10, s10, 2")
    g("s_sub_u32 s9, s9, s10")
    g(f"s_add_u32 s9, s9, {QST}")
    tbl_e = sum(v << (4*i) for i, v in enumerate([0,2,1,3,4,4,4,4]))
    tbl_o = sum(v << (4*i) for i, v in enumerate([0,2,1,3,2,4,4,4]))
    g(f"s_mov_b32 s11, {tbl_e}")
    g("s_cmp_lg_u32 s10, 0")
    g(f"s_cselect_b32 s11, {tbl_o}, s11")
    g("v_lshlrev_b32 v5, 2, v5")
    g("v_bfe_u32 v5, s11, v5, 4")
    g("v_lshlrev_b32 v6, 3, v5")
    g("v_add_u32 v6, s9, v6")
    g("v_mul_u32_u24 v4, 144, v4")
    g(f"v_add_u32 v{Q_VTA}, v4, v6")
    g(f"v_add_u32 v{Q_VTA+1}, {13*4608}, v{Q_VTA}")
    g("v_and_b32 v4, 3, v1")
    g("v_lshlrev_b32 v4, 2, v4")
    g(f"v_add_u32 v{A_AFL}, {F_KV}, v4")
    g(f"s_lshl_b32 s9, s{S_W4}, 2")
    g(f"s_add_u32 s9, s9, {F_KV}")
    g(f"v_mov_b32 v{A_FLW}, s9")
    g(f"v_mov_b32 v{A_FV}, 1")
    g(f"v_add_u32 v166, {F_A - F_KV}, v{A_FLW}")
    g(f"v_add_u32 v167, {F_A - F_KV}, v{A_AFL}")


def global_kv_sync(g, opts):
    Lp, Ld = g.new("gpoll"), g.new("gpolld")
    srd(g, SRD_DBG, P_DBG, 256)
    g("v_and_b32 v202, 15, v1")
    g("v_lshlrev_b32 v202, 4, v202")
    g.label(Lp)
    g(f"buffer_load_dword v203, v202, {sr(SRD_DBG)}, 0 offen sc1")
    g("s_waitcnt vmcnt(0)")
    g("v_cmp_gt_u32 vcc, 16, v203")
    g("s_nop 4")
    g(f"s_cbranch_vccz {Ld}")
    g(f"s_sleep {opts.get('psleep', 4)}")
    g(f"s_branch {Lp}")
    g.label(Ld)
    g(f"v_add_u32 v2, {F_A - F_KV}, v{A_AFL}")
    flag_wait(g, 2, A_FLD, 2, "gsa")


def reduce_setup(g, s_ct):
    srd(g, SRD_B1, P_B2, 1152)
    srd(g, SRD_W1, P_OUT, 2359296)
    g("v_lshlrev_b32 v2, 4, v1")
    g(f"s_lshr_b32 s10, s{S_FS}, 1")
    g(f"s_and_b32 s11, s{S_FS}, 1")
    g("s_mul_i32 s12, s10, 288")
    g(f"s_lshl_b32 s9, s{s_ct}, 5")
    g("s_add_u32 s12, s12, s9")
    g("v_lshrrev_b32 v3, 4, v1")
    g("v_lshlrev_b32 v3, 3, v3")
    g("v_add_u32 v3, s12, v3")
    g("v_and_b32 v4, 15, v1")
    g("v_mul_u32_u24 v4, 1152, v4")
    g("v_add_u32 v4, v4, v3")
    g(f"s_lshl_b32 s13, s{S_RB}, 1")
    g("s_add_u32 s13, s13, s11")
    g("s_mul_i32 s13, s13, 36864")
    g("s_add_u32 s14, s13, 18432")


def reduce_xb(g, xb, coff):
    g(f"buffer_load_dwordx2 {vr(xb,2)}, v3, {sr(SRD_B1)}, 0 offen offset:{coff}")
    g(f"buffer_load_dwordx2 {vr(xb+2,2)}, v4, {sr(SRD_X)}, s13 offen offset:{coff}")
    g(f"buffer_load_dwordx2 {vr(xb+4,2)}, v4, {sr(SRD_X)}, s14 offen offset:{coff}")


def reduce_loads(g, s_ct, pb, dct):
    g(f"s_mul_i32 s9, s{S_RB}, 589824")
    g("s_mul_i32 s12, s10, 18")
    g("s_add_u32 s12, s12, s11")
    g(f"s_lshl_b32 s15, s{s_ct}, 1")
    g("s_add_u32 s12, s12, s15")
    g("s_lshl_b32 s12, s12, 10")
    g("s_add_u32 s9, s9, s12")
    g(f"s_add_u32 s9, s9, {WS_PART + dct*2048}")
    for f2 in range(8):
        g(f"buffer_load_dwordx4 {vr(pb+f2*4,4)}, v2, {sr(SRD_WS)}, s9 offen sc1")
        if f2 < 7:
            g("s_add_u32 s9, s9, 73728")


def reduce_sum(g, pb, xb, ac, tm, coff, stride=4, waits=True):
    def unpack(dst, src):
        g(f"v_lshlrev_b32 v{dst}, 16, v{src}")
        g(f"v_and_b32 v{dst+1}, 0xffff0000, v{src}")
    for d in range(4):
        unpack(ac + 2 * d, xb + (d & 1))
        unpack(tm, xb + 2 + d)
        g(f"v_pk_add_f32 {vr(ac+2*d,2)}, {vr(ac+2*d,2)}, {vr(tm,2)}")
    for f2 in range(8):
        if waits:
            g(f"s_waitcnt vmcnt({7-f2})")
        for d in range(4):
            unpack(tm + 2 * (d & 1), pb + stride * f2 + d)
            g(f"v_pk_add_f32 {vr(ac+2*d,2)}, {vr(ac+2*d,2)}, {vr(tm+2*(d&1),2)}")
    for d in range(4):
        g(f"v_cvt_pk_bf16_f32 v{tm+4+d}, v{ac+2*d}, v{ac+2*d+1}")
    g(f"buffer_store_dwordx2 {vr(tm+4,2)}, v4, {sr(SRD_W1)}, s13 offen offset:{coff}")
    g(f"buffer_store_dwordx2 {vr(tm+6,2)}, v4, {sr(SRD_W1)}, s14 offen offset:{coff}")


from gen_attn import attention, attn_setup, attn_zero, kv_first
from gen_ffn import ffn, ffn_setup


def main_kernel(name, opts):
    g = G()
    me = sys.modules[__name__]
    head(g, opts)
    Lfl = g.new("noflag")
    g(f"s_cmp_lg_u32 s{S_WV}, 0")
    g(f"s_cbranch_scc1 {Lfl}")
    g("v_lshlrev_b32 v5, 2, v1")
    g("v_and_b32 v5, 127, v5")
    g(f"v_add_u32 v5, {FLAGS}, v5")
    g("v_mov_b32 v6, 0")
    g("ds_write_b32 v5, v6")
    g("s_waitcnt lgkmcnt(0)")
    g.label(Lfl)
    g("s_barrier")
    Lf = g.new("fwaves")
    g(f"s_cmp_ge_u32 s{S_WV}, 4")
    g(f"s_cbranch_scc1 {Lf}")
    touches(g, opts)
    q_setup(g, opts)
    a_layernorm(g, opts)
    q_phase(g, opts)
    stamp(g, opts, 3)
    attention(g, opts, me)
    stamp_flush(g, opts)
    g("s_branch L_end")
    g.label(Lf)
    g("s_setprio 3")
    srd(g, SRD_WQ, P_WQ, 663552)
    Lst, Lfj = g.new("fstage"), g.new("fjoin")
    g(f"s_cmp_ge_u32 s{S_W4}, 2")
    g(f"s_cbranch_scc1 {Lst}")
    f_kv(g, opts)
    g(f"s_branch {Lfj}")
    g.label(Lst)
    f_stage(g, opts)
    g.label(Lfj)
    g("s_setprio 0")
    srd(g, SRD_WO, P_WO, 663552)
    srd(g, SRD_W1, P_W1, 5308416)
    srd(g, SRD_W2, P_W2, 5308416)
    srd(g, SRD_B1, P_B1, 9216)
    g(f"s_mul_i32 s9, s{S_W4}, 288")
    g(f"s_mul_i32 s10, s{S_FS}, 1152")
    g("s_add_u32 s9, s9, s10")
    g("v_lshrrev_b32 v5, 4, v1")
    g("v_lshlrev_b32 v5, 3, v5")
    for ct in range(9):
        g(f"buffer_load_dwordx2 {vr(160+2*ct,2)}, v5, {sr(SRD_B1)}, s9 offen offset:{ct*32}")
    touch_w1(g, opts)
    fill = ffn_setup(g, opts, me)
    Lnw = g.new("fnw")
    g(f"s_cmp_lt_u32 s{S_W4}, 2")
    g(f"s_cbranch_scc1 {Lnw}")
    g(f"s_lshl_b32 s9, s{S_W4}, 2")
    g(f"s_add_u32 s9, s9, {F_P}")
    g("v_mov_b32 v5, s9")
    g("v_mov_b32 v6, 4")
    g(f"s_waitcnt vmcnt({9 if opts.get('nopf') else 11 if opts.get('map2') else 10})")
    g("ds_write_b32 v5, v6")
    g.label(Lnw)
    stamp(g, opts, 1)
    if not opts.get("fastbar"):
        f_poll_go(g, opts)
    stamp(g, opts, 12)
    g("v_and_b32 v5, 3, v1")
    g("v_lshlrev_b32 v5, 2, v5")
    g(f"v_add_u32 v5, {F_KV}, v5")
    flag_wait(g, 5, 6, 1, "ring")
    for o in fill:
        for l in o: g(l)
    opts["npf"] = 0
    ffn(g, opts, me)
    stamp_flush(g, opts)
    g.label("L_end")
    g("s_endpgm")
    txt = g.text().replace("L_", f"L{opts['tag']}_")
    return f"""
.globl {name}
.p2align 8
.type {name},@function
{name}:
{txt}
"""


def reduce_kernel(name, opts={}):
    g = G()
    g("s_cmp_ge_u32 s2, 576")
    g("s_cbranch_scc1 LR_end")
    if opts.get("stamp"):
        g("s_memrealtime s[40:41]")
    g("s_load_dwordx2 s[16:17], s[0:1], 0")
    g("s_load_dwordx2 s[18:19], s[0:1], 72")
    g("s_load_dwordx2 s[20:21], s[0:1], 80")
    g("s_load_dwordx2 s[22:23], s[0:1], 96")
    g("v_and_b32 v1, 63, v0")
    g("v_lshrrev_b32 v2, 6, v0")
    g("s_nop 0")
    g("v_readfirstlane_b32 s3, v2")
    g("s_lshl_b32 s4, s2, 2")
    g("s_add_u32 s4, s4, s3")
    g("s_mul_i32 s5, s4, 3641")
    g("s_lshr_b32 s5, s5, 16")
    g("s_mul_i32 s6, s5, 18")
    g("s_sub_u32 s6, s4, s6")
    g("s_lshr_b32 s7, s5, 2")
    g("s_and_b32 s8, s5, 3")
    g("s_waitcnt lgkmcnt(0)")
    srd(g, 24, 16, 2359296)
    srd(g, 28, 18, 1152)
    srd(g, 32, 20, 2359296)
    srd(g, 36, 22, WS_SIZE)
    g("s_mul_i32 s9, s7, 589824")
    g("s_mul_i32 s10, s8, 18")
    g("s_add_u32 s10, s10, s6")
    g("s_lshl_b32 s10, s10, 10")
    g("s_add_u32 s9, s9, s10")
    g(f"s_add_u32 s9, s9, {WS_PART}")
    g("v_lshlrev_b32 v2, 4, v1")
    for fs in range(8):
        g(f"buffer_load_dwordx4 {vr(8+4*fs,4)}, v2, s[36:39], s9 offen")
        if fs < 7:
            g("s_add_u32 s9, s9, 73728")
    g("s_lshr_b32 s10, s6, 1")
    g("s_and_b32 s11, s6, 1")
    g("s_mul_i32 s12, s8, 288")
    g("s_lshl_b32 s10, s10, 5")
    g("s_add_u32 s12, s12, s10")
    g("v_lshrrev_b32 v3, 4, v1")
    g("v_lshlrev_b32 v3, 3, v3")
    g("v_add_u32 v3, s12, v3")
    g("s_lshl_b32 s13, s7, 1")
    g("s_add_u32 s13, s13, s11")
    g("s_mul_i32 s13, s13, 36864")
    g("v_and_b32 v4, 15, v1")
    g("v_mul_u32_u24 v4, 1152, v4")
    g("v_add_u32 v4, v4, v3")
    g("s_add_u32 s14, s13, 18432")
    g("buffer_load_dwordx2 v[40:41], v3, s[28:31], 0 offen")
    g("buffer_load_dwordx2 v[42:43], v4, s[24:27], s13 offen")
    g("buffer_load_dwordx2 v[44:45], v4, s[24:27], s14 offen")
    g("s_waitcnt vmcnt(0)")
    def unpack(dst, src):
        g(f"v_lshlrev_b32 v{dst}, 16, v{src}")
        g(f"v_and_b32 v{dst+1}, 0xffff0000, v{src}")
    for d in range(4):
        unpack(48 + 2 * d, 8 + d)
    for fs in range(1, 8):
        for d in range(4):
            unpack(56, 8 + 4 * fs + d)
            g(f"v_pk_add_f32 {vr(48+2*d,2)}, {vr(48+2*d,2)}, v[56:57]")
    for d in range(4):
        unpack(56, 40 + (d & 1))
        g(f"v_pk_add_f32 {vr(48+2*d,2)}, {vr(48+2*d,2)}, v[56:57]")
        unpack(56, 42 + d)
        g(f"v_pk_add_f32 {vr(48+2*d,2)}, {vr(48+2*d,2)}, v[56:57]")
    for d in range(4):
        g(f"v_cvt_pk_bf16_f32 v{60+d}, v{48+2*d}, v{49+2*d}")
    g("buffer_store_dwordx2 v[60:61], v4, s[32:35], s13 offen")
    g("buffer_store_dwordx2 v[62:63], v4, s[32:35], s14 offen")
    if opts.get("stamp"):
        g("s_waitcnt vmcnt(0)")
        g("s_memrealtime s[42:43]")
        g("s_waitcnt lgkmcnt(0)")
        g("v_mov_b32 v8, s40")
        g("v_mov_b32 v9, s42")
        g("v_mov_b32 v2, 0")
        g("s_lshl_b32 s4, s4, 3")
        g(f"s_add_u32 s4, s4, {WS_DBG + (1<<20) + (2<<18)}")
        g("s_mov_b64 exec, 1")
        g("buffer_store_dwordx2 v[8:9], v2, s[36:39], s4 offen")
    g.label("LR_end")
    g("s_endpgm")
    for u in range(2304):
        assert (u * 3641) >> 16 == u // 18
    return f"""
.globl {name}
.p2align 8
.type {name},@function
{name}:
{g.text()}
"""


def kd(name, vgpr, sgpr=100):
    return f"""
.p2align 6
.amdhsa_kernel {name}
  .amdhsa_next_free_vgpr {vgpr}
  .amdhsa_next_free_sgpr {sgpr}
  .amdhsa_accum_offset {vgpr}
  .amdhsa_group_segment_fixed_size 0
  .amdhsa_kernarg_size 104
  .amdhsa_user_sgpr_count 2
  .amdhsa_user_sgpr_kernarg_segment_ptr 1
  .amdhsa_system_sgpr_workgroup_id_x 1
.end_amdhsa_kernel
"""


def build(mode):
    hdr = []
    body = []
    kds = []
    def add(name, code, grid, block, lds, vgpr):
        hdr.append(f"; @launch kernel={name} grid=({grid},1,1) block=({block},1,1) lds={lds}")
        body.append(code)
        kds.append(kd(name, vgpr))
    o = dict(tag="M", publish=True, inkernel=True)
    for m in mode.split(","):
        if "=" in m:
            k, v = m.split("="); o[k] = int(v)
        elif m: o[m] = True
    if o.get("fuse"):
        nm = KN + "_kernel"
        add(nm, main_kernel(nm, o), 256, 512, LDS_SIZE, 256)
        hdr[-1] = f"; @launch grid=(256,1,1) block=(512,1,1) lds={LDS_SIZE}"
    else:
        add("main_kernel", main_kernel("main_kernel", o), 256, 512, LDS_SIZE, 256)
    if not o.get("fuse"):
        add("reduce_kernel", reduce_kernel("reduce_kernel", o), 576, 256, 0, 64)
    out = "\n".join(hdr) + '\n.amdgcn_target "amdgcn-amd-amdhsa--gfx950"\n.text\n' + "\n".join(body) + '\n.section .rodata,"a"\n' + "\n".join(kds)
    return out


if __name__ == "__main__":
    mode = sys.argv[1]
    open(sys.argv[2], "w").write(build(mode))
```

```python
def attn_setup(g, opts, M):
    vr, sr = M.vr, M.sr
    S_RB, S_FS, S_WV, S_W4, S_LO = M.S_RB, M.S_FS, M.S_WV, M.S_W4, M.S_LO
    Q1, Q2, S, P, O, KV = M.A_Q1, M.A_Q2, M.A_S, M.A_P, M.A_O, M.A_KV
    AM, AK1, AK2, AV = M.A_M, M.A_AK1, M.A_AK2, M.A_AV
    AFL, FLD, FLW, DV, T, FV = M.A_AFL, M.A_FLD, M.A_FLW, M.A_DV0, M.A_T, M.A_FV
    S_C, S_THR, S_DOFF, S_M0B, S_LT = 84, 85, 86, 87, 88
    S_CK = [90, 92]
    LO = f"s[{S_LO}:{S_LO+1}]"
    CH, TB = M.CHUNK_B, M.TILE_B
    ldaux = " sc1" if opts.get("inkernel") else ""

    g("v_and_b32 v2, 31, v1")
    g("v_lshrrev_b32 v3, 5, v1")
    g(f"v_lshlrev_b32 v4, 4, v1")
    g(f"v_add_u32 v{AK1}, {M.KVR}, v4")
    g(f"v_lshlrev_b32 v4, 2, v2")
    g(f"v_add_u32 v{AK2}, {M.KVR + 1024}, v4")
    g("v_min_u32 v4, 19, v2")
    g("v_cmp_eq_u32 vcc, 22, v2")
    g("s_nop 1")
    g("v_cndmask_b32 v4, v4, 18, vcc")
    g("v_lshlrev_b32 v4, 4, v4")
    g(f"v_mul_u32_u24 v5, {M.VG_B}, v3")
    g("v_add_u32 v4, v4, v5")
    g(f"v_add_u32 v{AV}, {M.KVR + 1152}, v4")
    g(f"s_mul_i32 s9, s{S_W4}, {76*16}")
    g(f"v_lshlrev_b32 v4, 4, v1")
    g(f"v_add_u32 v{DV}, s9, v4")
    g(f"s_add_u32 s{S_M0B}, s9, {M.KVR}")
    g(f"s_mov_b32 s{S_LT}, {M.f32bits(M.LTHR) if not opts.get('norare') else 0x7f800000}")
    AD = 204
    g("v_and_b32 v2, 31, v1")
    g("v_lshrrev_b32 v3, 5, v1")
    g(f"v_mul_u32_u24 v4, {M.OSTR}, v2")
    g(f"v_add_u32 v4, {M.OREG}, v4")
    g(f"s_mul_i32 s9, s{S_W4}, 18")
    g("v_lshlrev_b32 v5, 2, v3")
    g("v_add_u32 v5, s9, v5")

    for p, dd in enumerate((0, 2, 8, 10, 16)):
        g(f"v_add_u32 v6, {dd}, v5")
        g("v_lshrrev_b32 v7, 5, v6")
        g(f"v_lshl_add_u32 v{AD+p}, v7, 6, v4")
        g("v_bfe_u32 v7, v6, 2, 2")
        g(f"v_lshl_add_u32 v{AD+p}, v7, 4, v{AD+p}")
        g("v_bfe_u32 v7, v6, 4, 1")
        g(f"v_lshl_add_u32 v{AD+p}, v7, 3, v{AD+p}")
        g("v_and_b32 v7, 3, v6")
        g(f"v_lshl_add_u32 v{AD+p}, v7, 1, v{AD+p}")
    g("v_and_b32 v6, 15, v1")
    g(f"s_lshl_b32 s9, s{S_W4}, 4")
    g("v_add_u32 v6, s9, v6")
    g(f"v_mul_u32_u24 v6, {M.OSTR}, v6")
    g(f"v_add_u32 v6, {M.OREG + 128}, v6")
    g("v_lshrrev_b32 v7, 4, v1")
    g("v_lshl_add_u32 v209, v7, 4, 16")
    g("v_add_u32 v210, 8, v209")
    g("v_cmp_eq_u32 vcc, 0, v7")
    g("v_cmp_eq_u32 s[92:93], 3, v7")
    g("s_nop 1")
    g("s_or_b64 vcc, vcc, s[92:93]")
    g("s_nop 1")
    g("v_cndmask_b32 v209, v209, 8, vcc")
    g("v_cndmask_b32 v210, v210, 24, vcc")
    g("v_add_u32 v209, v209, v6")
    g("v_add_u32 v210, v210, v6")

    g(f"s_mov_b32 s{S_DOFF}, {M.WS_KV}")
    g("s_mov_b32 s89, 0")


def attn_zero(g, opts, M):
    vr, sr = M.vr, M.sr
    S_RB, S_FS, S_WV, S_W4, S_LO = M.S_RB, M.S_FS, M.S_WV, M.S_W4, M.S_LO
    Q1, Q2, S, P, O, KV = M.A_Q1, M.A_Q2, M.A_S, M.A_P, M.A_O, M.A_KV
    AM, AK1, AK2, AV = M.A_M, M.A_AK1, M.A_AK2, M.A_AV
    AFL, FLD, FLW, DV, T, FV = M.A_AFL, M.A_FLD, M.A_FLW, M.A_DV0, M.A_T, M.A_FV
    S_C, S_THR, S_DOFF, S_M0B, S_LT = 84, 85, 86, 87, 88
    S_CK = [90, 92]
    LO = f"s[{S_LO}:{S_LO+1}]"
    CH, TB = M.CHUNK_B, M.TILE_B
    ldaux = " sc1" if opts.get("inkernel") else ""

    for rt in range(2):
        for r in range(16):
            g(f"v_mov_b32 v{O[rt]+r}, 0")
        for r in range(8):
            g(f"v_mov_b32 v{P[rt]+r}, 0")


def kv_first(g, opts, M):
    vr, sr = M.vr, M.sr
    S_RB, S_FS, S_WV, S_W4, S_LO = M.S_RB, M.S_FS, M.S_WV, M.S_W4, M.S_LO
    Q1, Q2, S, P, O, KV = M.A_Q1, M.A_Q2, M.A_S, M.A_P, M.A_O, M.A_KV
    AM, AK1, AK2, AV = M.A_M, M.A_AK1, M.A_AK2, M.A_AV
    AFL, FLD, FLW, DV, T, FV = M.A_AFL, M.A_FLD, M.A_FLW, M.A_DV0, M.A_T, M.A_FV
    S_C, S_THR, S_DOFF, S_M0B, S_LT = 84, 85, 86, 87, 88
    S_CK = [90, 92]
    LO = f"s[{S_LO}:{S_LO+1}]"
    CH, TB = M.CHUNK_B, M.TILE_B
    ldaux = " sc1" if opts.get("inkernel") else ""

    if not opts.get("nopf"):
        Lt = g.new("kvt")
        g(f"s_cmp_lg_u32 s{S_W4}, 3")
        g(f"s_cbranch_scc1 {Lt}")
        g("s_lshr_b32 s9, s2, 3")
        g(f"s_mul_i32 s9, s9, {CH}")
        g(f"s_add_u32 s9, s9, {M.WS_KV}")
        g("v_min_u32 v5, 38, v1")
        g("v_lshlrev_b32 v5, 7, v5")
        g(f"buffer_load_dword v203, v5, {sr(M.SRD_WS)}, s9 offen sc1")
        g.label(Lt)
    for slot in range(3):
        for l in [f"s_add_u32 m0, s{S_M0B}, {slot*CH}", "s_nop 0",
                  f"buffer_load_dwordx4 v{DV}, {sr(M.SRD_WS)}, s{S_DOFF} offen{ldaux} lds",
                  "s_mov_b64 exec, 0xfff",
                  f"buffer_load_dwordx4 v{DV}, {sr(M.SRD_WS)}, s{S_DOFF} offen offset:1024{ldaux} lds",
                  "s_mov_b64 exec, -1",
                  f"s_add_u32 s{S_DOFF}, s{S_DOFF}, {CH}"]:
            g(l)
    g("s_mov_b32 s89, 1")


def attention(g, opts, M):
    if opts.get("noattn"):
        return
    vr, sr = M.vr, M.sr
    S_RB, S_FS, S_WV, S_W4, S_LO = M.S_RB, M.S_FS, M.S_WV, M.S_W4, M.S_LO
    Q1, Q2, S, P, O, KV = M.A_Q1, M.A_Q2, M.A_S, M.A_P, M.A_O, M.A_KV
    AM, AK1, AK2, AV = M.A_M, M.A_AK1, M.A_AK2, M.A_AV
    AFL, FLD, FLW, DV, T, FV = M.A_AFL, M.A_FLD, M.A_FLW, M.A_DV0, M.A_T, M.A_FV
    S_C, S_THR, S_DOFF, S_M0B, S_LT = 84, 85, 86, 87, 88
    S_CK = [90, 92]
    LO = f"s[{S_LO}:{S_LO+1}]"
    CH, TB = M.CHUNK_B, M.TILE_B
    ldaux = " sc1" if opts.get("inkernel") else ""

    for st in range(2):
        for u in range(2):
            b = KV(st, u)
            g(f"v_mov_b32 v{b+5}, 0x3f803f80")
            g(f"v_mov_b32 v{b+6}, 0x3f80")
            g(f"v_mov_b32 v{b+7}, 0")
    for r in range(4):
        g(f"v_mov_b32 v{KV(1,1)+12+r}, 0")
    AD = 204
    def dma(slot):
        return [[f"s_add_u32 m0, s{S_M0B}, {slot*CH}", "s_nop 0",
                 f"buffer_load_dwordx4 v{DV}, {sr(M.SRD_WS)}, s{S_DOFF} offen{ldaux} lds"],
                ["s_mov_b64 exec, 0xfff",
                 f"buffer_load_dwordx4 v{DV}, {sr(M.SRD_WS)}, s{S_DOFF} offen offset:1024{ldaux} lds",
                 "s_mov_b64 exec, -1",
                 f"s_add_u32 s{S_DOFF}, s{S_DOFF}, {CH}"]]
    def frag_reads(slot, st):
        ops = []
        for u in range(2):
            b = KV(st, u)
            off = slot * CH + u * TB
            ops.append([f"ds_read_b128 {vr(b,4)}, v{AK1} offset:{off}"])
            ops.append([f"ds_read_b32 v{b+4}, v{AK2} offset:{off}"])
            ops.append([f"ds_read_b128 {vr(b+8,4)}, v{AV} offset:{off}"])
            ops.append([f"ds_read_b128 {vr(b+12,4)}, v{AV} offset:{off+M.VH_B}"])
        return ops
    def emit(ops):
        for o in ops:
            for l in o:
                g(l)
    def set_mref(rt):
        g(f"v_sub_f32 v{T}, 0, v{AM[rt]}")
        g(f"v_and_b32 v{T+1}, 0xffff0000, v{T}")
        g(f"v_sub_f32 v{T}, v{T}, v{T+1}")
        g(f"v_and_b32 v{T+2}, 0xffff0000, v{T}")
        g(f"v_sub_f32 v{T}, v{T}, v{T+2}")
        g(f"v_lshrrev_b32 v{T+1}, 16, v{T+1}")
        g(f"v_or_b32 v{T+1}, v{T+1}, v{T+2}")
        g(f"v_lshrrev_b32 v{T}, 16, v{T}")
        g(f"v_cndmask_b32 v{Q2[rt]+1}, 0, v{T+1}, {LO}")
        g(f"v_cndmask_b32 v{Q2[rt]+2}, 0, v{T}, {LO}")
    def qk1(rt, kb):
        return f"v_mfma_f32_32x32x16_bf16 {vr(S[rt],16)}, {vr(kb,4)}, {vr(Q1[rt],4)}, 0"
    def qk2(rt, kb):
        return f"v_mfma_f32_32x32x16_bf16 {vr(S[rt],16)}, {vr(kb+4,4)}, {vr(Q2[rt],4)}, {vr(S[rt],16)}"
    def pva(rt, kb):
        return f"v_mfma_f32_32x32x16_bf16 {vr(O[rt],16)}, {vr(kb+8,4)}, {vr(P[rt],4)}, {vr(O[rt],16)}"
    def pvb(rt, kb):
        return f"v_mfma_f32_32x32x16_bf16 {vr(O[rt],16)}, {vr(kb+12,4)}, {vr(P[rt]+4,4)}, {vr(O[rt],16)}"

    M.stamp(g, opts, 8)
    Le = g.new("kvearly")
    g("s_cmp_eq_u32 s89, 1")
    g(f"s_cbranch_scc1 {Le}")
    M.global_kv_sync(g, opts)
    kv_first(g, opts, M)
    g.label(Le)
    M.stamp(g, opts, 7)
    g("s_setprio 2")
    g("s_waitcnt vmcnt(4)")
    g(f"v_mov_b32 v{FV}, 3")
    g(f"ds_write_b32 v{FLW}, v{FV}")
    M.flag_wait(g, AFL, FLD, 3, "kb")
    emit(frag_reads(0, 0))
    g("s_waitcnt lgkmcnt(0)")
    M.stamp(g, opts, 4)
    for u in range(2):
        for rt in range(2):
            g(qk1(rt, KV(0, u)))
            g(qk2(rt, KV(0, u)))
        g("s_nop 15")
        g("s_nop 3")
        for rt in range(2):
            s = S[rt]
            t = T + 10 + rt
            if u == 0:
                g(f"v_max_f32 v{t}, v{s}, v{s+15}")
            else:
                g(f"v_max3_f32 v{t}, v{t}, v{s}, v{s+15}")
            for r in range(1, 15, 2):
                g(f"v_max3_f32 v{t}, v{t}, v{s+r}, v{s+r+1}")
    for rt in range(2):
        t = T + 10 + rt
        g(f"v_mov_b32 v{T+1}, v{t}")
        g("s_nop 1")
        g(f"v_permlane32_swap_b32 v{t}, v{T+1}")
        g("s_nop 1")
        g(f"v_max_f32 v{T}, v{t}, v{T+1}")
        g(f"v_ceil_f32 v{T}, v{T}")
        g(f"v_add_f32 v{AM[rt]}, {M.f32bits(float(M.HEAD))}, v{T}")
        set_mref(rt)
    g("s_nop 1")
    g(qk1(0, KV(0, 0)))
    g(qk2(0, KV(0, 0)))
    g("s_nop 15")
    M.stamp(g, opts, 5)
    M.cstamp(g, opts, 11)
    g("s_mov_b32 s94, 0")
    g(f"s_mov_b32 s{S_C}, 0")
    g(f"s_mov_b32 s{S_THR}, 4")

    rare = []

    def half_iter(pos6, q, extra, shadow=()):
        st = pos6 & 1
        rt = q & 1
        u = q >> 1
        if q < 3:
            nst, nu, nrt = st, (q + 1) >> 1, (q + 1) & 1
        else:
            nst, nu, nrt = st ^ 1, 0, 0
        if q > 0:
            pst, pu, prt = st, (q - 1) >> 1, (q - 1) & 1
        else:
            pst, pu, prt = st ^ 1, 1, 1
        s, p = S[rt], P[rt]
        valu = []
        for grp in range(4):
            for r in range(4):
                valu.append(f"v_exp_f32 v{s+4*grp+r}, v{s+4*grp+r}")
            valu.append(f"v_cvt_pk_bf16_f32 v{p+2*grp}, v{s+4*grp}, v{s+4*grp+1}")
            valu.append(f"v_cvt_pk_bf16_f32 v{p+2*grp+1}, v{s+4*grp+2}, v{s+4*grp+3}")
        mf = {0: qk1(nrt, KV(nst, nu)), 6: qk2(nrt, KV(nst, nu)), 12: pvb(prt, KV(pst, pu)), 18: pva(rt, KV(st, u))}
        sh = list(shadow)
        for i in range(24):
            for l in extra.get(i, []):
                g(l)
            if i in mf:
                g(mf[i])
            g(valu[i])
            if valu[i].startswith("v_exp") and sh and sh[0][0] <= i:
                x = sh.pop(0)[1]
                for l in (x if isinstance(x, list) else [x]):
                    g(l)
        assert not sh, sh

    def rare_block(rt, kb, Lr, Lback):
        b = []
        b.append(f"{Lr}:")
        L = M.G()
        L(pvb(rt, kb))
        L("s_nop 15")
        L("s_nop 3")
        L(f"v_frexp_exp_i32_f32 v{T+3}, v{O[rt]+10}")
        L(f"v_add_u32 v{T+3}, {M.HEAD}, v{T+3}")
        L(f"v_max_i32 v{T+3}, 0, v{T+3}")
        L(f"v_cvt_f32_i32 v{T+4}, v{T+3}")
        L(f"v_sub_u32 v{T+3}, 0, v{T+3}")
        L(f"v_add_f32 v{AM[rt]}, v{AM[rt]}, v{T+4}")
        for r in range(11):
            L(f"v_ldexp_f32 v{O[rt]+r}, v{O[rt]+r}, v{T+3}")
        for r in range(4):
            L(f"v_mov_b32 v{P[rt]+4+r}, 0")
        old = g.lines
        g.lines = L.lines
        set_mref(rt)
        if opts.get("dbgrare"):
            g(f"s_add_u32 s95, s95, 1")
        g("s_nop 1")
        g(f"s_branch {Lback}")
        g.lines = old
        rare.append("\n".join(b + L.lines))

    Lloop, Lexit = g.new("aloop"), g.new("aexit")
    if opts.get("dbgrare"):
        g("s_mov_b32 s95, 0")
    g.label(Lloop)
    for pos6 in range(6):
        st = pos6 & 1
        g.c(f"==== chunk pos {pos6}")
        Lspin, Lback = g.new("aspin"), g.new("aback")
        ex = {}
        sh = [(1, "s_waitcnt vmcnt(2)"), (2, f"v_mov_b32 v{FV}, s{S_THR}"), (3, f"ds_write_b32 v{FLW}, v{FV}"),
              (19, f"ds_read_b32 v{FLD}, v{AFL}")]
        if opts.get("nosync") or opts.get("noflag"): sh = []
        half_iter(pos6, 0, ex, sh)
        fr = [x[0] for x in frag_reads((pos6 + 1) % 3, st ^ 1)]
        sh = [(6, "s_waitcnt lgkmcnt(0)"), (7, f"v_cmp_gt_u32 vcc, s{S_THR}, v{FLD}"),
              (12, [f"s_cbranch_vccnz {Lspin}", f"{Lback}:"]),
              (13, fr[0]), (14, fr[1]), (15, fr[4]), (18, fr[5]), (19, fr[2]), (20, fr[3]), (21, fr[6])]
        if opts.get("nosync"): sh = [(12, f"{Lback}:")]
        if opts.get("noflag"): sh = [(12, f"{Lback}:")] + sh[3:]
        if opts.get("noreads"): sh = sh[:3]
        ex = {}
        if st == 0:
            ex[17] = [f"v_cmp_lt_f32 s[{S_CK[1]}:{S_CK[1]+1}], s{S_LT}, v{O[1]+10}"]
        half_iter(pos6, 1, ex, sh)
        rare.append("\n".join([f"{Lspin}:", f"    ds_read_b32 v{FLD}, v{AFL}", "    s_waitcnt lgkmcnt(0)",
                               f"    v_cmp_gt_u32 vcc, s{S_THR}, v{FLD}", "    s_nop 4",
                               "    s_add_u32 s94, s94, 1", f"    s_cbranch_vccz {Lback}", "    s_sleep 1", f"    s_branch {Lspin}"]))
        ex = {}
        if st == 0:
            Lr, Lb = g.new("rare1"), g.new("rback1")
            ex[0] = [f"s_cmp_lg_u64 s[{S_CK[1]}:{S_CK[1]+1}], 0", f"s_cbranch_scc1 {Lr}", f"{Lb}:"]
            rare_block(1, KV(0, 0), Lr, Lb)
            ex[17] = [f"v_cmp_lt_f32 s[{S_CK[0]}:{S_CK[0]+1}], s{S_LT}, v{O[0]+10}"]
        slot = pos6 % 3
        sh = [(0, fr[7]), (1, f"s_add_u32 m0, s{S_M0B}, {slot*CH}"),
              (2, f"buffer_load_dwordx4 v{DV}, {sr(M.SRD_WS)}, s{S_DOFF} offen{ldaux} lds"),
              (7, ["s_mov_b64 exec, 0xfff",
                   f"buffer_load_dwordx4 v{DV}, {sr(M.SRD_WS)}, s{S_DOFF} offen offset:1024{ldaux} lds",
                   "s_mov_b64 exec, -1"]),
              (9, f"s_add_u32 s{S_DOFF}, s{S_DOFF}, {CH}")]
        if opts.get("nosync"): sh = []
        if opts.get("nodma"): sh = sh[:1]
        if opts.get("nodma2"): sh = sh[:3] + sh[4:]
        if opts.get("noreads"): sh = sh[1:]
        half_iter(pos6, 2, ex, sh)
        ex = {0: ["s_waitcnt lgkmcnt(0)"]}
        if st == 0:
            Lr, Lb = g.new("rare0"), g.new("rback0")
            ex[0] = ex[0] + [f"s_cmp_lg_u64 s[{S_CK[0]}:{S_CK[0]+1}], 0", f"s_cbranch_scc1 {Lr}", f"{Lb}:"]
            rare_block(0, KV(0, 1), Lr, Lb)
        sh = [(13, f"s_add_u32 s{S_THR}, s{S_THR}, 1")]
        if pos6 == 1:
            sh.append((14, f"s_cmp_eq_u32 s{S_THR}, 36"))
        half_iter(pos6, 3, ex, sh)
        if pos6 == 1:
            g(f"s_cbranch_scc1 {Lexit}")
    g(f"s_branch {Lloop}")
    for r in rare:
        g.lines.append(r)
    g.label(Lexit)
    g("s_nop 1")
    g(pvb(1, KV(1, 1)))
    g("s_setprio 0")
    M.stamp(g, opts, 6)
    M.cstamp(g, opts, 12)
    if opts.get("stamp"):
        g("v_writelane_b32 v254, s94, 10")
    g("s_waitcnt vmcnt(0) lgkmcnt(0)")
    g(f"v_mov_b32 v{FV}, 100")
    g(f"ds_write_b32 v{FLW}, v{FV}")
    g("s_nop 7")
    g("s_nop 7")
    if opts.get("dbgrare"):
        g("s_lshl_b32 s9, s2, 2")
        g(f"s_add_u32 s9, s9, s{S_W4}")
        g("s_lshl_b32 s9, s9, 2")
        g(f"s_add_u32 s9, s9, {M.WS_DBG}")
        g("v_mov_b32 v2, 0")
        g("v_mov_b32 v3, s95")
        g(f"buffer_store_dword v3, v2, {sr(M.SRD_WS)}, s9 offen")
    g("s_movk_i32 s9, 0x207")
    g("s_mov_b64 s[90:91], 0")
    the_slow = opts.get("slow", True)
    for rt in range(2):
        Lok = g.new("fin_ok")
        g(f"v_mul_f32 v{T}, 0, v{O[rt]}")
        g(f"v_mul_f32 v{T+1}, 0, v{O[rt]+1}")
        for r in range(2, 11):
            g(f"v_fma_f32 v{T+(r&1)}, v{O[rt]+r}, 0, v{T+(r&1)}")
        g(f"v_cmp_u_f32 s[90:91], v{T}, v{T+1}")
        g("s_nop 1")
        if opts.get("forceslow"):
            g("s_mov_b64 s[90:91], -1")
        g("s_cmp_eq_u64 s[90:91], 0")
        g(f"s_cbranch_scc1 {Lok}")
        slow_path(g, opts, M, rt, set_mref, qk1, qk2, pva, pvb)
        g.label(Lok)
    g("v_mov_b32 v6, 0")
    g("v_mov_b32 v7, 0")
    for rt in range(2):
        o = O[rt]
        g(f"v_rcp_f32 v{T}, v{o+10}")
        g("s_nop 0")
        for r in range(10):
            g(f"v_mul_f32 v{o+r}, v{o+r}, v{T}")
        for p in range(5):
            g(f"v_cvt_pk_bf16_f32 v{o+p}, v{o+2*p}, v{o+2*p+1}")
    M.flag_wait(g, AFL, FLD, 100, "kend")
    g("ds_write_b64 v209, v[6:7]")
    g("ds_write_b64 v210, v[6:7]")
    for rt in range(2):
        o = O[rt]
        for p in range(4):
            g(f"ds_write_b32 v{AD+p}, v{o+p} offset:{rt*32*M.OSTR}")
        g(f"s_mov_b64 exec, {LO}")
        g(f"ds_write_b32 v{AD+4}, v{o+4} offset:{rt*32*M.OSTR}")
        g("s_mov_b64 exec, -1")
    g("s_waitcnt lgkmcnt(0)")
    g(f"v_add_u32 v{FLW}, {M.F_O - M.F_KV}, v{FLW}")
    g(f"v_mov_b32 v{FV}, 1")
    g(f"ds_write_b32 v{FLW}, v{FV}")
    M.reduce_setup(g, S_WV)
    XB = 112
    for p in range(3):
        M.reduce_xb(g, XB + 6 * p, p * 128)
    g(f"s_mul_i32 s84, s{S_RB}, 589824")
    g("s_mul_i32 s12, s10, 18")
    g("s_add_u32 s12, s12, s11")
    g(f"s_lshl_b32 s15, s{S_W4}, 1")
    g("s_add_u32 s12, s12, s15")
    g("s_lshl_b32 s12, s12, 10")
    g("s_add_u32 s84, s84, s12")
    g(f"s_add_u32 s84, s84, {M.WS_PART}")
    g("v_add_u32 v5, 8192, v2")
    g("v_add_u32 v6, 16384, v2")
    g(f"s_lshl_b32 s85, s{S_RB}, 2")
    g("s_add_u32 s85, s85, s10")
    g("s_lshl_b32 s85, s85, 7")
    g(f"s_add_u32 s85, s85, {M.WS_FLAG}")
    g("v_and_b32 v7, 7, v1")
    g("v_lshlrev_b32 v7, 2, v7")
    g("s_movk_i32 s86, 0xff")
    PB = 16
    if not opts.get("noawait"):
        g(f"v_add_u32 v9, {M.F_R - M.F_KV}, v{AFL}")
        M.flag_wait(g, 9, 8, 1, "rwait")
    if opts.get("ownlds"):
        g(f"s_lshl_b32 s9, 1, s{S_FS}")
        g("s_andn2_b32 s86, s86, s9")
        g("s_mul_i32 s9, s10, 18432")
        g(f"s_lshl_b32 s12, s{S_W4}, 10")
        g("s_add_u32 s9, s9, s12")
        g(f"s_add_u32 s9, s9, {M.WR + 9216}")
        g("v_add_u32 v9, s9, v2")
        for f2 in range(8):
            Ls = g.new("rown")
            g(f"s_cmp_lg_u32 s{S_FS}, {f2}")
            g(f"s_cbranch_scc1 {Ls}")
            for p in range(3):
                g(f"ds_read_b128 {vr(PB+12*f2+4*p,4)}, v9 offset:{p*4096}")
            g.label(Ls)
    Lp, Ld = g.new("rp"), g.new("rpd")
    g.label(Lp)
    g(f"buffer_load_dword v8, v7, {sr(M.SRD_WS)}, s85 offen sc1")
    g("s_waitcnt vmcnt(0)")
    g("v_cmp_eq_u32 vcc, 1, v8")
    g("s_nop 4")
    g("s_and_b32 s87, vcc_lo, s86")
    g("s_andn2_b32 s86, s86, s87")
    for f2 in range(8):
        Ls = g.new("rps")
        g(f"s_bitcmp1_b32 s87, {f2}")
        g(f"s_cbranch_scc0 {Ls}")
        g(f"s_add_u32 s9, s84, {f2*73728}")
        g(f"buffer_load_dwordx4 {vr(PB+12*f2,4)}, v2, {sr(M.SRD_WS)}, s9 offen sc1")
        g(f"buffer_load_dwordx4 {vr(PB+12*f2+4,4)}, v5, {sr(M.SRD_WS)}, s9 offen sc1")
        g(f"s_cmp_lg_u32 s{S_W4}, 0")
        g(f"s_cbranch_scc1 {Ls}")
        g(f"buffer_load_dwordx4 {vr(PB+12*f2+8,4)}, v6, {sr(M.SRD_WS)}, s9 offen sc1")
        g.label(Ls)
    g("s_cmp_eq_u32 s86, 0")
    g(f"s_cbranch_scc1 {Ld}")
    g(f"s_sleep {opts.get('rsleep', 2)}")
    g(f"s_branch {Lp}")
    g.label(Ld)
    M.stamp(g, opts, 9)
    g("s_waitcnt vmcnt(0) lgkmcnt(0)")
    M.reduce_sum(g, PB, XB, 136, 144, 0, 12, False)
    M.reduce_sum(g, PB + 4, XB + 6, 152, 160, 128, 12, False)
    Lx = g.new("red8")
    g(f"s_cmp_lg_u32 s{S_W4}, 0")
    g(f"s_cbranch_scc1 {Lx}")
    M.reduce_sum(g, PB + 8, XB + 12, 168, 176, 256, 12, False)
    g.label(Lx)
    g("s_waitcnt vmcnt(0)")


def slow_path(g, opts, M, rt, set_mref, qk1, qk2, pva, pvb):
    vr, sr = M.vr, M.sr
    Q1, Q2, S, P, O, KV = M.A_Q1, M.A_Q2, M.A_S, M.A_P, M.A_O, M.A_KV
    AM, AK1, AK2, AV, T = M.A_M, M.A_AK1, M.A_AK2, M.A_AV, M.A_T
    ldaux = " sc1" if opts.get("inkernel") else ""
    kb = KV(0, 0)
    s, p, o = S[rt], P[rt], O[rt]
    G1, G2, G3 = T + 6, T + 7, T + 8
    g(f"v_subrev_u32 v{G1}, {M.KVR}, v{AK1}")
    g(f"v_subrev_u32 v{G2}, {M.KVR}, v{AK2}")
    g(f"v_subrev_u32 v{G3}, {M.KVR}, v{AV}")
    for r in range(16):
        g(f"v_mov_b32 v{o+r}, 0")
    g(f"v_mov_b32 v{AM[rt]}, {M.f32bits(-8388608.0)}")
    g(f"s_mov_b32 s10, {M.WS_KV}")
    g("s_mov_b32 s11, 0")
    L, Lno = g.new("slow"), g.new("slownors")
    g.label(L)
    g(f"buffer_load_dwordx4 {vr(kb,4)}, v{G1}, {sr(M.SRD_WS)}, s10 offen{ldaux}")
    g(f"buffer_load_dword v{kb+4}, v{G2}, {sr(M.SRD_WS)}, s10 offen{ldaux}")
    g(f"buffer_load_dwordx4 {vr(kb+8,4)}, v{G3}, {sr(M.SRD_WS)}, s10 offen{ldaux}")
    g(f"buffer_load_dwordx4 {vr(kb+12,4)}, v{G3}, {sr(M.SRD_WS)}, s10 offen offset:{M.VH_B}{ldaux}")
    g(f"v_mov_b32 v{Q2[rt]+1}, 0")
    g(f"v_mov_b32 v{Q2[rt]+2}, 0")
    g("s_waitcnt vmcnt(0)")
    g("s_nop 1")
    g(qk1(rt, kb))
    g(qk2(rt, kb))
    g("s_nop 15")
    g("s_nop 3")
    g(f"v_max3_f32 v{T}, v{s}, v{s+1}, v{s+2}")
    for r in range(3, 15, 2):
        g(f"v_max3_f32 v{T}, v{T}, v{s+r}, v{s+r+1}")
    g(f"v_max_f32 v{T}, v{T}, v{s+15}")
    g(f"v_mov_b32 v{T+1}, v{T}")
    g("s_nop 1")
    g(f"v_permlane32_swap_b32 v{T}, v{T+1}")
    g("s_nop 1")
    g(f"v_max_f32 v{T}, v{T}, v{T+1}")
    g(f"v_ceil_f32 v{T}, v{T}")
    g(f"v_max_f32 v{T}, v{T}, v{AM[rt]}")
    g(f"v_sub_f32 v{T+1}, v{AM[rt]}, v{T}")
    g(f"v_max_f32 v{T+1}, {M.f32bits(-1000.0)}, v{T+1}")
    g(f"v_cvt_i32_f32 v{T+1}, v{T+1}")
    g(f"v_mov_b32 v{AM[rt]}, v{T}")
    for r in range(16):
        g(f"v_ldexp_f32 v{o+r}, v{o+r}, v{T+1}")
    for r in range(16):
        g(f"v_sub_f32 v{s+r}, v{s+r}, v{AM[rt]}")
        g(f"v_exp_f32 v{s+r}, v{s+r}")
    g("s_nop 0")
    for r in range(8):
        g(f"v_cvt_pk_bf16_f32 v{p+r}, v{s+2*r}, v{s+2*r+1}")
    g("s_nop 1")
    g(pva(rt, kb))
    g(pvb(rt, kb))
    g("s_nop 15")
    g("s_nop 3")
    g(f"s_add_u32 s10, s10, {M.TILE_B}")
    g("s_add_u32 s11, s11, 1")
    g("s_cmp_lt_u32 s11, 64")
    g(f"s_cbranch_scc1 {L}")
```

```python
def ffn_setup(g, opts, M):
    vr, sr = M.vr, M.sr
    S_RB, S_FS, S_WV, S_W4 = M.S_RB, M.S_FS, M.S_WV, M.S_W4
    ACC = lambda ct, rt: 16 + (ct * 4 + rt) * 4
    AB = [160, 172]
    BB = [184, 200]
    VO1, VO2 = 216, 225
    VBE = [234, 235]
    VTA, VBO, VFL, VFW = 236, 237, 238, 239
    VH = 240
    VT = 244
    S_WR, S_O1, S_O2, S_O3 = 84, 85, 86, 87
    noattn = opts.get("noattn")
    for j in range(9):
        g(f"v_add_u32 v5, {64*j}, v1")
        g("v_mul_u32_u24 v6, 3641, v5")
        g("v_lshrrev_b32 v6, 16, v6")
        g("v_mul_u32_u24 v7, 18, v6")
        g("v_sub_u32 v7, v5, v7")
        g("v_lshlrev_b32 v7, 4, v7")
        if j % 4:
            g(f"v_subrev_u32 v7, {(j%4)*1024}, v7")
        g("v_mul_u32_u24 v5, 9216, v6")
        g(f"v_add_u32 v{VO1+j}, v5, v7")
        g("v_mul_u32_u24 v5, 1152, v6")
        g(f"v_add_u32 v{VO2+j}, v5, v7")
    g(f"s_mul_i32 s{S_WR}, s{S_W4}, 18432")
    g(f"s_add_u32 s{S_WR}, s{S_WR}, {M.WR}")
    g(f"s_mul_i32 s9, s{S_W4}, 288")
    g(f"s_mul_i32 s{S_O1}, s{S_FS}, 1152")
    g(f"s_add_u32 s{S_O1}, s{S_O1}, s9")
    g(f"s_mul_i32 s{S_O2}, s{S_FS}, {576*1152}")
    g(f"s_add_u32 s{S_O2}, s{S_O2}, s9")
    g(f"s_mul_i32 s{S_O3}, s{S_FS}, {72*1152}")
    g(f"s_add_u32 s{S_O3}, s{S_O3}, s9")
    g("v_and_b32 v2, 15, v1")
    g("v_lshrrev_b32 v3, 4, v1")
    g("v_bfe_u32 v4, v2, 1, 3")
    g("v_xor_b32 v5, v4, v3")
    g("v_mul_u32_u24 v6, 1152, v2")
    g(f"v_lshl_add_u32 v{VBE[0]}, v5, 4, v6")
    g("v_xor_b32 v5, 4, v5")
    g(f"v_lshl_add_u32 v{VBE[1]}, v5, 4, v6")
    g(f"v_mul_u32_u24 v5, {M.OSTR}, v2")
    g("v_lshl_add_u32 v5, v3, 4, v5")
    g(f"v_add_u32 v{VBO}, {M.OREG}, v5")
    g("v_lshrrev_b32 v5, 2, v1")
    g("v_mul_u32_u24 v5, 288, v5")
    g("v_and_b32 v7, 3, v1")
    g("v_lshl_add_u32 v5, v7, 3, v5")
    g(f"v_add_u32 v{VTA}, s{S_WR}, v5")
    g("v_lshlrev_b32 v5, 2, v7")
    g(f"v_add_u32 v{VFL}, {M.F_X}, v5")
    g(f"s_lshl_b32 s9, s{S_W4}, 2")
    g(f"s_add_u32 s9, s9, {M.F_X}")
    g(f"v_mov_b32 v{VFW}, s9")
    for c in range(4):
        g(f"s_mul_i32 s9, s{S_W4}, 9")
        g(f"s_add_u32 s9, s9, {c}")
        g("s_lshr_b32 s10, s9, 2")
        g("s_lshl_b32 s10, s10, 7")
        g("s_and_b32 s11, s9, 1")
        g("s_lshl_b32 s11, s11, 3")
        g("s_add_u32 s10, s10, s11")
        g("s_and_b32 s11, s9, 2")
        g("s_lshl_b32 s11, s11, 1")
        g("v_xor_b32 v5, v4, v3")
        g("v_xor_b32 v5, s11, v5")
        g("v_lshl_add_u32 v5, v5, 4, v6")
        g(f"v_add_u32 v{VH+c}, s10, v5")
    steps = [("w1", k) for k in range(18)] + [("w2", k) for k in range(18)]
    if not noattn:
        steps += [("wo", k) for k in range(3)]
    NS = len(steps)

    def dma_ops(gs):
        kind, kk = steps[gs]
        st = gs & 1
        if kind == "w1":
            srd, vo, sb, inc = M.SRD_W1, VO1, S_O1, kk * 32 * 9216
        elif kind == "w2":
            srd, vo, sb, inc = M.SRD_W2, VO2, S_O2, kk * 32 * 1152
        else:
            srd, vo, sb, inc = M.SRD_WO, VO2, S_O3, kk * 32 * 1152
        ops = []
        for j in range(9):
            pre = []
            if j == 0:
                pre.append(f"s_add_u32 s88, s{sb}, {inc}")
            if j % 4 == 0:
                pre.append(f"s_add_u32 m0, s{S_WR}, {st*9216 + (j//4)*4096}")
                pre.append("s_nop 0")
            ops.append(pre + [f"buffer_load_dwordx4 v{vo+j}, {sr(srd)}, s88 offen offset:{(j%4)*1024} lds"])
        return ops
    return dma_ops(0) + dma_ops(1)


def ffn(g, opts, M):
    vr, sr = M.vr, M.sr
    S_RB, S_FS, S_WV, S_W4 = M.S_RB, M.S_FS, M.S_WV, M.S_W4
    ACC = lambda ct, rt: 16 + (ct * 4 + rt) * 4
    AB = [160, 172]
    BB = [184, 200]
    VO1, VO2 = 216, 225
    VBE = [234, 235]
    VTA, VBO, VFL, VFW = 236, 237, 238, 239
    VH = 240
    VT = 244
    S_WR, S_O1, S_O2, S_O3 = 84, 85, 86, 87
    noattn = opts.get("noattn")
    g(f"s_waitcnt vmcnt({18 + opts['npf']})")
    for ct in range(9):
        a, b = ACC(ct, 0), 160 + 2 * ct
        g(f"v_lshlrev_b32 v{a}, 16, v{b}")
        g(f"v_and_b32 v{a+1}, 0xffff0000, v{b}")
        g(f"v_lshlrev_b32 v{a+2}, 16, v{b+1}")
        g(f"v_and_b32 v{a+3}, 0xffff0000, v{b+1}")
    M.stamp(g, opts, 3)
    if opts.get("noffn"):
        return

    steps = [("w1", k) for k in range(18)] + [("w2", k) for k in range(18)]
    if not noattn:
        steps += [("wo", k) for k in range(3)]
    NS = len(steps)

    def dma_ops(gs):
        kind, kk = steps[gs]
        st = gs & 1
        if kind == "w1":
            srd, vo, sb, inc = M.SRD_W1, VO1, S_O1, kk * 32 * 9216
        elif kind == "w2":
            srd, vo, sb, inc = M.SRD_W2, VO2, S_O2, kk * 32 * 1152
        else:
            srd, vo, sb, inc = M.SRD_WO, VO2, S_O3, kk * 32 * 1152
        ops = []
        for j in range(9):
            pre = []
            if j == 0:
                pre.append(f"s_add_u32 s88, s{sb}, {inc}")
            if j % 4 == 0:
                pre.append(f"s_add_u32 m0, s{S_WR}, {st*9216 + (j//4)*4096}")
                pre.append("s_nop 0")
            ops.append(pre + [f"buffer_load_dwordx4 v{vo+j}, {sr(srd)}, s88 offen offset:{(j%4)*1024} lds"])
        return ops
    def tr_ops(gs, c):
        st = gs & 1
        ab = AB[(3 * gs + c) & 1]
        ops = []
        for i in range(3):
            ct = 3 * c + i
            for jh in range(2):
                ops.append([f"ds_read_b64_tr_b16 {vr(ab+i*4+jh*2,2)}, v{VTA} offset:{st*9216 + ct*32 + jh*4608}"])
        return ops
    def b_ops(gs):
        kind, kk = steps[gs]
        bb = BB[gs & 1]
        ops = []
        for rt in range(4):
            if kind == "wo":
                ops.append([f"ds_read_b128 {vr(bb+rt*4,4)}, v{VBO} offset:{rt*16*M.OSTR + kk*64}"])
            else:
                ops.append([f"ds_read_b128 {vr(bb+rt*4,4)}, v{VBE[kk&1]} offset:{M.XH + rt*18432 + (kk>>1)*128}"])
        return ops
    def emit(ops):
        for o in ops:
            for l in o:
                g(l)

    def part_store(c):
        ops = []
        for ct in range(3 * c, 3 * c + 3):
            for u in range(2):
                b = ACC(ct, 2 * u)
                tp = ct * 2 + u
                o = [f"v_cvt_pk_bf16_f32 v{b+d}, v{b+2*d}, v{b+2*d+1}" for d in range(4)]
                if tp % 4 == 0 and tp:
                    o.append("s_add_u32 s9, s9, 4096")
                if opts.get("ownlds"):
                    La, Lb = g.new("ownl"), g.new("ownn")
                    o += [f"s_cmp_eq_u32 s89, {u}", f"s_cbranch_scc1 {La}",
                          f"buffer_store_dwordx4 {vr(b,4)}, v2, {sr(M.SRD_WS)}, s9 offen offset:{(tp%4)*1024} sc1",
                          f"s_branch {Lb}", f"{La}:",
                          f"ds_write_b128 v3, {vr(b,4)} offset:{9216 + ct*1024}", f"{Lb}:"]
                else:
                    o.append(f"buffer_store_dwordx4 {vr(b,4)}, v2, {sr(M.SRD_WS)}, s9 offen offset:{(tp%4)*1024} sc1")
                ops.append(o)
        return ops
    emit(b_ops(0))
    npf = opts["npf"]
    g(f"s_waitcnt vmcnt({9 + npf})")
    emit(tr_ops(0, 0))
    deferred = []
    for gs in range(NS):
        kind, kk = steps[gs]
        g.c(f"---- step {gs} {kind} {kk}")
        if gs == 1: M.stamp(g, opts, 4)
        if not opts.get("fst"):
            if gs == 5: M.stamp(g, opts, 10)
            if gs == 9: M.stamp(g, opts, 11)
            if gs == 13: M.stamp(g, opts, 12)
        first = (kk == 0 and kind in ("w1", "w2"))
        bpre = gs + 1 < NS and not (steps[gs + 1][1] == 0 and steps[gs + 1][0] in ("w2", "wo"))
        for c in range(3):
            fill = []
            if c == 2 and bpre:
                g("s_waitcnt lgkmcnt(4)")
            else:
                g("s_waitcnt lgkmcnt(0)")
            if c < 2:
                fill += tr_ops(gs, c + 1)
                if c == 1 and bpre:
                    fill += b_ops(gs + 1)
                if c == 0 and gs == 2 and not opts.get("nopf"):
                    fill += [[f"s_min_u32 s9, s{S_W4}, 2", "s_mul_i32 s9, s9, 6912", f"s_mul_i32 s10, s{S_RB}, 20736", "s_add_u32 s9, s9, s10",
                              f"s_mul_i32 s10, s{S_FS}, {576*1152}", "s_add_u32 s9, s9, s10"],
                             [f"v_min_u32 v{VT+2}, 53, v1", f"v_lshlrev_b32 v{VT+2}, 7, v{VT+2}"],
                             [f"buffer_load_dword v{VT+3}, v{VT+2}, {sr(M.SRD_W2)}, s9 offen"]]
                    if opts.get("map2"):
                        fill += [[f"s_xor_b32 s10, s{S_RB}, 16", f"s_sub_u32 s10, s10, s{S_RB}", "s_mul_i32 s10, s10, 20736", "s_add_u32 s9, s9, s10",
                                  f"buffer_load_dword v{VT+3}, v{VT+2}, {sr(M.SRD_W2)}, s9 offen"]]
                if c == 0 and kind == "w1" and kk == 17:
                    fill += [[f"v_mov_b32 v{VT}, 1", f"ds_write_b32 v{VFW}, v{VT}"]]
            else:
                if gs + 1 < NS:
                    g(f"s_waitcnt vmcnt({1 if (gs == 2 and not opts.get('nopf') and opts.get('dspread', 9) == 9) else 0})")
                    fill += tr_ops(gs + 1, 0)
                if gs + 2 < NS:
                    d = dma_ops(gs + 2)
                    nsp = opts.get("dspread", 9)
                    fill += d[:nsp]
                    deferred = d[nsp:]
            if c == 0 and deferred:
                fill += deferred
                deferred = []
            if gs == NS - 1:
                if c == 0:
                    fill += [[f"s_lshl_b32 s9, s{S_RB}, 3", f"s_add_u32 s9, s9, s{S_FS}", "s_mul_i32 s9, s9, 73728"],
                             [f"s_mul_i32 s10, s{S_W4}, 18432", "s_add_u32 s9, s9, s10", f"s_add_u32 s9, s9, {M.WS_PART}"],
                             ["v_lshlrev_b32 v2, 4, v1", f"v_add_u32 v3, s{S_WR}, v2"],
                             [f"s_lshr_b32 s10, s{S_FS}, 1", f"s_and_b32 s89, s{S_FS}, 1", f"s_cmp_eq_u32 s10, s{S_W4}", "s_cselect_b32 s89, s89, 7"]]
                else:
                    fill = [["s_nop 1"]] * 2 + fill + part_store(c - 1)
            if opts.get("fmod"):
                if c == 0 and gs % opts["fmod"] == 0:
                    g("s_setprio 3")
                elif c == 1 and gs % opts["fmod"] == 0:
                    g("s_setprio 0")
            ab = AB[(3 * gs + c) & 1]
            bb = BB[gs & 1]
            mf = []
            for i in range(3):
                ct = 3 * c + i
                order = (1, 2, 3, 0) if (first and kind == "w1") else (0, 1, 2, 3)
                for rt in order:
                    if first and kind == "w1":
                        cc = vr(ACC(ct, 0), 4)
                    elif first:
                        cc = "0"
                    else:
                        cc = vr(ACC(ct, rt), 4)
                    mf.append(f"v_mfma_f32_16x16x32_bf16 {vr(ACC(ct,rt),4)}, {vr(ab+i*4,4)}, {vr(bb+rt*4,4)}, {cc}")
            nf = len(fill)
            fi = 0
            for mi, m in enumerate(mf):
                g(m)
                want = ((mi + 1) * nf + 11) // 12
                while fi < want:
                    for l in fill[fi]:
                        g(l)
                    fi += 1
        if kind == "w1" and kk == 17:
            g.c("---- GEMM1 epilogue")
            M.stamp(g, opts, 5)
            M.flag_wait(g, VFL, VT, 1, "fx1")
            g(f"v_subrev_u32 v{VT+1}, {M.F_X - M.F_KV}, v{VFL}")
            if not noattn:
                M.flag_wait(g, VT + 1, VT, 2, "fxa")
            g(f"s_setprio {opts.get('eprio', 3)}")
            for ct in range(9):
                for rt in range(4):
                    a = ACC(ct, rt)
                    for r in range(4):
                        g(f"v_max_f32 v{a+r}, 0, v{a+r}")
                    g(f"v_pk_mul_f32 {vr(a,2)}, {vr(a,2)}, {vr(a,2)}")
                    g(f"v_pk_mul_f32 {vr(a+2,2)}, {vr(a+2,2)}, {vr(a+2,2)}")
                    g(f"v_cvt_pk_bf16_f32 v{a}, v{a}, v{a+1}")
                    g(f"v_cvt_pk_bf16_f32 v{a+1}, v{a+2}, v{a+3}")
                    g(f"ds_write_b64 v{VH + (ct & 3)}, {vr(a,2)} offset:{M.XH + rt*18432 + (ct>>2)*128}")
            g("s_waitcnt lgkmcnt(0)")
            g(f"v_mov_b32 v{VT}, 2")
            g(f"ds_write_b32 v{VFW}, v{VT}")
            g("s_setprio 0")
            M.flag_wait(g, VFL, VT, 2, "fx2")
            M.stamp(g, opts, 6)
            emit(b_ops(gs + 1))
        if kind == "w2" and kk == 17 and not noattn:
            g.c("---- wait for O")
            M.stamp(g, opts, 7)
            g(f"v_add_u32 v{VFL}, {M.F_O - M.F_X}, v{VFL}")
            M.flag_wait(g, VFL, VT, 1, "fo")
            M.stamp(g, opts, 8)
            emit(b_ops(gs + 1))
    g.c("---- GEMM2 epilogue: partial store")
    M.stamp(g, opts, 9)
    g("s_nop 7")
    emit(part_store(2))
    g(f"s_lshl_b32 s9, s{S_RB}, 2")
    g(f"s_add_u32 s9, s9, s{S_W4}")
    g("s_lshl_b32 s9, s9, 7")
    g(f"s_lshl_b32 s10, s{S_FS}, 2")
    g("s_add_u32 s9, s9, s10")
    g(f"s_add_u32 s9, s9, {M.WS_FLAG}")
    g("v_mov_b32 v7, 1")
    g("v_mov_b32 v10, 0")
    g(f"s_lshl_b32 s10, s{S_W4}, 2")
    g(f"s_add_u32 s10, s10, {M.F_R}")
    g("v_mov_b32 v6, s10")
    g("ds_write_b32 v6, v7")
    g("s_waitcnt vmcnt(0)")
    M.stamp(g, opts, 10)
    g("s_mov_b64 exec, 1")
    g(f"buffer_store_dword v7, v10, {sr(M.SRD_WS)}, s9 offen sc1")
    g("s_mov_b64 exec, -1")
    g("s_waitcnt vmcnt(0)")
```
